```python
import torch

def _softmax(x, axis=-1):
    return torch.softmax(x, dim=axis)
def _gelu(x):
    return torch.nn.functional.gelu(x, approximate="tanh")
def _silu(x):
    return torch.nn.functional.silu(x)
def _sigmoid(x):
    return torch.sigmoid(x)
def _layernorm(x, axis=-1, eps=1e-5):
    m = x.mean(dim=axis, keepdim=True)
    v = x.var(dim=axis, keepdim=True, unbiased=False)
    return (x - m) / torch.sqrt(v + eps)
def _scatter_add(tgt, idx, src, axis=0):
    return tgt.clone().index_add_(axis, idx, src)
def _segment_sum(src, seg, n):
    out = torch.zeros((n,) + src.shape[1:], dtype=src.dtype)
    return out.index_add_(0, seg, src)
def _pad(x, pw):
    flat = tuple(v for pair in reversed(pw) for v in pair)
    return torch.nn.functional.pad(x, flat)

kernel_name = 'concat_heads__mha_block_cached__gqa_block_cached__near_ridge'

def setup_inputs():

    _w = (lambda a: (lambda t: t.to(torch.bfloat16) if t.is_floating_point() else t)(torch.as_tensor(a)))
    def _A_setup():
        B, Sq, D = 8, 240, 512
        H, Sk, Dh = 32, 512, 128
        return {
            "x": _w((lambda *s: torch.randn(*s, dtype=torch.bfloat16) * 0.8)(B, Sq, D)),
            "k_cache": _w((lambda *s: torch.randn(*s, dtype=torch.bfloat16) * 0.8)(B, H, Sk, Dh)),
            "v_cache": _w((lambda *s: torch.randn(*s, dtype=torch.bfloat16) * 0.05)(B, H, Sk, Dh)),
            "wq": _w((lambda *s: torch.randn(*s, dtype=torch.bfloat16) * 0.8)(D, H * Dh) * (D ** -0.5)),
            "wo": _w((lambda *s: torch.randn(*s, dtype=torch.bfloat16) * 0.05)(H * Dh, D) * ((H * Dh) ** -0.5)),
        }
    _A_in = _A_setup()

    def _B_setup():
        B, Sq, D = 8, 240, 512
        Hq, Hkv, Sk, Dh = 32, 32, 512, 128
        assert Hq % Hkv == 0, (Hq, Hkv)
        return {
            "x": _w((lambda *s: torch.randn(*s, dtype=torch.bfloat16) * 0.8)(B, Sq, D)),
            "k_cache": _w((lambda *s: torch.randn(*s, dtype=torch.bfloat16) * 0.8)(B, Hkv, Sk, Dh)),
            "v_cache": _w((lambda *s: torch.randn(*s, dtype=torch.bfloat16) * 0.05)(B, Hkv, Sk, Dh)),
            "wq": _w((lambda *s: torch.randn(*s, dtype=torch.bfloat16) * 0.8)(D, Hq * Dh) * (D ** -0.5)),
            "wo": _w((lambda *s: torch.randn(*s, dtype=torch.bfloat16) * 0.05)(Hq * Dh, D) * ((Hq * Dh) ** -0.5)),
        }
    _B_in = _B_setup()

    return {
        "A_x": _A_in["x"],
        "A_k_cache": _A_in["k_cache"],
        "A_v_cache": _A_in["v_cache"],
        "A_wq": _A_in["wq"],
        "A_wo": _A_in["wo"],
        "B_x": _B_in["x"],
        "B_k_cache": _B_in["k_cache"],
        "B_v_cache": _B_in["v_cache"],
        "B_wq": _B_in["wq"],
        "B_wo": _B_in["wo"],
    }

def reference(A_x, A_k_cache, A_v_cache, A_wq, A_wo, B_x, B_k_cache, B_v_cache, B_wq, B_wo):
    def _A_ref(x, k_cache, v_cache, wq, wo):
        B, Sq, D = x.shape
        H, Dh = 32, 128
        q = (lambda x, *d: x.permute(*d))((x @ wq).reshape(B, Sq, H, Dh), 0, 2, 1, 3)
        scores = torch.einsum("bhqd,bhkd->bhqk", q, k_cache) * (Dh ** -0.5)
        p = _softmax(scores, axis=-1)
        o = torch.einsum("bhqk,bhkd->bhqd", p, v_cache)
        return (lambda x, *d: x.permute(*d))(o, 0, 2, 1, 3).reshape(B, Sq, H * Dh) @ wo

    def _B_ref(x, k_cache, v_cache, wq, wo):
        B, Sq, D = x.shape
        Hq, Dh = 32, 128
        Hkv = k_cache.shape[1]
        rep = Hq // Hkv
        q = (lambda x, *d: x.permute(*d))((x @ wq).reshape(B, Sq, Hq, Dh), 0, 2, 1, 3)
        k = (lambda x, n, axis: torch.repeat_interleave(x, n, dim=axis))(k_cache, rep, axis=1)
        v = (lambda x, n, axis: torch.repeat_interleave(x, n, dim=axis))(v_cache, rep, axis=1)
        scores = torch.einsum("bhqd,bhkd->bhqk", q, k) * (Dh ** -0.5)
        p = _softmax(scores, axis=-1)
        o = torch.einsum("bhqk,bhkd->bhqd", p, v)
        return (lambda x, *d: x.permute(*d))(o, 0, 2, 1, 3).reshape(B, Sq, Hq * Dh) @ wo

    a = _A_ref(A_x, A_k_cache, A_v_cache, A_wq, A_wo)
    b = _B_ref(B_x, B_k_cache, B_v_cache, B_wq, B_wo)
    return torch.concatenate([a, b], axis=-1)
```

```python
class Asm:
    def __init__(self):
        self.lines = []
        self.trace = True
        self.vm = []
        self.lg = []
        self.vmi = {}
        self.lgi = {}
        self.site = 0
        self.site_vm = {}
        self.site_lg = {}
        self.uniq = 0

    def reset_sites(self, base):
        self.site = base

    def emit(self, s):
        if not self.trace:
            self.lines.append("    " + s)

    def label(self, s):
        if not self.trace:
            self.lines.append(s + ":")

    def comment(self, s):
        if not self.trace:
            self.lines.append("    ; " + s)

    def vmem(self, s, tag=None):
        if self.trace:
            self.vm.append(tag)
            if tag is not None:
                self.vmi[tag] = len(self.vm) - 1
        else:
            self.lines.append("    " + s)

    def ds(self, s, tag=None):
        if self.trace:
            self.lg.append(tag)
            if tag is not None:
                self.lgi[tag] = len(self.lg) - 1
        else:
            self.lines.append("    " + s)

    def wait(self, vm=(), lg=()):
        site = self.site
        self.site += 1
        if self.trace:
            if vm:
                idx = max(self.vmi[t] for t in vm)
                n = len(self.vm) - 1 - idx
                self.site_vm[site] = min(self.site_vm.get(site, 63), n, 63)
            if lg:
                idx = max(self.lgi[t] for t in lg)
                n = len(self.lg) - 1 - idx
                self.site_lg[site] = min(self.site_lg.get(site, 15), n, 15)
        else:
            parts = []
            if site in self.site_vm and self.site_vm[site] < 63:
                parts.append("vmcnt(%d)" % self.site_vm[site])
            if site in self.site_lg and self.site_lg[site] < 15:
                parts.append("lgkmcnt(%d)" % self.site_lg[site])
            if parts:
                self.lines.append("    s_waitcnt " + " ".join(parts))

    def text(self):
        return "\n".join(self.lines) + "\n"
```

```python
from asmlib import Asm
import math

NSLOT = 10
SLOT = 16384
RING = NSLOT * SLOT
LA = 5
NFR = 7
THR = 256.0

V_TID = 0
V_T1 = 1
V_XOFF = [2, 3]
V_STOFF = [4, 5]
V_DW, V_DV, V_DK = 6, 7, 8
V_L = [9, 10]
V_NM = [11, 12]
V_TS = [[13, 14], [15, 16]]
V_ET = [17, 18, 19, 20]
V_VW = [21, 22, 23, 24]
V_KA = [25 + i for i in range(8)]
V_TMP = [33, 34, 35]
V_FR = 36
V_QACC = 64
V_S = [64, 96]
V_P = [128, 144]
V_NEGM = 160
V_Q = 192
A_O = 0
A_X = 128

S_X, S_W, S_K, S_V, S_WS = 4, 8, 12, 16, 20
S_UNIT = 24
S_KVB = 26
S_WCB = 27
S_KVBN = 28
S_WCBN = 29
S_PSL = 30
S_UB = 31
S_KOLD = 32
S_VOLD = 33
S_T = [34, 35, 36, 37, 38, 39]
S_THR = 40
S_SCALE = 41
S_WV1K = 42
S_STB = 43
S_WN, S_KN, S_XN = 44, 48, 52
S_PSW = 56
S_STB2 = 57

def vr(b, n):
    return "v[%d:%d]" % (b, b + n - 1)
def ar(b, n):
    return "a[%d:%d]" % (b, b + n - 1)

def chunk_kind(idx):
    if idx < 8:
        return ('W', idx)
    if idx == 8:
        return ('K', 0)
    if idx == 23:
        return ('V', 7)
    if idx % 2 == 1:
        return ('K', (idx - 7) // 2)
    return ('V', (idx - 10) // 2)

def idx_of(kind, c):
    if kind == 'W':
        return c
    if kind == 'K':
        return 8 if c == 0 else 7 + 2 * c
    return 23 if c == 7 else 10 + 2 * c

STEPS = [('P', j) for j in range(8)] + [('A', t) for t in range(9)]
def step_chunks(st):
    k, j = st
    if k == 'P':
        return [j]
    if j == 0:
        return [8]
    if j == 8:
        return [23]
    return [7 + 2 * j, 8 + 2 * j]

class K1:
    def __init__(self, a):
        self.a = a

    def dma_ops(self, unit, idx):
        a = self.a
        nxt = idx >= 24
        u = unit + (1 if nxt else 0)
        i2 = idx - 24 if nxt else idx
        kind, c = chunk_kind(i2)
        ops = []
        for i in range(4):
            def op(i=i):
                if kind == 'W':
                    srd = S_WN if nxt else S_W
                    base = S_WCBN if nxt else S_WCB
                    goff = c * 524288 + i * 131072
                    vo = V_DW
                elif kind == 'K':
                    srd = S_KN if nxt else S_K
                    base = S_KVBN if nxt else S_KVB
                    goff = c * 16384 + i * 4096
                    vo = V_DK
                else:
                    assert not nxt
                    srd = S_V
                    base = S_KVB
                    goff = c * 16384 + i * 4096
                    vo = V_DV
                a.emit("s_add_u32 m0, s%d, %d" % (S_PSW, i * 4096))
                a.emit("s_add_u32 s%d, s%d, %d" % (S_T[0], base, goff))
                a.vmem("buffer_load_dwordx4 v%d, s[%d:%d], s%d offen lds" % (vo, srd, srd + 3, S_T[0]),
                       ('dma', u, i2, i))
            ops.append((op, 12))
        def adv():
            a.emit("s_add_u32 s%d, s%d, %d" % (S_PSL, S_PSL, SLOT))
            a.emit("s_cmp_eq_u32 s%d, %d" % (S_PSL, RING))
            a.emit("s_cselect_b32 s%d, 0, s%d" % (S_PSL, S_PSL))
            a.emit("s_add_u32 s%d, s%d, s%d" % (S_PSW, S_PSL, S_WV1K))
        ops.append((adv, 8))
        return ops

    def dma_tags(self, unit, idx):
        return [('dma', unit, idx, i) for i in range(4)]

    def slot_update_ops(self, idx):
        a = self.a
        kind, c = chunk_kind(idx)
        old = S_KOLD if kind == 'K' else S_VOLD
        regs = V_KA if kind == 'K' else V_VW
        ops = []
        def calc():
            a.emit("s_add_u32 s%d, s%d, %d" % (S_T[1], S_UB, (idx % NSLOT) * SLOT))
            a.emit("s_sub_u32 s%d, s%d, %d" % (S_T[2], S_T[1], RING))
            a.emit("s_cmp_ge_u32 s%d, %d" % (S_T[1], RING))
            a.emit("s_cselect_b32 s%d, s%d, s%d" % (S_T[1], S_T[2], S_T[1]))
            a.emit("s_sub_u32 s%d, s%d, s%d" % (S_T[3 if kind == 'K' else 4], S_T[1], old))
            a.emit("s_mov_b32 s%d, s%d" % (old, S_T[1]))
        ops.append((calc, 12))
        for r in regs:
            def up(r=r):
                a.emit("v_add_u32 v%d, s%d, v%d" % (r, S_T[3 if kind == 'K' else 4], r))
            ops.append((up, 4))
        return ops

    def x_load(self, unit, j, ks, qt, nxt=False):
        a = self.a
        slot = (j % 4) * 8 + ks * 2 + qt
        srd = S_XN if nxt else S_X
        s = j * 4 + ks
        a.vmem("buffer_load_dwordx4 %s, v%d, s[%d:%d], 0 offen offset:%d" %
               (ar(A_X + slot * 4, 4), V_XOFF[qt], srd, srd + 3, 32 * s), ('x', unit, j, ks, qt))

    def build_frags(self):
        fr = []
        for j in range(8):
            for ks in range(4):
                for t in range(4):
                    fr.append(('W', j, ks, t))
        def ktile(t):
            for s in range(8):
                fr.append(('K', t, s))
        def vtile(t):
            for dt in range(4):
                for ks in range(2):
                    fr.append(('V', t, dt, ks))
        ktile(0)
        ktile(1)
        for t in range(1, 15):
            ktile(t + 1)
            vtile(t - 1)
        vtile(14)
        vtile(15)
        return fr

    def frag_reg(self, f):
        return V_FR + (f % NFR) * 4

    def issue_frag(self, unit, f):
        a = self.a
        if f >= len(self.frags):
            return
        d = self.frags[f]
        r = self.frag_reg(f)
        if d[0] == 'W':
            _, j, ks, t = d
            for e2 in range(2):
                a.ds("ds_read_b64_tr_b16 %s, v%d offset:%d" % (vr(r + 2 * e2, 2), V_VW[t], (16 * ks + 4 * e2) * 256),
                     ('fr', unit, f, e2))
        elif d[0] == 'V':
            _, tt, dt, ks = d
            kt = tt & 1
            for e2 in range(2):
                a.ds("ds_read_b64_tr_b16 %s, v%d offset:%d" % (vr(r + 2 * e2, 2), V_VW[dt], (32 * kt + 16 * ks + 4 * e2) * 256),
                     ('fr', unit, f, e2))
        else:
            _, tt, s = d
            kt = tt & 1
            a.ds("ds_read_b128 %s, v%d offset:%d" % (vr(r, 4), V_KA[s], kt * 8192), ('fr', unit, f, 1))

    def frag_chunk(self, f):
        d = self.frags[f]
        if d[0] == 'W':
            return idx_of('W', d[1])
        if d[0] == 'K':
            return idx_of('K', d[1] // 2)
        return idx_of('V', d[1] // 2)

    def softmax_ops(self, t):
        a = self.a
        cb = t & 1
        ops = []
        seq = []
        for qt in range(2):
            for p in range(8):
                seq.append((qt, p))
        def E(k):
            qt, p = seq[k]
            ta, tb = V_ET[2 * (k & 1)], V_ET[2 * (k & 1) + 1]
            s0 = V_S[cb] + qt * 16 + 2 * p
            ops.append((lambda: a.emit("v_exp_f32 v%d, v%d" % (ta, s0)), 8))
            ops.append((lambda: a.emit("v_exp_f32 v%d, v%d" % (tb, s0 + 1)), 8))
        def R(k):
            qt, p = seq[k]
            ta, tb = V_ET[2 * (k & 1)], V_ET[2 * (k & 1) + 1]
            if p == 0:
                ops.append((lambda: a.emit("v_mov_b32 v%d, v%d" % (V_TS[qt][0], ta)), 4))
                ops.append((lambda: a.emit("v_mov_b32 v%d, v%d" % (V_TS[qt][1], tb)), 4))
            else:
                ops.append((lambda: a.emit("v_add_f32 v%d, v%d, v%d" % (V_TS[qt][0], V_TS[qt][0], ta)), 4))
                ops.append((lambda: a.emit("v_add_f32 v%d, v%d, v%d" % (V_TS[qt][1], V_TS[qt][1], tb)), 4))
            pr = V_P[cb] + qt * 8 + p
            ops.append((lambda: a.emit("v_cvt_pk_bf16_f32 v%d, v%d, v%d" % (pr, ta, tb)), 4))
        E(0)
        for k in range(1, 16):
            E(k)
            R(k - 1)
        ops.append((lambda: a.emit("s_nop 0"), 4))
        R(15)
        for qt in range(2):
            ops.append((lambda qt=qt: a.emit("v_add_f32 v%d, v%d, v%d" % (V_TS[qt][0], V_TS[qt][0], V_TS[qt][1])), 4))
        ops.append((lambda: a.emit("v_max_f32 v%d, v%d, v%d" % (V_TMP[0], V_TS[0][0], V_TS[1][0])), 4))
        return ops

    def check_ops(self, t):
        a = self.a
        a.emit("v_cmp_nle_f32 vcc, v%d, v%d" % (V_TMP[0], V_TMP[2]))
        a.emit("s_cbranch_vccnz L_slow%d" % t)
        a.label("L_back%d" % t)
        for qt in range(2):
            a.emit("v_add_f32 v%d, v%d, v%d" % (V_L[qt], V_L[qt], V_TS[qt][0]))

    def slow_path(self, t):
        a = self.a
        cb = t & 1
        nb = cb ^ 1
        a.label("L_slow%d" % t)
        a.emit("s_nop 15")
        a.emit("s_nop 15")
        T0, T1 = V_ET[0], V_ET[1]
        for qt in range(2):
            s = V_S[cb] + qt * 16
            a.emit("v_max3_f32 v%d, v%d, v%d, v%d" % (T0, s, s + 1, s + 2))
            for i in range(3, 15, 2):
                a.emit("v_max3_f32 v%d, v%d, v%d, v%d" % (T0, T0, s + i, s + i + 1))
            a.emit("v_max_f32 v%d, v%d, v%d" % (T0, T0, s + 15))
            a.emit("v_mov_b32 v%d, v%d" % (T1, T0))
            a.emit("s_nop 1")
            a.emit("v_permlane32_swap_b32 v%d, v%d" % (T0, T1))
            a.emit("s_nop 1")
            a.emit("v_max3_f32 v%d, v%d, v%d, 0" % (T0, T0, T1))
            a.emit("v_exp_f32 v%d, -v%d" % (T1, T0))
            a.emit("v_sub_f32 v%d, v%d, v%d" % (V_NM[qt], V_NM[qt], T0))
            for i in range(16):
                a.emit("v_mov_b32 v%d, v%d" % (V_NEGM + qt * 16 + i, V_NM[qt]))
            if t < 15:
                for i in range(16):
                    r = V_S[nb] + qt * 16 + i
                    a.emit("v_sub_f32 v%d, v%d, v%d" % (r, r, T0))
            a.emit("v_mul_f32 v%d, v%d, v%d" % (V_L[qt], V_L[qt], T1))
            for dt in range(4):
                for i in range(16):
                    r = A_O + (dt * 2 + qt) * 16 + i
                    a.emit("v_accvgpr_read_b32 v%d, a%d" % (V_ET[2], r))
                    a.emit("v_mul_f32 v%d, v%d, v%d" % (V_ET[3], V_ET[2], T1))
                    a.emit("v_accvgpr_write_b32 a%d, v%d" % (r, V_ET[3]))
            a.emit("v_mov_b32 v%d, 0" % V_TS[qt][0])
            for p in range(8):
                a.emit("v_sub_f32 v%d, v%d, v%d" % (V_ET[2], s + 2 * p, T0))
                a.emit("v_sub_f32 v%d, v%d, v%d" % (V_ET[3], s + 2 * p + 1, T0))
                a.emit("v_exp_f32 v%d, v%d" % (V_ET[2], V_ET[2]))
                a.emit("v_exp_f32 v%d, v%d" % (V_ET[3], V_ET[3]))
                a.emit("s_nop 0")
                a.emit("v_add_f32 v%d, v%d, v%d" % (V_TS[qt][0], V_TS[qt][0], V_ET[2]))
                a.emit("v_add_f32 v%d, v%d, v%d" % (V_TS[qt][0], V_TS[qt][0], V_ET[3]))
                a.emit("v_cvt_pk_bf16_f32 v%d, v%d, v%d" % (V_P[cb] + qt * 8 + p, V_ET[2], V_ET[3]))
        a.emit("s_nop 3")
        a.emit("s_branch L_back%d" % t)

    def unit_body(self, unit):
        a = self.a
        frags = self.frags
        self.fpos = 0
        self.fiss = 0
        fillers = []

        def pump(budget):
            while fillers and budget > 0:
                op, c = fillers.pop(0)
                op()
                budget -= c

        def flush():
            while fillers:
                op, c = fillers.pop(0)
                op()

        def issue_upto(n):
            while self.fiss < min(n, len(frags)):
                self.issue_frag(unit, self.fiss)
                self.fiss += 1

        def step_start(si):
            st = STEPS[si]
            if si + 1 < len(STEPS):
                need = []
                for ci in step_chunks(STEPS[si + 1]):
                    need += self.dma_tags(unit, ci)
            else:
                need = self.dma_tags(unit + 1, 0)
            flush()
            a.wait(vm=need)
            a.emit("s_barrier")
            if si == 0:
                freed = [23 - 24] if True else []
                newidx = [9]
                if unit == 0 and a.trace:
                    pass
            else:
                newidx = [c + 10 for c in step_chunks(STEPS[si - 1])]
            for ni in newidx:
                fillers.extend(self.dma_ops(unit, ni))

        def consume_pair(mf0, mf1, extra_vm=(), per=10):
            f = self.fpos
            d = frags[f]
            tags = [('fr', unit, f, 1)]
            a.wait(vm=list(extra_vm), lg=tags)
            mf0(self.frag_reg(f))
            issue_upto(f + 1 + LA)
            pump(per)
            mf1(self.frag_reg(f))
            pump(per + 8)
            self.fpos += 1

        for op, c in self.slot_update_ops(0):
            op()
        for op, c in self.slot_update_ops(8):
            op()

        for j in range(8):
            step_start(j)
            if j == 0:
                issue_upto(LA)
            for ks in range(4):
                for t in range(4):
                    xs = [(j % 4) * 8 + ks * 2 + qt for qt in range(2)]
                    def mk(qt):
                        def m(fr):
                            acc = V_QACC + (t * 2 + qt) * 16
                            c = "0" if (j == 0 and ks == 0) else vr(acc, 16)
                            a.emit("v_mfma_f32_32x32x16_bf16 %s, %s, %s, %s" %
                                   (vr(acc, 16), vr(fr, 4), ar(A_X + xs[qt] * 4, 4), c))
                        return m
                    ev = [('x', unit, j, ks, qt) for qt in range(2)] if t == 0 else []
                    f = self.fpos
                    nf = f + LA
                    if nf < len(frags) and frags[nf][0] == 'W' and frags[nf][2] == 0 and frags[nf][3] == 0 and nf >= self.fiss:
                        for op, c in self.slot_update_ops(frags[nf][1]):
                            op()
                    consume_pair(mk(0), mk(1), ev)
                if j + 4 < 8:
                    for qt in range(2):
                        fillers.append((lambda j=j, ks=ks, qt=qt: self.x_load(unit, j + 4, ks, qt), 6))
        flush()
        for op, c in self.slot_update_ops(idx_of('V', 0)):
            op()

        a.emit("s_nop 7")
        a.emit("s_nop 7")
        for qt in range(2):
            for t in range(4):
                acc = V_QACC + (t * 2 + qt) * 16
                for i in range(0, 16, 2):
                    a.emit("v_pk_mul_f32 %s, %s, s[%d:%d] op_sel_hi:[1,0]" % (vr(acc + i, 2), vr(acc + i, 2), S_SCALE - 1, S_SCALE))
                for i in range(0, 16, 2):
                    q = V_Q + qt * 32 + (2 * t + i // 8) * 4 + (i % 8) // 2
                    a.emit("v_cvt_pk_bf16_f32 v%d, v%d, v%d" % (q, acc + i, acc + i + 1))

        def A_mfmas(t, first_c_zero=False):
            nb = t & 1
            for s in range(8):
                def mk(qt):
                    def m(fr):
                        sreg = V_S[nb] + qt * 16
                        if s == 0:
                            c = "0" if first_c_zero else vr(V_NEGM + qt * 16, 16)
                        else:
                            c = vr(sreg, 16)
                        a.emit("v_mfma_f32_32x32x16_bf16 %s, %s, %s, %s" %
                               (vr(sreg, 16), vr(fr, 4), vr(V_Q + qt * 32 + s * 4, 4), c))
                    return m
                self.pre_issue_updates()
                consume_pair(mk(0), mk(1))

        def C_mfmas(t):
            pb = t & 1
            for dt in range(4):
                for ks in range(2):
                    def mk(qt):
                        def m(fr):
                            o = A_O + (dt * 2 + qt) * 16
                            c = "0" if (t == 0 and ks == 0) else ar(o, 16)
                            a.emit("v_mfma_f32_32x32x16_bf16 %s, %s, %s, %s" %
                                   (ar(o, 16), vr(fr, 4), vr(V_P[pb] + qt * 8 + ks * 4, 4), c))
                        return m
                    self.pre_issue_updates()
                    consume_pair(mk(0), mk(1))

        self.cur_chunk = {'K': idx_of('K', 0), 'V': idx_of('V', 0)}
        def pre_issue_updates():
            nf = self.fpos + LA
            if nf < len(frags) and nf >= self.fiss:
                d = frags[nf]
                if d[0] in ('K', 'V'):
                    ci = self.frag_chunk(nf)
                    if self.cur_chunk[d[0]] != ci:
                        self.cur_chunk[d[0]] = ci
                        for op, c in self.slot_update_ops(ci):
                            op()
        self.pre_issue_updates = pre_issue_updates

        step_start(8)
        a.emit("s_nop 1")
        A_mfmas(0, first_c_zero=True)
        flush()
        a.emit("s_nop 15")
        a.emit("s_nop 3")
        T0, T1 = V_ET[0], V_ET[1]
        for qt in range(2):
            s = V_S[0] + qt * 16
            a.emit("v_max3_f32 v%d, v%d, v%d, v%d" % (T0, s, s + 1, s + 2))
            for i in range(3, 15, 2):
                a.emit("v_max3_f32 v%d, v%d, v%d, v%d" % (T0, T0, s + i, s + i + 1))
            a.emit("v_max_f32 v%d, v%d, v%d" % (T0, T0, s + 15))
            a.emit("v_mov_b32 v%d, v%d" % (T1, T0))
            a.emit("s_nop 1")
            a.emit("v_permlane32_swap_b32 v%d, v%d" % (T0, T1))
            a.emit("s_nop 1")
            a.emit("v_max_f32 v%d, v%d, v%d" % (T0, T0, T1))
            a.emit("v_sub_f32 v%d, 0, v%d" % (V_NM[qt], T0))
            for i in range(16):
                a.emit("v_mov_b32 v%d, v%d" % (V_NEGM + qt * 16 + i, V_NM[qt]))
            for i in range(16):
                a.emit("v_sub_f32 v%d, v%d, v%d" % (s + i, s + i, T0))
            a.emit("v_mov_b32 v%d, 0" % V_L[qt])
        fillers.extend(self.softmax_ops(0))
        A_mfmas(1)
        flush()
        for qt in range(2):
            a.emit("v_add_f32 v%d, v%d, v%d" % (V_L[qt], V_L[qt], V_TS[qt][0]))
        for T in range(1, 8):
            step_start(8 + T)
            for t in (2 * T - 1, 2 * T):
                fillers.extend(self.softmax_ops(t))
                A_mfmas(t + 1)
                C_mfmas(t - 1)
                flush()
                self.check_ops(t)
        step_start(16)
        fillers.extend(self.softmax_ops(15))
        C_mfmas(14)
        flush()
        self.check_ops(15)
        a.emit("s_nop 1")
        C_mfmas(15)
        flush()

        for j in range(4):
            for ks in range(4):
                for qt in range(2):
                    self.x_load(unit + 1, j, ks, qt, nxt=True)

        a.emit("s_nop 7")
        for qt in range(2):
            a.emit("v_mov_b32 v%d, v%d" % (T0, V_L[qt]))
            a.emit("v_mov_b32 v%d, v%d" % (T1, V_L[qt]))
            a.emit("s_nop 1")
            a.emit("v_permlane32_swap_b32 v%d, v%d" % (T0, T1))
            a.emit("s_nop 1")
            a.emit("v_add_f32 v%d, v%d, v%d" % (T0, T0, T1))
            a.emit("v_rcp_f32 v%d, v%d" % (V_NM[qt], T0))
        a.emit("s_nop 0")
        tb = 64
        k = 0
        for qt in range(2):
            for dt in range(4):
                base = tb + (k % 4) * 24
                k += 1
                o = A_O + (dt * 2 + qt) * 16
                for i in range(16):
                    a.emit("v_accvgpr_read_b32 v%d, a%d" % (base + i, o + i))
                for i in range(16):
                    a.emit("v_mul_f32 v%d, v%d, v%d" % (base + i, base + i, V_NM[qt]))
                for i in range(0, 16, 2):
                    a.emit("v_cvt_pk_bf16_f32 v%d, v%d, v%d" % (base + 16 + i // 2, base + i, base + i + 1))
                for G in range(2):
                    kq = 2 * dt + G
                    so = S_STB if kq < 4 else S_STB2
                    a.vmem("buffer_store_dwordx4 %s, v%d, s[%d:%d], s%d offen offset:%d" %
                           (vr(base + 16 + 4 * G, 4), V_STOFF[qt], S_WS, S_WS + 3, so, (kq % 4) * 1024), None)

    def prologue(self):
        a = self.a
        e = a.emit
        e("s_cmp_ge_u32 s2, 256")
        e("s_cbranch_scc1 L_end")
        e("s_and_b32 s%d, s2, 7" % S_T[0])
        e("s_lshr_b32 s%d, s2, 3" % S_T[1])
        e("s_and_b32 s%d, s%d, 1" % (S_T[2], S_T[0]))
        e("s_load_dwordx16 s[64:79], s[0:1], 0")
        e("s_load_dwordx8 s[80:87], s[0:1], 64")
        e("s_load_dwordx2 s[88:89], s[0:1], 96")
        e("s_lshr_b32 s%d, s%d, 1" % (S_T[3], S_T[0]))
        e("s_and_b32 s%d, s%d, 1" % (S_T[3], S_T[3]))
        e("s_lshl_b32 s%d, s%d, 2" % (S_T[3], S_T[3]))
        e("s_and_b32 s%d, s%d, 3" % (S_T[4], S_T[1]))
        e("s_add_u32 s%d, s%d, s%d" % (S_T[3], S_T[3], S_T[4]))
        e("s_lshr_b32 s%d, s%d, 2" % (S_T[4], S_T[0]))
        e("s_lshl_b32 s%d, s%d, 4" % (S_T[4], S_T[4]))
        e("s_lshr_b32 s%d, s%d, 2" % (S_T[5], S_T[1]))
        e("s_add_u32 s%d, s%d, s%d" % (S_T[4], S_T[4], S_T[5]))
        e("s_waitcnt lgkmcnt(0)")
        e("s_cmp_eq_u32 s%d, 0" % S_T[2])
        for (dst, pa, pb, sz) in ((S_X, 64, 74, 8 * 240 * 512 * 2), (S_K, 66, 76, 8 * 32 * 512 * 128 * 2),
                                  (S_V, 68, 78, 8 * 32 * 512 * 128 * 2), (S_W, 70, 80, 512 * 4096 * 2)):
            e("s_cselect_b32 s%d, s%d, s%d" % (dst, pa, pb))
            e("s_cselect_b32 s%d, s%d, s%d" % (dst + 1, pa + 1, pb + 1))
            e("s_mov_b32 s%d, %d" % (dst + 2, sz))
            e("s_mov_b32 s%d, 0x00020000" % (dst + 3))
        for (dst, src) in ((S_WN, S_W), (S_KN, S_K), (S_XN, S_X)):
            for i in range(4):
                e("s_mov_b32 s%d, s%d" % (dst + i, src + i))
        e("s_mov_b32 s%d, s88" % S_WS)
        e("s_mov_b32 s%d, s89" % (S_WS + 1))
        e("s_mov_b32 s%d, %d" % (S_WS + 2, 2 * 60 * 262144))
        e("s_mov_b32 s%d, 0x00020000" % (S_WS + 3))
        e("s_lshl_b32 s%d, s%d, 5" % (S_T[5], S_T[3]))
        e("s_add_u32 s%d, s%d, s%d" % (S_T[5], S_T[5], S_T[4]))
        e("s_lshl_b32 s%d, s%d, 17" % (S_KVB, S_T[5]))
        e("s_lshl_b32 s%d, s%d, 8" % (S_WCB, S_T[4]))
        e("s_add_u32 s%d, s%d, %d" % (S_KVBN, S_KVB, 8 * 131072))
        e("s_add_u32 s%d, s%d, %d" % (S_WCBN, S_WCB, 8 * 256))
        e("s_mul_i32 s%d, s%d, %d" % (S_STB, S_T[2], 60 * 262144))
        e("s_lshl_b32 s%d, s%d, 13" % (S_T[5], S_T[4]))
        e("s_add_u32 s%d, s%d, s%d" % (S_STB, S_STB, S_T[5]))
        e("s_add_u32 s%d, s%d, 4096" % (S_STB2, S_STB))
        e("s_mov_b32 s%d, 0" % S_UNIT)
        e("s_mov_b32 s%d, 0" % S_PSL)
        e("s_mov_b32 s%d, 0" % S_UB)
        e("s_mov_b32 s%d, 0" % S_KOLD)
        e("s_mov_b32 s%d, 0" % S_VOLD)
        import struct
        c = math.log2(math.e) / math.sqrt(128.0)
        cb = struct.unpack("<I", struct.pack("<f", c))[0]
        e("s_mov_b32 s%d, 0x%08x" % (S_SCALE - 1, cb))
        e("s_mov_b32 s%d, 0x%08x" % (S_SCALE, cb))
        tb = struct.unpack("<I", struct.pack("<f", THR))[0]
        e("v_mov_b32 v%d, 0x%08x" % (V_TMP[2], tb))
        e("v_lshrrev_b32 v%d, 6, v0" % V_T1)
        e("s_nop 0")
        e("v_readfirstlane_b32 s%d, v%d" % (S_T[0], V_T1))
        e("s_lshl_b32 s%d, s%d, 10" % (S_WV1K, S_T[0]))
        e("s_mov_b32 s%d, s%d" % (S_PSW, S_WV1K))
        L = V_TMP[0]
        e("v_and_b32 v%d, 63, v0" % L)
        e("s_mul_i32 s%d, s%d, 240" % (S_T[1], S_T[3]))
        e("s_lshl_b32 s%d, s%d, 6" % (S_T[2], S_T[0]))
        e("s_add_u32 s%d, s%d, s%d" % (S_T[1], S_T[1], S_T[2]))
        e("v_and_b32 v%d, 31, v%d" % (V_T1, L))
        e("v_add_u32 v%d, s%d, v%d" % (V_T1, S_T[1], V_T1))
        e("v_lshrrev_b32 v%d, 5, v%d" % (V_TMP[1], L))
        e("v_lshlrev_b32 v%d, 10, v%d" % (V_XOFF[0], V_T1))
        e("v_lshl_add_u32 v%d, v%d, 4, v%d" % (V_XOFF[0], V_TMP[1], V_XOFF[0]))
        e("v_add_u32 v%d, 32768, v%d" % (V_XOFF[1], V_XOFF[0]))
        for qt in range(2):
            R = V_ET[0]
            e("v_add_u32 v%d, %d, v%d" % (R, 32 * qt, V_T1))
            e("v_lshrrev_b32 v%d, 5, v%d" % (V_ET[1], R))
            e("v_lshlrev_b32 v%d, 18, v%d" % (V_ET[1], V_ET[1]))
            e("v_and_b32 v%d, 31, v%d" % (V_ET[2], R))
            e("v_lshlrev_b32 v%d, 4, v%d" % (V_ET[2], V_ET[2]))
            e("v_lshl_add_u32 v%d, v%d, 9, v%d" % (V_ET[2], V_TMP[1], V_ET[2]))
            e("v_add_u32 v%d, v%d, v%d" % (V_STOFF[qt], V_ET[1], V_ET[2]))
            e("v_and_b32 v%d, 31, v%d" % (V_ET[3], L))
            e("v_add_u32 v%d, s%d, v%d" % (V_ET[3], S_T[2], V_ET[3]))
            e("v_add_u32 v%d, %d, v%d" % (V_ET[3], 32 * qt, V_ET[3]))
            e("v_mov_b32 v%d, 0x7f000000" % V_ET[0])
            e("v_cmp_gt_u32 vcc, 240, v%d" % V_ET[3])
            e("s_nop 1")
            e("v_cndmask_b32 v%d, v%d, v%d, vcc" % (V_STOFF[qt], V_ET[0], V_STOFF[qt]))
        RP, CH = V_ET[0], V_ET[1]
        e("v_lshrrev_b32 v%d, 4, v%d" % (V_ET[2], L))
        e("s_lshl_b32 s%d, s%d, 2" % (S_T[2], S_T[0]))
        e("v_add_u32 v%d, s%d, v%d" % (RP, S_T[2], V_ET[2]))
        e("v_and_b32 v%d, 15, v%d" % (CH, L))
        e("v_lshlrev_b32 v%d, 2, v%d" % (V_ET[3], V_ET[2]))
        e("v_xor_b32 v%d, v%d, v%d" % (V_ET[3], CH, V_ET[3]))
        e("v_lshlrev_b32 v%d, 4, v%d" % (V_ET[3], V_ET[3]))
        e("v_lshl_add_u32 v%d, v%d, 13, v%d" % (V_DW, RP, V_ET[3]))
        e("v_lshl_add_u32 v%d, v%d, 8, v%d" % (V_DV, RP, V_ET[3]))
        e("v_and_b32 v%d, 15, v%d" % (V_ET[3], RP))
        e("v_xor_b32 v%d, v%d, v%d" % (V_ET[3], CH, V_ET[3]))
        e("v_lshlrev_b32 v%d, 4, v%d" % (V_ET[3], V_ET[3]))
        e("v_lshl_add_u32 v%d, v%d, 8, v%d" % (V_DK, RP, V_ET[3]))
        r_, c4 = V_ET[0], V_ET[1]
        e("v_bfe_u32 v%d, v%d, 2, 2" % (r_, L))
        e("v_and_b32 v%d, 3, v%d" % (c4, L))
        e("v_lshl_add_u32 v%d, v%d, 3, v%d" % (V_ET[2], V_TMP[1], r_))
        e("v_lshlrev_b32 v%d, 8, v%d" % (V_ET[2], V_ET[2]))
        e("v_bfe_u32 v%d, v%d, 4, 1" % (V_ET[3], L))
        e("v_lshl_add_u32 v%d, v%d, 5, v%d" % (V_ET[2], V_ET[3], V_ET[2]))
        e("v_and_b32 v%d, 1, v%d" % (V_ET[3], c4))
        e("v_lshl_add_u32 v%d, v%d, 4, v%d" % (V_ET[2], V_ET[3], V_ET[2]))
        e("v_lshrrev_b32 v%d, 1, v%d" % (V_ET[3], c4))
        e("v_lshl_add_u32 v%d, v%d, 3, v%d" % (V_ET[2], V_ET[3], V_ET[2]))
        for t in range(4):
            e("v_xor_b32 v%d, %d, v%d" % (V_ET[3], t, r_))
            e("v_lshl_add_u32 v%d, v%d, 6, v%d" % (V_VW[t], V_ET[3], V_ET[2]))
        key = V_ET[0]
        e("v_and_b32 v%d, 0x13, v%d" % (key, L))
        e("v_bfe_u32 v%d, v%d, 2, 1" % (V_ET[1], L))
        e("v_lshl_add_u32 v%d, v%d, 3, v%d" % (key, V_ET[1], key))
        e("v_bfe_u32 v%d, v%d, 3, 1" % (V_ET[1], L))
        e("v_lshl_add_u32 v%d, v%d, 2, v%d" % (key, V_ET[1], key))
        e("v_and_b32 v%d, 15, v%d" % (V_ET[1], key))
        e("v_xor_b32 v%d, v%d, v%d" % (V_ET[1], V_ET[1], V_TMP[1]))
        for s in range(8):
            e("v_xor_b32 v%d, %d, v%d" % (V_ET[2], 2 * s, V_ET[1]))
            e("v_lshlrev_b32 v%d, 4, v%d" % (V_ET[2], V_ET[2]))
            e("v_lshl_add_u32 v%d, v%d, 8, v%d" % (V_KA[s], key, V_ET[2]))
        for op, c in self.dma_ops(0, 0):
            op()
        for ks in range(4):
            for qt in range(2):
                self.x_load(0, 0, ks, qt)
        for idx in range(1, 9):
            for op, c in self.dma_ops(0, idx):
                op()
            if idx < 4:
                for ks in range(4):
                    for qt in range(2):
                        self.x_load(0, idx, ks, qt)
        a.wait(vm=self.dma_tags(0, 0))
        a.emit("s_barrier")

    def unit_end(self):
        a = self.a
        e = a.emit
        e("s_add_u32 s%d, s%d, 1" % (S_UNIT, S_UNIT))
        e("s_cmp_ge_u32 s%d, 2" % S_UNIT)
        e("s_cbranch_scc1 L_end")
        e("s_mov_b32 s%d, s%d" % (S_KVB, S_KVBN))
        e("s_mov_b32 s%d, s%d" % (S_WCB, S_WCBN))
        e("s_add_u32 s%d, s%d, %d" % (S_STB, S_STB, 8 * 8192))
        e("s_add_u32 s%d, s%d, %d" % (S_STB2, S_STB2, 8 * 8192))
        e("s_mov_b32 s%d, %d" % (S_UB, (24 % NSLOT) * SLOT))
        e("s_mov_b32 s%d, 0" % (S_WN + 2))
        e("s_mov_b32 s%d, 0" % (S_KN + 2))
        e("s_mov_b32 s%d, 0" % (S_XN + 2))
        e("s_branch L_unit")

    def gen(self):
        a = self.a
        self.frags = self.build_frags()
        a.trace = True
        a.reset_sites(0)
        self.prologue()
        base = a.site
        for u in range(2):
            a.reset_sites(base)
            self.unit_body(u)
        a.trace = False
        a.reset_sites(0)
        self.prologue()
        a.label("L_unit")
        self.unit_body(0)
        self.unit_end()
        a.label("L_end")
        a.emit("s_endpgm")
        for t in range(1, 16):
            self.slow_path(t)
```

```python
from asmlib import Asm

NS2 = 5
CK = 256
SLOT2 = CK * 128
RING2 = NS2 * SLOT2
LA2 = 4
NFR2 = 8
NB = 32

V_T1 = 1
V_BOFF = 2
V_DMA = 3
V_AA = [4, 5]
V_ST = 6
V_TMP = [7, 8, 9, 10, 11]
V_FR = 12
V_ACC = 44
V_OUT = 76
V_B = 96

S_WO, S_WS, S_OUT = 4, 8, 12
S_T = [16, 17, 18, 19, 20, 21]
S_PSL, S_PSW, S_WV1K = 22, 23, 24
S_GOFF = 25
S_BOFF = 26
S_CNT = 27
S_CSL = 28
S_DELTA = 29

def vr(b, n):
    return "v[%d:%d]" % (b, b + n - 1)

class K2:
    def __init__(self, a):
        self.a = a

    def dma_ops(self, ci):
        a = self.a
        ops = []
        for i in range(8):
            def op(i=i):
                a.emit("s_add_u32 m0, s%d, %d" % (S_PSW, i * 4096))
                a.emit("s_add_u32 s%d, s%d, %d" % (S_T[0], S_GOFF, i * 32 * 1024))
                a.vmem("buffer_load_dwordx4 v%d, s[%d:%d], s%d offen lds" % (V_DMA, S_WO, S_WO + 3, S_T[0]), ('dma', ci, i))
            ops.append((op, 12))
        def adv():
            a.emit("s_add_u32 s%d, s%d, %d" % (S_GOFF, S_GOFF, CK * 1024))
            a.emit("s_add_u32 s%d, s%d, %d" % (S_PSL, S_PSL, SLOT2))
            a.emit("s_cmp_eq_u32 s%d, %d" % (S_PSL, RING2))
            a.emit("s_cselect_b32 s%d, 0, s%d" % (S_PSL, S_PSL))
            a.emit("s_add_u32 s%d, s%d, s%d" % (S_PSW, S_PSL, S_WV1K))
        ops.append((adv, 8))
        return ops

    def dma_tags(self, ci):
        return [('dma', ci, i) for i in range(8)]

    def b_load(self, s_abs):
        a = self.a
        loc = s_abs % NB
        grp = loc // 4
        a.emit("s_add_u32 s%d, s%d, %d" % (S_T[1], S_BOFF, grp * 4096))
        a.vmem("buffer_load_dwordx4 %s, v%d, s[%d:%d], s%d offen offset:%d" %
               (vr(V_B + loc * 4, 4), V_BOFF, S_WS, S_WS + 3, S_T[1], (loc % 4) * 1024), ('b', s_abs))

    def issue_frag(self, f):
        a = self.a
        s = f // 2
        nn = f % 2
        ks = s % 16
        r = V_FR + (f % NFR2) * 4
        for e2 in range(2):
            a.ds("ds_read_b64_tr_b16 %s, v%d offset:%d" % (vr(r + 2 * e2, 2), V_AA[nn], (16 * ks + 4 * e2) * 128), ('fr', f, e2))

    def slot_adv(self):
        a = self.a
        a.emit("s_mov_b32 s%d, s%d" % (S_DELTA, S_CSL))
        a.emit("s_add_u32 s%d, s%d, %d" % (S_CSL, S_CSL, SLOT2))
        a.emit("s_cmp_eq_u32 s%d, %d" % (S_CSL, RING2))
        a.emit("s_cselect_b32 s%d, 0, s%d" % (S_CSL, S_CSL))
        a.emit("s_sub_u32 s%d, s%d, s%d" % (S_DELTA, S_CSL, S_DELTA))
        for nn in range(2):
            a.emit("v_add_u32 v%d, s%d, v%d" % (V_AA[nn], S_DELTA, V_AA[nn]))

    def body(self, trip):
        a = self.a
        fillers = []
        def pump(b):
            while fillers and b > 0:
                op, c = fillers.pop(0)
                op()
                b -= c
        def flush():
            while fillers:
                op, c = fillers.pop(0)
                op()
        for half in range(2):
            ci = trip * 2 + half
            flush()
            a.wait(vm=self.dma_tags(ci + 1))
            a.emit("s_barrier")
            fillers.extend(self.dma_ops(ci + NS2 - 1))
            for ks in range(16):
                s = ci * 16 + ks
                for nn in range(2):
                    f = 2 * s + nn
                    a.wait(vm=[('b', s)] if nn == 0 else [], lg=[('fr', f, 1)])
                    acc = V_ACC + nn * 16
                    a.emit("v_mfma_f32_32x32x16_bf16 %s, %s, %s, %s" %
                           (vr(acc, 16), vr(V_FR + (f % NFR2) * 4, 4), vr(V_B + (s % NB) * 4, 4), vr(acc, 16)))
                    nf = f + LA2
                    if nf % 32 == 0:
                        self.slot_adv()
                    self.issue_frag(nf)
                    pump(8)
                self.b_load(s + NB)
        flush()
        a.emit("s_add_u32 s%d, s%d, %d" % (S_BOFF, S_BOFF, NB * 1024))

    def prologue(self):
        a = self.a
        e = a.emit
        e("s_cmp_ge_u32 s2, 256")
        e("s_cbranch_scc1 L2_end")
        e("s_load_dwordx2 s[64:65], s[0:1], 32")
        e("s_load_dwordx2 s[66:67], s[0:1], 72")
        e("s_load_dwordx2 s[68:69], s[0:1], 80")
        e("s_load_dwordx2 s[70:71], s[0:1], 96")
        e("s_and_b32 s%d, s2, 7" % S_T[0])
        e("s_lshr_b32 s%d, s2, 3" % S_T[1])
        e("s_lshr_b32 s%d, s%d, 2" % (S_T[2], S_T[0]))
        e("s_and_b32 s%d, s%d, 3" % (S_T[3], S_T[0]))
        e("s_lshl_b32 s%d, s%d, 2" % (S_T[3], S_T[3]))
        e("s_lshr_b32 s%d, s%d, 3" % (S_T[4], S_T[1]))
        e("s_add_u32 s%d, s%d, s%d" % (S_T[3], S_T[3], S_T[4]))
        e("s_and_b32 s%d, s%d, 7" % (S_T[4], S_T[1]))
        e("s_cmp_ge_u32 s%d, 15" % S_T[3])
        e("s_cbranch_scc1 L2_end")
        e("s_waitcnt lgkmcnt(0)")
        e("s_cmp_eq_u32 s%d, 0" % S_T[2])
        e("s_cselect_b32 s%d, s64, s66" % S_WO)
        e("s_cselect_b32 s%d, s65, s67" % (S_WO + 1))
        e("s_mov_b32 s%d, %d" % (S_WO + 2, 4096 * 512 * 2))
        e("s_mov_b32 s%d, 0x00020000" % (S_WO + 3))
        e("s_mov_b32 s%d, s70" % S_WS)
        e("s_mov_b32 s%d, s71" % (S_WS + 1))
        e("s_mov_b32 s%d, %d" % (S_WS + 2, 2 * 60 * 262144))
        e("s_mov_b32 s%d, 0x00020000" % (S_WS + 3))
        e("s_mov_b32 s%d, s68" % S_OUT)
        e("s_mov_b32 s%d, s69" % (S_OUT + 1))
        e("s_mov_b32 s%d, %d" % (S_OUT + 2, 1920 * 1024 * 2))
        e("s_mov_b32 s%d, 0x00020000" % (S_OUT + 3))
        e("v_lshrrev_b32 v%d, 6, v0" % V_T1)
        e("s_nop 0")
        e("v_readfirstlane_b32 s%d, v%d" % (S_T[5], V_T1))
        e("s_lshl_b32 s%d, s%d, 10" % (S_WV1K, S_T[5]))
        e("s_mov_b32 s%d, s%d" % (S_PSW, S_WV1K))
        e("s_mov_b32 s%d, 0" % S_PSL)
        e("s_mov_b32 s%d, 0" % S_CSL)
        e("s_lshl_b32 s%d, s%d, 7" % (S_GOFF, S_T[4]))
        L = V_TMP[0]
        HH = V_TMP[1]
        e("v_and_b32 v%d, 63, v0" % L)
        e("v_lshrrev_b32 v%d, 5, v%d" % (HH, L))
        e("s_mul_i32 s%d, s%d, 60" % (S_CNT, S_T[2]))
        e("s_lshl_b32 s%d, s%d, 2" % (S_T[0], S_T[3]))
        e("s_add_u32 s%d, s%d, s%d" % (S_T[0], S_T[0], S_T[5]))
        e("s_add_u32 s%d, s%d, s%d" % (S_CNT, S_CNT, S_T[0]))
        e("s_lshl_b32 s%d, s%d, 18" % (S_BOFF, S_CNT))
        e("v_lshlrev_b32 v%d, 4, v%d" % (V_BOFF, L))
        e("s_lshl_b32 s%d, s%d, 5" % (S_T[0], S_T[0]))
        e("v_and_b32 v%d, 31, v%d" % (V_T1, L))
        e("v_add_u32 v%d, s%d, v%d" % (V_T1, S_T[0], V_T1))
        e("v_lshlrev_b32 v%d, 11, v%d" % (V_ST, V_T1))
        e("v_lshl_add_u32 v%d, v%d, 4, v%d" % (V_ST, HH, V_ST))
        e("s_lshl_b32 s%d, s%d, 10" % (S_T[0], S_T[2]))
        e("s_add_u32 s%d, s%d, s%d" % (S_T[0], S_T[0], S_GOFF))
        e("v_add_u32 v%d, s%d, v%d" % (V_ST, S_T[0], V_ST))
        e("v_lshrrev_b32 v%d, 3, v%d" % (V_TMP[2], L))
        e("s_lshl_b32 s%d, s%d, 3" % (S_T[0], S_T[5]))
        e("v_add_u32 v%d, s%d, v%d" % (V_TMP[2], S_T[0], V_TMP[2]))
        e("v_bfe_u32 v%d, v%d, 4, 1" % (V_TMP[3], L))
        e("v_lshlrev_b32 v%d, 2, v%d" % (V_TMP[3], V_TMP[3]))
        e("v_and_b32 v%d, 7, v%d" % (V_TMP[4], L))
        e("v_xor_b32 v%d, v%d, v%d" % (V_TMP[3], V_TMP[3], V_TMP[4]))
        e("v_lshlrev_b32 v%d, 4, v%d" % (V_TMP[3], V_TMP[3]))
        e("v_lshl_add_u32 v%d, v%d, 10, v%d" % (V_DMA, V_TMP[2], V_TMP[3]))
        r_, t2, t3 = V_TMP[2], V_TMP[3], V_TMP[4]
        e("v_bfe_u32 v%d, v%d, 2, 2" % (r_, L))
        e("v_lshl_add_u32 v%d, v%d, 3, v%d" % (t2, HH, r_))
        e("v_lshlrev_b32 v%d, 7, v%d" % (t2, t2))
        e("v_bfe_u32 v%d, v%d, 4, 1" % (t3, L))
        e("v_lshl_add_u32 v%d, v%d, 5, v%d" % (t2, t3, t2))
        e("v_and_b32 v%d, 1, v%d" % (t3, L))
        e("v_lshl_add_u32 v%d, v%d, 4, v%d" % (t2, t3, t2))
        e("v_bfe_u32 v%d, v%d, 1, 1" % (t3, L))
        e("v_lshl_add_u32 v%d, v%d, 3, v%d" % (t2, t3, t2))
        e("v_lshrrev_b32 v%d, 1, v%d" % (r_, r_))
        for nn in range(2):
            e("v_xor_b32 v%d, %d, v%d" % (t3, nn, r_))
            e("v_lshl_add_u32 v%d, v%d, 6, v%d" % (V_AA[nn], t3, t2))
        for i in range(32):
            e("v_mov_b32 v%d, 0" % (V_ACC + i))
        for op, c in self.dma_ops(0):
            op()
        for s in range(NB):
            self.b_load(s)
            if s % 8 == 7 and s // 8 + 1 < NS2 - 1:
                for op, c in self.dma_ops(s // 8 + 1):
                    op()
        e("s_add_u32 s%d, s%d, %d" % (S_BOFF, S_BOFF, NB * 1024))
        a.wait(vm=self.dma_tags(0))
        e("s_barrier")
        for f in range(LA2):
            self.issue_frag(f)
        e("s_mov_b32 s%d, 0" % S_CNT)

    def epilogue(self):
        a = self.a
        e = a.emit
        e("s_nop 15")
        e("s_nop 3")
        for nn in range(2):
            for i in range(0, 16, 2):
                e("v_cvt_pk_bf16_f32 v%d, v%d, v%d" % (V_OUT + nn * 8 + i // 2, V_ACC + nn * 16 + i, V_ACC + nn * 16 + i + 1))
            for G in range(2):
                a.vmem("buffer_store_dwordx4 %s, v%d, s[%d:%d], 0 offen offset:%d" %
                       (vr(V_OUT + nn * 8 + 4 * G, 4), V_ST, S_OUT, S_OUT + 3, nn * 64 + G * 32), None)

    def gen(self):
        a = self.a
        a.trace = True
        a.reset_sites(0)
        self.prologue()
        base = a.site
        for trip in range(8):
            a.reset_sites(base)
            self.body(trip)
        a.trace = False
        a.reset_sites(0)
        self.prologue()
        a.label("L2_loop")
        self.body(0)
        a.emit("s_add_u32 s%d, s%d, 1" % (S_CNT, S_CNT))
        a.emit("s_cmp_lt_u32 s%d, 8" % S_CNT)
        a.emit("s_cbranch_scc1 L2_loop")
        self.epilogue()
        a.label("L2_end")
        a.emit("s_endpgm")
```

```python
import sys
from asmlib import Asm
from k1 import K1
from k2 import K2
NAME = "concat_heads__mha_block_cached__gqa_block_cached__near_ridge"
hdr = open("cdna_kernels/%s.s.ref" % NAME).read().split("; Override launch")[0]
out = [hdr]
out.append("; @launch kernel=attn1_kernel grid=(256,1,1) block=(256,1,1) lds=163840\n")
out.append("; @launch kernel=oproj_kernel grid=(256,1,1) block=(256,1,1) lds=163840\n")
out.append('.amdgcn_target "amdgcn-amd-amdhsa--gfx950"\n.text\n')
a1 = Asm(); K1(a1).gen()
out.append(".globl attn1_kernel\n.p2align 8\n.type attn1_kernel,@function\nattn1_kernel:\n")
out.append(a1.text())
a2 = Asm(); K2(a2).gen()
out.append(".globl oproj_kernel\n.p2align 8\n.type oproj_kernel,@function\noproj_kernel:\n")
out.append(a2.text())
out.append('''.section .rodata,"a"
.p2align 6
.amdhsa_kernel attn1_kernel
  .amdhsa_next_free_vgpr 512
  .amdhsa_next_free_sgpr 96
  .amdhsa_accum_offset 256
  .amdhsa_group_segment_fixed_size 0
  .amdhsa_kernarg_size 104
  .amdhsa_user_sgpr_count 2
  .amdhsa_user_sgpr_kernarg_segment_ptr 1
  .amdhsa_system_sgpr_workgroup_id_x 1
.end_amdhsa_kernel
.p2align 6
.amdhsa_kernel oproj_kernel
  .amdhsa_next_free_vgpr 256
  .amdhsa_next_free_sgpr 96
  .amdhsa_accum_offset 256
  .amdhsa_group_segment_fixed_size 0
  .amdhsa_kernarg_size 104
  .amdhsa_user_sgpr_count 2
  .amdhsa_user_sgpr_kernarg_segment_ptr 1
  .amdhsa_system_sgpr_workgroup_id_x 1
.end_amdhsa_kernel
''')
dst = sys.argv[1] if len(sys.argv) > 1 else "cdna_kernels/%s.s" % NAME
open(dst, "w").write("".join(out))
print("wrote", dst, sum(len(x) for x in out))
```

```python
class Asm:
    def __init__(self):
        self.lines = []
        self.trace = True
        self.vm = []
        self.lg = []
        self.vmi = {}
        self.lgi = {}
        self.site = 0
        self.site_vm = {}
        self.site_lg = {}
        self.uniq = 0
        self.dry = False
        self.cls = 0

    def new_trace(self, cls):
        self.trace = True
        self.cls = cls
        self.vm = []; self.lg = []; self.vmi = {}; self.lgi = {}
        self.site = 0

    def cond(self, cls, fn, sreg):
        if self.trace:
            if self.cls == cls:
                fn()
            else:
                self.dry = True
                fn()
                self.dry = False
        else:
            self.uniq += 1
            lab = "L_c%d" % self.uniq
            self.lines.append("    s_cmp_eq_u32 s%d, %d" % (sreg, cls))
            self.lines.append("    s_cbranch_scc0 %s" % lab)
            fn()
            self.lines.append(lab + ":")

    def reset_sites(self, base):
        self.site = base

    def emit(self, s):
        if not self.trace:
            self.lines.append("    " + s)

    def label(self, s):
        if not self.trace:
            self.lines.append(s + ":")

    def comment(self, s):
        if not self.trace:
            self.lines.append("    ; " + s)

    def vmem(self, s, tag=None):
        if self.dry:
            return
        if self.trace:
            self.vm.append(tag)
            if tag is not None:
                self.vmi[tag] = len(self.vm) - 1
        else:
            self.lines.append("    " + s)

    def ds(self, s, tag=None):
        if self.dry:
            return
        if self.trace:
            self.lg.append(tag)
            if tag is not None:
                self.lgi[tag] = len(self.lg) - 1
        else:
            self.lines.append("    " + s)

    def wait(self, vm=(), lg=()):
        site = self.site
        self.site += 1
        if self.dry:
            return
        if self.trace:
            if vm:
                idx = max(self.vmi[t] for t in vm)
                n = len(self.vm) - 1 - idx
                self.site_vm[site] = min(self.site_vm.get(site, 63), n, 63)
            if lg:
                idx = max(self.lgi[t] for t in lg)
                n = len(self.lg) - 1 - idx
                self.site_lg[site] = min(self.site_lg.get(site, 15), n, 15)
        else:
            parts = []
            if site in self.site_vm:
                parts.append("vmcnt(%d)" % min(self.site_vm[site], 62))
            if site in self.site_lg:
                parts.append("lgkmcnt(%d)" % min(self.site_lg[site], 14))
            if parts:
                self.lines.append("    s_waitcnt " + " ".join(parts))

    def text(self):
        return "\n".join(self.lines) + "\n"
```

```python
from asmlib import Asm
import math, struct, os
EXP = os.environ.get('EXP', '')

SLOT = 16384
NSLOT = 10
XSCR = 8 * SLOT
LA = 5
NFR = 7
THR = 256.0

V_T1 = 1
V_XOFF = 2
V_XW = [3, 4]
V_STOFF = 5
V_DW, V_DV, V_DK = 6, 7, 8
V_L = [9, 12]
V_RC = 10
V_NM = 13
V_TS = [14, 15]
V_ET = [16, 17, 18, 19]
V_VW = [20, 21, 22, 23]
V_KA = [24 + i for i in range(8)]
V_FR = 32
V_XR = [60, 61, 62, 63]
V_THR = 60
V_STMP = 61
V_EP = 62
V_QACC = 64
V_S = [64, 80]
V_P = [96, 104]
V_NEGM = 112
V_Q = 128
A_O = 0
A_XF = 64

S_X, S_W, S_K, S_V, S_WS = 4, 8, 12, 16, 20
S_KVB = [26, 28]
S_WCB = [27, 29]
S_T = [34, 35, 36, 37, 38, 39]
S_SCALE = 40
S_WV1K = 42
S_STB = [43, 44, 45, 46]
S_XSO = [52, 53, 54, 55]
S_CLS = 47
SHIFT = int(os.environ.get('SHIFT', '8'))

def vr(b, n):
    return "v[%d:%d]" % (b, b + n - 1)
def ar(b, n):
    return "a[%d:%d]" % (b, b + n - 1)

class K1:
    def __init__(self, a, stamps=False):
        self.a = a
        self.stamps = stamps
        self.plan()

    def plan(self):
        steps = []
        for j in range(8):
            steps.append([('W', 0, j), ('W', 1, j)])
        for T in range(17):
            st = []
            if T < 16:
                st.append(('K', T // 8, T % 8))
            if T >= 1:
                st.append(('V', (T - 1) // 8, (T - 1) % 8))
            steps.append(st)
        self.steps = steps
        seq = [c for st in steps for c in st]
        self.seq = seq
        cons_step = {}
        for si, st in enumerate(steps):
            for c in st:
                cons_step[c] = si
        self.cons_step = cons_step
        free_at = {s: -1 for s in range(8)}
        free_at[8] = 8
        free_at[9] = 8
        self.slot = {}
        self.issue_step = {}
        for c in seq:
            s = min(free_at, key=lambda k: (free_at[k], k))
            self.slot[c] = s
            self.issue_step[c] = free_at[s]
            free_at[s] = cons_step[c] + 1
            assert self.issue_step[c] <= cons_step[c] - 2 or self.issue_step[c] == -1, (c, self.issue_step[c], cons_step[c])
        self.issue_at = {}
        for c in seq:
            self.issue_at.setdefault(self.issue_step[c], []).append(c)

    def stamp(self):
        if not self.stamps:
            return
        a = self.a
        a.emit("s_memtime s[60:61]")
        a.emit("s_waitcnt lgkmcnt(0)")
        a.emit("v_mov_b32 v%d, s60" % V_T1)
        a.emit("v_cmp_eq_u32 vcc, s62, v0")
        a.emit("s_nop 1")
        a.emit("v_cndmask_b32 v%d, v%d, v%d, vcc" % (V_STMP2, V_STMP2, V_T1))
        a.emit("s_add_u32 s62, s62, 1")

    def dma_ops(self, c):
        a = self.a
        kind, u, j = c
        ops = []
        for i in range(2):
            def op(i=i):
                if kind == 'W':
                    srd, base, goff, vo = S_W, S_WCB[u], j * 524288 + i * 262144, V_DW
                elif kind == 'K':
                    srd, base, goff, vo = S_K, S_KVB[u], j * 16384 + i * 8192, V_DK
                else:
                    srd, base, goff, vo = S_V, S_KVB[u], j * 16384 + i * 8192, V_DV
                a.emit("s_add_u32 m0, s%d, %d" % (S_WV1K, self.slot[c] * SLOT + i * 8192))
                a.emit("s_add_u32 s%d, s%d, %d" % (S_T[0], base, goff))
                a.vmem("buffer_load_dwordx4 v%d, s[%d:%d], s%d offen lds" % (vo, srd, srd + 3, S_T[0]), ('dma', c, i))
            ops.append((op, 4))
        return ops

    def dma_tags(self, c):
        return [('dma', c, i) for i in range(2)]

    def addr_update(self, c):
        a = self.a
        kind = c[0]
        key = 'K' if kind == 'K' else 'VW'
        new = self.slot[c] * SLOT
        d = new - self.cur_base[key]
        self.cur_base[key] = new
        if d == 0:
            return
        for r in (V_KA if kind == 'K' else V_VW):
            a.emit("v_add_u32 v%d, 0x%x, v%d" % (r, d & 0xffffffff, r))

    def xraw_reg(self, j, i):
        return vr(V_Q + (j % 2) * 16 + i * 4, 4)

    def x_raw_load(self, j, i):
        a = self.a
        a.vmem("buffer_load_dwordx4 %s, v%d, s[%d:%d], s%d offen offset:%d" %
               (self.xraw_reg(j, i), V_XOFF, S_X, S_X + 3, S_XSO[i], j * 128), ('xr', j, i))

    def x_write(self, j, i):
        a = self.a
        if 'noxvm' not in EXP:
            a.wait(vm=[('xr', j, i)])
        if 'noxw' in EXP:
            return
        a.ds("ds_write_b128 v%d, %s offset:%d" % (V_XW[i % 2], self.xraw_reg(j, i), i * 1024), ('xw', j, i))

    def x_read(self, j, ks):
        a = self.a
        if 'noxr' in EXP and j > 0:
            a.lgi[('xf', j, ks)] = a.lgi.get(('xf', 0, 0), 0)
            return
        a.ds("ds_read_b128 %s, v%d" % (ar(A_XF + (j % 2) * 16 + ks * 4, 4), V_XR[ks]), ('xf', j, ks))

    def build_frags(self):
        fr = []
        for j in range(8):
            for ks in range(4):
                for u in range(2):
                    for t in range(4):
                        fr.append(('W', u, j, ks, t))
        def ktile(g):
            for s in range(8):
                fr.append(('K', g, s))
        def vtile(g):
            for dt in range(4):
                for ks in range(2):
                    fr.append(('V', g, dt, ks))
        self.order = []
        ktile(0)
        ktile(1)
        for g in range(1, 31):
            if g == 16:
                vtile(15)
                ktile(17)
            else:
                ktile(g + 1)
                vtile(g - 1)
        vtile(30)
        vtile(31)
        return fr

    def frag_reg(self, f):
        return V_FR + (f % NFR) * 4

    def frag_chunk(self, f):
        d = self.frags[f]
        if d[0] == 'W':
            return ('W', d[1], d[2])
        g = d[1]
        return (d[0], g // 16, (g % 16) // 2)

    def issue_frag(self, f):
        a = self.a
        d = self.frags[f]
        r = self.frag_reg(f)
        c = self.frag_chunk(f)
        if d[0] == 'W':
            _, u, j, ks, t = d
            base = self.slot[c] * SLOT - self.cur_base['VW']
            off = base + (16 * ks) * 256
            if off < 0 or off + 1024 + 8 > 65535:
                self.addr_update(c)
                off = (16 * ks) * 256
            for e2 in range(2):
                a.ds("ds_read_b64_tr_b16 %s, v%d offset:%d" % (vr(r + 2 * e2, 2), V_VW[t], off + 1024 * e2), ('fr', f, e2))
        elif d[0] == 'V':
            _, g, dt, ks = d
            base = self.slot[c] * SLOT - self.cur_base['VW']
            off = base + (32 * (g & 1) + 16 * ks) * 256
            if off < 0 or off + 1024 + 8 > 65535:
                self.addr_update(c)
                off = (32 * (g & 1) + 16 * ks) * 256
            for e2 in range(2):
                a.ds("ds_read_b64_tr_b16 %s, v%d offset:%d" % (vr(r + 2 * e2, 2), V_VW[dt], off + 1024 * e2), ('fr', f, e2))
        else:
            _, g, s = d
            base = self.slot[c] * SLOT - self.cur_base['K']
            off = base + (g & 1) * 8192
            if off < 0 or off + 16 > 65535:
                self.addr_update(c)
                off = (g & 1) * 8192
            a.ds("ds_read_b128 %s, v%d offset:%d" % (vr(r, 4), V_KA[s], off), ('fr', f, 1))

    def softmax_ops(self, g):
        a = self.a
        cb = g & 1
        ops = []
        def E(p):
            ta, tb = V_ET[2 * (p & 1)], V_ET[2 * (p & 1) + 1]
            s0 = V_S[cb] + 2 * p
            ops.append((lambda: a.emit("v_exp_f32 v%d, v%d" % (ta, s0)), 8))
            ops.append((lambda: a.emit("v_exp_f32 v%d, v%d" % (tb, s0 + 1)), 8))
        def R(p):
            ta, tb = V_ET[2 * (p & 1)], V_ET[2 * (p & 1) + 1]
            if p == 0:
                ops.append((lambda: a.emit("v_mov_b32 v%d, v%d" % (V_TS[0], ta)), 4))
                ops.append((lambda: a.emit("v_mov_b32 v%d, v%d" % (V_TS[1], tb)), 4))
            else:
                ops.append((lambda: a.emit("v_add_f32 v%d, v%d, v%d" % (V_TS[0], V_TS[0], ta)), 4))
                ops.append((lambda: a.emit("v_add_f32 v%d, v%d, v%d" % (V_TS[1], V_TS[1], tb)), 4))
            pr = V_P[cb] + p
            ops.append((lambda: a.emit("v_cvt_pk_bf16_f32 v%d, v%d, v%d" % (pr, ta, tb)), 4))
        E(0)
        for p in range(1, 8):
            E(p)
            R(p - 1)
        ops.append((lambda: a.emit("s_nop 0"), 4))
        R(7)
        ops.append((lambda: a.emit("v_add_f32 v%d, v%d, v%d" % (V_TS[0], V_TS[0], V_TS[1])), 4))
        return ops

    def check_ops(self, g):
        a = self.a
        u = g // 16
        if g % 16 == 0:
            a.emit("v_mov_b32 v%d, v%d" % (V_L[u], V_TS[0]))
            return
        a.emit("v_cmp_nle_f32 vcc, v%d, v%d" % (V_TS[0], V_THR))
        a.emit("s_cbranch_vccnz L_slow%d" % g)
        a.label("L_back%d" % g)
        a.emit("v_add_f32 v%d, v%d, v%d" % (V_L[u], V_L[u], V_TS[0]))

    def rowmax_ops(self, s, T0, T1):
        a = self.a
        ops = []
        ops.append((lambda: a.emit("v_max3_f32 v%d, v%d, v%d, v%d" % (T0, s, s + 1, s + 2)), 4))
        for i in range(3, 15, 2):
            ops.append((lambda i=i: a.emit("v_max3_f32 v%d, v%d, v%d, v%d" % (T0, T0, s + i, s + i + 1)), 4))
        ops.append((lambda: a.emit("v_max_f32 v%d, v%d, v%d" % (T0, T0, s + 15)), 4))
        def sw():
            a.emit("v_mov_b32 v%d, v%d" % (T1, T0))
            a.emit("s_nop 1")
            a.emit("v_permlane32_swap_b32 v%d, v%d" % (T0, T1))
            a.emit("s_nop 1")
        ops.append((sw, 16))
        return ops

    def init_ops(self, g):
        a = self.a
        s = V_S[g & 1]
        T0, T1 = V_ET[0], V_ET[1]
        ops = self.rowmax_ops(s, T0, T1)
        ops.append((lambda: a.emit("v_max_f32 v%d, v%d, v%d" % (T0, T0, T1)), 4))
        ops.append((lambda: a.emit("v_sub_f32 v%d, 0, v%d" % (V_NM, T0)), 4))
        for i in range(16):
            ops.append((lambda i=i: a.emit("v_mov_b32 v%d, v%d" % (V_NEGM + i, V_NM)), 4))
        for i in range(16):
            ops.append((lambda i=i: a.emit("v_add_f32 v%d, v%d, v%d" % (s + i, s + i, V_NM)), 4))
        return ops

    def slow_path(self, g):
        a = self.a
        u = g // 16
        cb = g & 1
        nb = cb ^ 1
        a.label("L_slow%d" % g)
        a.emit("s_nop 15")
        a.emit("s_nop 15")
        T0, T1 = V_ET[0], V_ET[1]
        s = V_S[cb]
        for op, c in self.rowmax_ops(s, T0, T1):
            op()
        a.emit("v_max3_f32 v%d, v%d, v%d, 0" % (T0, T0, T1))
        a.emit("v_exp_f32 v%d, -v%d" % (T1, T0))
        if g % 16 != 15:
            a.emit("v_sub_f32 v%d, v%d, v%d" % (V_NM, V_NM, T0))
            for i in range(16):
                a.emit("v_mov_b32 v%d, v%d" % (V_NEGM + i, V_NM))
            for i in range(16):
                r = V_S[nb] + i
                a.emit("v_sub_f32 v%d, v%d, v%d" % (r, r, T0))
        a.emit("v_mul_f32 v%d, v%d, v%d" % (V_L[u], V_L[u], T1))
        for i in range(64):
            r = A_O + i
            a.emit("v_accvgpr_read_b32 v%d, a%d" % (V_ET[2], r))
            a.emit("v_mul_f32 v%d, v%d, v%d" % (V_ET[3], V_ET[2], T1))
            a.emit("v_accvgpr_write_b32 a%d, v%d" % (r, V_ET[3]))
        a.emit("v_mov_b32 v%d, 0" % V_TS[0])
        for p in range(8):
            a.emit("v_sub_f32 v%d, v%d, v%d" % (V_ET[2], s + 2 * p, T0))
            a.emit("v_sub_f32 v%d, v%d, v%d" % (V_ET[3], s + 2 * p + 1, T0))
            a.emit("v_exp_f32 v%d, v%d" % (V_ET[2], V_ET[2]))
            a.emit("v_exp_f32 v%d, v%d" % (V_ET[3], V_ET[3]))
            a.emit("s_nop 0")
            a.emit("v_add_f32 v%d, v%d, v%d" % (V_TS[0], V_TS[0], V_ET[2]))
            a.emit("v_add_f32 v%d, v%d, v%d" % (V_TS[0], V_TS[0], V_ET[3]))
            a.emit("v_cvt_pk_bf16_f32 v%d, v%d, v%d" % (V_P[cb] + p, V_ET[2], V_ET[3]))
        a.emit("s_nop 3")
        a.emit("s_branch L_back%d" % g)

    def epilogue_ops(self, u, tmp):
        a = self.a
        ops = []
        T0, T1 = V_RC, 63
        def pre():
            a.emit("v_mov_b32 v%d, v%d" % (T0, V_L[u]))
            a.emit("v_mov_b32 v%d, v%d" % (T1, V_L[u]))
            a.emit("s_nop 1")
            a.emit("v_permlane32_swap_b32 v%d, v%d" % (T0, T1))
            a.emit("s_nop 1")
            a.emit("v_add_f32 v%d, v%d, v%d" % (T0, T0, T1))
            a.emit("v_rcp_f32 v%d, v%d" % (T0, T0))
            a.emit("s_nop 0")
        ops.append((pre, 30))
        k = 0
        for dt in range(4):
            for G in range(2):
                base = tmp[k % len(tmp)]
                k += 1
                o = A_O + dt * 16 + 8 * G
                for i in range(8):
                    ops.append((lambda base=base, i=i, o=o: a.emit("v_accvgpr_read_b32 v%d, a%d" % (base + i, o + i)), 4))
                for i in range(8):
                    ops.append((lambda base=base, i=i: a.emit("v_mul_f32 v%d, v%d, v%d" % (base + i, base + i, T0)), 4))
                for i in range(0, 8, 2):
                    ops.append((lambda base=base, i=i: a.emit("v_cvt_pk_bf16_f32 v%d, v%d, v%d" % (base + 8 + i // 2, base + i, base + i + 1)), 4))
                kq = 2 * dt + G
                so = S_STB[u * 2 + (kq // 4)]
                ops.append((lambda base=base, so=so, kq=kq: a.vmem(
                    "buffer_store_dwordx4 %s, v%d, s[%d:%d], s%d offen offset:%d" %
                    (vr(base + 8, 4), V_STOFF, S_WS, S_WS + 3, so, (kq % 4) * 1024), None), 4))
        return ops

    def body(self):
        a = self.a
        frags = self.frags
        self.fpos = 0
        self.fiss = 0
        fillers = []
        timed = {}

        def time_ops(ops, span):
            n = len(ops)
            for cls in range(2):
                for k, (op, c) in enumerate(ops):
                    pos = self.fpos + cls * (span // 2) + 1 + (k * (span // 2 - 1)) // n
                    timed.setdefault(pos, []).append((cls, op))

        def pump(budget):
            while fillers and budget > 0:
                op, c = fillers.pop(0)
                op()
                budget -= c

        def flush():
            while fillers:
                op, c = fillers.pop(0)
                op()

        def issue_upto(n):
            while self.fiss < min(n, len(frags)):
                self.issue_frag(self.fiss)
                self.fiss += 1

        def step_start(si, front=False):
            need = []
            if si + 1 < len(self.steps):
                for c in self.steps[si + 1]:
                    need += self.dma_tags(c)
            if need:
                a.wait(vm=need)
            a.emit("s_barrier")
            if si in (0, 8, 9, 16, 17, 24) or 'allst' in EXP:
                self.stamp()
            ops = []
            for c in self.issue_at.get(si, []):
                ops.extend(self.dma_ops(c))
            return ops

        def consume(mf, extra_lg=(), per=14):
            f = self.fpos
            a.wait(lg=[('fr', f, 1)] + list(extra_lg))
            mf(self.frag_reg(f))
            issue_upto(f + 1 + LA)
            for cls, fn in timed.pop(f, []):
                a.cond(cls, fn, S_CLS)
            pump(per)
            self.fpos += 1

        for i in range(4):
            self.x_write(0, i)
        for ks in range(4):
            self.x_read(0, ks)
        for j in range(8):
            dma = step_start(j)
            if j == 0:
                issue_upto(LA)
                dma = self.late_prologue + dma
            mi = 0
            sched = {}
            for cls in range(2):
                sh = cls * SHIFT
                if j + 2 < 8:
                    for i in range(4):
                        sched.setdefault(1 + 2 * i + sh, []).append((cls, lambda i=i: self.x_raw_load(j + 2, i)))
                for k, (op, c) in enumerate(dma):
                    sched.setdefault(min(9 + 2 * k + sh, 31), []).append((cls, op))
                if j + 1 < 8:
                    for i in range(4):
                        sched.setdefault(2 + 4 * i + sh, []).append((cls, lambda i=i: self.x_write(j + 1, i)))
                    for k in range(4):
                        sched.setdefault(17 + k + sh, []).append((cls, lambda k=k: self.x_read(j + 1, k)))
            for ks in range(4):
                for u in range(2):
                    for t in range(4):
                        def m(fr):
                            if u == 0:
                                acc = vr(V_QACC + t * 16, 16)
                            else:
                                acc = ar(A_O + t * 16, 16)
                            c = "0" if (j == 0 and ks == 0) else acc
                            a.emit("v_mfma_f32_32x32x16_bf16 %s, %s, %s, %s" %
                                   (acc, vr(fr, 4), ar(A_XF + (j % 2) * 16 + ks * 4, 4), c))
                        consume(m, [('xf', j, ks)] if (t == 0 and u == 0) else [])
                        for cls, fn in sched.get(mi, []):
                            a.cond(cls, fn, S_CLS)
                        mi += 1
            flush()

        a.emit("s_nop 7")
        a.emit("s_nop 7")
        tb = struct.unpack("<I", struct.pack("<f", THR))[0]
        a.emit("v_mov_b32 v%d, 0x%08x" % (V_THR, tb))
        for t in range(4):
            acc = V_QACC + t * 16
            for i in range(0, 16, 2):
                a.emit("v_pk_mul_f32 %s, %s, s[%d:%d]" % (vr(acc + i, 2), vr(acc + i, 2), S_SCALE, S_SCALE + 1))
            for i in range(0, 16, 2):
                q = V_Q + (2 * t + i // 8) * 4 + (i % 8) // 2
                a.emit("v_cvt_pk_bf16_f32 v%d, v%d, v%d" % (q, acc + i, acc + i + 1))
        conv1 = []
        CT = [V_P[1], V_P[1] + 2, V_P[1] + 4, V_P[1] + 6]
        k = 0
        for t in range(4):
            for i in range(0, 16, 2):
                tt = CT[k % 4]
                k += 1
                o = A_O + t * 16 + i
                q = A_XF + (2 * t + i // 8) * 4 + (i % 8) // 2
                def cv(tt=tt, o=o, q=q):
                    a.emit("v_accvgpr_read_b32 v%d, a%d" % (tt, o))
                    a.emit("v_accvgpr_read_b32 v%d, a%d" % (tt + 1, o + 1))
                    a.emit("v_mul_f32 v%d, s%d, v%d" % (tt, S_SCALE, tt))
                    a.emit("v_mul_f32 v%d, s%d, v%d" % (tt + 1, S_SCALE, tt + 1))
                    a.emit("v_cvt_pk_bf16_f32 v%d, v%d, v%d" % (tt, tt, tt + 1))
                    a.emit("v_accvgpr_write_b32 a%d, v%d" % (q, tt))
                conv1.append((cv, 24))

        def A_mfmas(g, per=14):
            nb = g & 1
            u = g // 16
            for s in range(8):
                def m(fr):
                    sreg = V_S[nb]
                    if s == 0:
                        c = "0" if g % 16 == 0 else vr(V_NEGM, 16)
                    else:
                        c = vr(sreg, 16)
                    q = vr(V_Q + s * 4, 4) if u == 0 else ar(A_XF + s * 4, 4)
                    a.emit("v_mfma_f32_32x32x16_bf16 %s, %s, %s, %s" % (vr(sreg, 16), vr(fr, 4), q, c))
                consume(m, per=per)

        def C_mfmas(g, per=14):
            pb = g & 1
            for dt in range(4):
                for ks in range(2):
                    def m(fr):
                        o = A_O + dt * 16
                        c = "0" if (g % 16 == 0 and ks == 0) else ar(o, 16)
                        a.emit("v_mfma_f32_32x32x16_bf16 %s, %s, %s, %s" %
                               (ar(o, 16), vr(fr, 4), vr(V_P[pb] + ks * 4, 4), c))
                    consume(m, per=per)

        time_ops(step_start(8), 16)
        fillers.extend(conv1[:16])
        a.emit("s_nop 1")
        A_mfmas(0, per=24)
        flush()
        a.emit("s_nop 7")
        for op, c in self.init_ops(0):
            op()
        fillers.extend(self.softmax_ops(0))
        fillers.extend(conv1[16:])
        A_mfmas(1, per=40)
        flush()
        self.check_ops(0)
        for T in range(1, 16):
            time_ops(step_start(8 + T), 32)
            for g in (2 * T - 1, 2 * T):
                if g == 16:
                    a.emit("s_nop 1")
                    fillers.extend([(lambda: a.emit("s_nop 7"), 8)] + self.init_ops(16))
                    C_mfmas(15, per=30)
                    flush()
                    a.emit("s_nop 1")
                    ep = self.epilogue_ops(0, [V_Q, V_Q + 12])
                    fillers.extend(self.softmax_ops(16))
                    fillers.append((lambda: a.emit("s_nop 7"), 8))
                    fillers.extend(ep[:90])
                    self.ep_rest = ep[90:]
                    A_mfmas(17, per=40)
                    flush()
                    self.check_ops(16)
                    continue
                if g == 17:
                    fillers.extend(self.ep_rest)
                    fillers.extend(self.softmax_ops(g))
                    A_mfmas(g + 1, per=40)
                    while any(True for _ in ()):
                        pass
                    n_sm = len(self.softmax_ops(g))
                    while len(fillers) > n_sm:
                        op, c = fillers.pop(0)
                        op()
                    a.emit("s_nop 1")
                    C_mfmas(g - 1, per=24)
                    flush()
                    self.check_ops(g)
                    continue
                fillers.extend(self.softmax_ops(g))
                A_mfmas(g + 1)
                C_mfmas(g - 1)
                flush()
                self.check_ops(g)
        time_ops(step_start(24), 16)
        fillers.extend(self.softmax_ops(31))
        C_mfmas(30, per=30)
        flush()
        self.check_ops(31)
        a.emit("s_nop 1")
        C_mfmas(31)
        flush()
        self.stamp()
        a.emit("s_nop 15")
        for op, c in self.epilogue_ops(1, [64, 76, 88, 100]):
            op()

    def prologue(self):
        a = self.a
        e = a.emit
        self.cur_base = {'K': 0, 'VW': 0}
        e("s_cmp_ge_u32 s2, 256")
        e("s_cbranch_scc1 L_end")
        if self.stamps:
            e("s_memtime s[90:91]")
            e("s_memrealtime s[92:93]")
        e("s_and_b32 s%d, s2, 7" % S_T[0])
        e("s_lshr_b32 s%d, s2, 3" % S_T[1])
        e("s_and_b32 s%d, s%d, 1" % (S_T[2], S_T[0]))
        e("s_load_dwordx16 s[64:79], s[0:1], 0")
        e("s_load_dwordx8 s[80:87], s[0:1], 64")
        e("s_load_dwordx2 s[88:89], s[0:1], 96")
        e("s_lshr_b32 s%d, s%d, 1" % (S_T[3], S_T[0]))
        e("s_and_b32 s%d, s%d, 1" % (S_T[3], S_T[3]))
        e("s_lshl_b32 s%d, s%d, 2" % (S_T[3], S_T[3]))
        e("s_and_b32 s%d, s%d, 3" % (S_T[4], S_T[1]))
        e("s_add_u32 s%d, s%d, s%d" % (S_T[3], S_T[3], S_T[4]))
        e("s_lshr_b32 s%d, s%d, 2" % (S_T[4], S_T[0]))
        e("s_lshl_b32 s%d, s%d, 4" % (S_T[4], S_T[4]))
        e("s_lshr_b32 s%d, s%d, 2" % (S_T[5], S_T[1]))
        e("s_add_u32 s%d, s%d, s%d" % (S_T[4], S_T[4], S_T[5]))
        e("s_waitcnt lgkmcnt(0)")
        e("s_cmp_eq_u32 s%d, 0" % S_T[2])
        for (dst, pa, pb, sz) in ((S_X, 64, 74, 8 * 240 * 512 * 2), (S_K, 66, 76, 8 * 32 * 512 * 128 * 2),
                                  (S_V, 68, 78, 8 * 32 * 512 * 128 * 2), (S_W, 70, 80, 512 * 4096 * 2)):
            e("s_cselect_b32 s%d, s%d, s%d" % (dst, pa, pb))
            e("s_cselect_b32 s%d, s%d, s%d" % (dst + 1, pa + 1, pb + 1))
            e("s_mov_b32 s%d, %d" % (dst + 2, sz))
            e("s_mov_b32 s%d, 0x00020000" % (dst + 3))
        e("s_mov_b32 s%d, s88" % S_WS)
        e("s_mov_b32 s%d, s89" % (S_WS + 1))
        e("s_mov_b32 s%d, %d" % (S_WS + 2, 2 * 60 * 262144))
        e("s_mov_b32 s%d, 0x00020000" % (S_WS + 3))
        e("s_lshl_b32 s%d, s%d, 5" % (S_T[5], S_T[3]))
        e("s_add_u32 s%d, s%d, s%d" % (S_T[5], S_T[5], S_T[4]))
        e("s_lshl_b32 s%d, s%d, 17" % (S_KVB[0], S_T[5]))
        e("s_lshl_b32 s%d, s%d, 8" % (S_WCB[0], S_T[4]))
        e("s_add_u32 s%d, s%d, %d" % (S_KVB[1], S_KVB[0], 8 * 131072))
        e("s_add_u32 s%d, s%d, %d" % (S_WCB[1], S_WCB[0], 8 * 256))
        e("s_mul_i32 s%d, s%d, %d" % (S_STB[0], S_T[2], 60 * 262144))
        e("s_lshl_b32 s%d, s%d, 13" % (S_T[5], S_T[4]))
        e("s_add_u32 s%d, s%d, s%d" % (S_STB[0], S_STB[0], S_T[5]))
        e("s_add_u32 s%d, s%d, 4096" % (S_STB[1], S_STB[0]))
        e("s_add_u32 s%d, s%d, %d" % (S_STB[2], S_STB[0], 65536))
        e("s_add_u32 s%d, s%d, %d" % (S_STB[3], S_STB[0], 65536 + 4096))
        c = math.log2(math.e) / math.sqrt(128.0)
        cb = struct.unpack("<I", struct.pack("<f", c))[0]
        e("s_mov_b32 s%d, 0x%08x" % (S_SCALE, cb))
        e("s_mov_b32 s%d, 0x%08x" % (S_SCALE + 1, cb))
        for i in range(4):
            e("s_mov_b32 s%d, %d" % (S_XSO[i], i * 8192))
        e("v_lshrrev_b32 v%d, 6, v0" % V_T1)
        e("s_nop 0")
        e("v_readfirstlane_b32 s%d, v%d" % (S_T[0], V_T1))
        e("s_lshl_b32 s%d, s%d, 10" % (S_WV1K, S_T[0]))
        e("s_lshl_b32 s62, s%d, 6" % S_T[0])
        e("s_lshr_b32 s%d, s%d, 2" % (S_CLS, S_T[0]))
        L = V_L[0]
        HH = V_L[1]
        e("v_and_b32 v%d, 63, v0" % L)
        e("v_lshrrev_b32 v%d, 5, v%d" % (HH, L))
        e("s_mul_i32 s%d, s%d, 240" % (S_T[1], S_T[3]))
        e("s_lshl_b32 s%d, s%d, 5" % (S_T[2], S_T[0]))
        e("s_add_u32 s%d, s%d, s%d" % (S_T[1], S_T[1], S_T[2]))
        RP, CH = V_ET[0], V_ET[1]
        e("v_lshrrev_b32 v%d, 4, v%d" % (V_ET[2], L))
        e("s_lshl_b32 s%d, s%d, 2" % (S_T[5], S_T[0]))
        e("v_add_u32 v%d, s%d, v%d" % (RP, S_T[5], V_ET[2]))
        e("v_and_b32 v%d, 15, v%d" % (CH, L))
        e("v_lshlrev_b32 v%d, 2, v%d" % (V_ET[3], V_ET[2]))
        e("v_xor_b32 v%d, v%d, v%d" % (V_ET[3], CH, V_ET[3]))
        e("v_lshlrev_b32 v%d, 4, v%d" % (V_ET[3], V_ET[3]))
        e("v_lshl_add_u32 v%d, v%d, 13, v%d" % (V_DW, RP, V_ET[3]))
        e("v_lshl_add_u32 v%d, v%d, 8, v%d" % (V_DV, RP, V_ET[3]))
        e("v_and_b32 v%d, 15, v%d" % (V_ET[3], RP))
        e("v_xor_b32 v%d, v%d, v%d" % (V_ET[3], CH, V_ET[3]))
        e("v_lshlrev_b32 v%d, 4, v%d" % (V_ET[3], V_ET[3]))
        e("v_lshl_add_u32 v%d, v%d, 8, v%d" % (V_DK, RP, V_ET[3]))
        e("v_lshrrev_b32 v%d, 3, v%d" % (V_ET[0], L))
        e("v_add_u32 v%d, s%d, v%d" % (V_ET[1], S_T[1], V_ET[0]))
        e("v_lshlrev_b32 v%d, 10, v%d" % (V_XOFF, V_ET[1]))
        e("v_and_b32 v%d, 7, v%d" % (V_ET[1], L))
        e("v_lshl_add_u32 v%d, v%d, 4, v%d" % (V_XOFF, V_ET[1], V_XOFF))
        first = self.issue_at[-1]
        for i in range(4):
            self.x_raw_load(0, i)
        for c in first[:2]:
            for op, cc in self.dma_ops(c):
                op()
        for i in range(4):
            self.x_raw_load(1, i)
        for c in first[2:4]:
            for op, cc in self.dma_ops(c):
                op()
        self.late_prologue = []
        for c in first[4:]:
            self.late_prologue.extend(self.dma_ops(c))
        e("v_lshrrev_b32 v%d, 4, v%d" % (V_ET[2], L))
        e("v_xor_b32 v%d, v%d, v%d" % (V_ET[2], V_ET[1], V_ET[2]))
        e("v_lshlrev_b32 v%d, 4, v%d" % (V_ET[2], V_ET[2]))
        e("v_lshl_add_u32 v%d, v%d, 7, v%d" % (V_ET[2], V_ET[0], V_ET[2]))
        e("s_lshl_b32 s%d, s%d, 2" % (S_T[5], S_WV1K))
        e("s_add_u32 s%d, s%d, %d" % (S_T[5], S_T[5], XSCR))
        e("v_add_u32 v%d, s%d, v%d" % (V_XW[0], S_T[5], V_ET[2]))
        e("v_xor_b32 v%d, 64, v%d" % (V_XW[1], V_XW[0]))
        e("v_and_b32 v%d, 31, v%d" % (V_ET[0], L))
        e("v_bfe_u32 v%d, v%d, 1, 3" % (V_ET[1], L))
        e("v_xor_b32 v%d, v%d, v%d" % (V_ET[1], V_ET[1], HH))
        for ks in range(4):
            e("v_xor_b32 v%d, %d, v%d" % (V_ET[2], 2 * ks, V_ET[1]))
            e("v_lshlrev_b32 v%d, 4, v%d" % (V_ET[2], V_ET[2]))
            e("v_lshl_add_u32 v%d, v%d, 7, v%d" % (V_ET[2], V_ET[0], V_ET[2]))
            e("v_add_u32 v%d, s%d, v%d" % (V_XR[ks], S_T[5], V_ET[2]))
        R = V_ET[0]
        e("v_and_b32 v%d, 31, v%d" % (V_ET[3], L))
        e("v_add_u32 v%d, s%d, v%d" % (R, S_T[1], V_ET[3]))
        e("v_lshrrev_b32 v%d, 5, v%d" % (V_ET[1], R))
        e("v_lshlrev_b32 v%d, 18, v%d" % (V_ET[1], V_ET[1]))
        e("v_and_b32 v%d, 31, v%d" % (V_ET[2], R))
        e("v_lshlrev_b32 v%d, 4, v%d" % (V_ET[2], V_ET[2]))
        e("v_lshl_add_u32 v%d, v%d, 9, v%d" % (V_ET[2], HH, V_ET[2]))
        e("v_add_u32 v%d, v%d, v%d" % (V_STOFF, V_ET[1], V_ET[2]))
        e("v_add_u32 v%d, s%d, v%d" % (V_ET[3], S_T[2], V_ET[3]))
        e("v_mov_b32 v%d, 0x7f000000" % V_ET[0])
        e("v_cmp_gt_u32 vcc, 240, v%d" % V_ET[3])
        e("s_nop 1")
        e("v_cndmask_b32 v%d, v%d, v%d, vcc" % (V_STOFF, V_ET[0], V_STOFF))
        r_, c4 = V_ET[0], V_ET[1]
        e("v_bfe_u32 v%d, v%d, 2, 2" % (r_, L))
        e("v_and_b32 v%d, 3, v%d" % (c4, L))
        e("v_lshl_add_u32 v%d, v%d, 3, v%d" % (V_ET[2], HH, r_))
        e("v_lshlrev_b32 v%d, 8, v%d" % (V_ET[2], V_ET[2]))
        e("v_bfe_u32 v%d, v%d, 4, 1" % (V_ET[3], L))
        e("v_lshl_add_u32 v%d, v%d, 5, v%d" % (V_ET[2], V_ET[3], V_ET[2]))
        e("v_and_b32 v%d, 1, v%d" % (V_ET[3], c4))
        e("v_lshl_add_u32 v%d, v%d, 4, v%d" % (V_ET[2], V_ET[3], V_ET[2]))
        e("v_lshrrev_b32 v%d, 1, v%d" % (V_ET[3], c4))
        e("v_lshl_add_u32 v%d, v%d, 3, v%d" % (V_ET[2], V_ET[3], V_ET[2]))
        for t in range(4):
            e("v_xor_b32 v%d, %d, v%d" % (V_ET[3], t, r_))
            e("v_lshl_add_u32 v%d, v%d, 6, v%d" % (V_VW[t], V_ET[3], V_ET[2]))
        key = V_ET[0]
        e("v_and_b32 v%d, 0x13, v%d" % (key, L))
        e("v_bfe_u32 v%d, v%d, 2, 1" % (V_ET[1], L))
        e("v_lshl_add_u32 v%d, v%d, 3, v%d" % (key, V_ET[1], key))
        e("v_bfe_u32 v%d, v%d, 3, 1" % (V_ET[1], L))
        e("v_lshl_add_u32 v%d, v%d, 2, v%d" % (key, V_ET[1], key))
        e("v_and_b32 v%d, 15, v%d" % (V_ET[1], key))
        e("v_xor_b32 v%d, v%d, v%d" % (V_ET[1], V_ET[1], HH))
        for s in range(8):
            e("v_xor_b32 v%d, %d, v%d" % (V_ET[2], 2 * s, V_ET[1]))
            e("v_lshlrev_b32 v%d, 4, v%d" % (V_ET[2], V_ET[2]))
            e("v_lshl_add_u32 v%d, v%d, 8, v%d" % (V_KA[s], key, V_ET[2]))
        need = []
        for c in self.steps[0]:
            need += self.dma_tags(c)
        a.wait(vm=need)
        a.emit("s_barrier")
        self.stamp()

    def gen(self):
        a = self.a
        self.frags = self.build_frags()
        for cls in (0, 1):
            a.new_trace(cls)
            self.prologue()
            self.body()
        a.trace = False
        a.reset_sites(0)
        self.prologue()
        self.body()
        if self.stamps:
            self.stamp()
            a.emit("v_subrev_u32 v%d, s90, v%d" % (V_STMP2, V_STMP2))
            a.emit("s_memrealtime s[60:61]")
            a.emit("s_waitcnt lgkmcnt(0)")
            a.emit("s_sub_u32 s60, s60, s92")
            a.emit("v_mov_b32 v%d, s60" % V_T1)
            a.emit("v_cmp_eq_u32 vcc, s62, v0")
            a.emit("s_nop 1")
            a.emit("v_cndmask_b32 v%d, v%d, v%d, vcc" % (V_STMP2, V_STMP2, V_T1))
            a.emit("s_add_u32 s62, s62, 1")
            a.emit("v_mov_b32 v%d, s92" % V_T1)
            a.emit("v_cmp_eq_u32 vcc, s62, v0")
            a.emit("s_nop 1")
            a.emit("v_cndmask_b32 v%d, v%d, v%d, vcc" % (V_STMP2, V_STMP2, V_T1))
            a.emit("v_lshlrev_b32 v%d, 2, v0" % V_T1)
            a.emit("s_lshl_b32 s60, s2, 11")
            a.emit("s_add_u32 s60, s60, %d" % (64 << 20))
            a.emit("s_mov_b32 s%d, 0x10000000" % (S_WS + 2))
            a.emit("buffer_store_dword v%d, v%d, s[%d:%d], s60 offen" % (V_STMP2, V_T1, S_WS, S_WS + 3))
        a.label("L_end")
        a.emit("s_endpgm")
        for g in range(32):
            if g % 16 != 0:
                self.slow_path(g)

V_STMP2 = 11
```

```python
import sys
from asmlib import Asm
from k1 import K1
from k2 import K2
NAME = "concat_heads__mha_block_cached__gqa_block_cached__near_ridge"
hdr = open("cdna_kernels/%s.s.ref" % NAME).read().split("; Override launch")[0]
out = [hdr]
out.append("; @launch kernel=attn1_kernel grid=(256,1,1) block=(512,1,1) lds=163840\n")
out.append("; @launch kernel=oproj_kernel grid=(256,1,1) block=(512,1,1) lds=163840\n")
out.append('.amdgcn_target "amdgcn-amd-amdhsa--gfx950"\n.text\n')
a1 = Asm(); K1(a1, stamps=(len(sys.argv) > 2 and sys.argv[2] == "stamps")).gen()
out.append(".globl attn1_kernel\n.p2align 8\n.type attn1_kernel,@function\nattn1_kernel:\n")
out.append(a1.text())
a2 = Asm(); K2(a2).gen()
out.append(".globl oproj_kernel\n.p2align 8\n.type oproj_kernel,@function\noproj_kernel:\n")
out.append(a2.text())
out.append('''.section .rodata,"a"
.p2align 6
.amdhsa_kernel attn1_kernel
  .amdhsa_next_free_vgpr 256
  .amdhsa_next_free_sgpr 96
  .amdhsa_accum_offset 160
  .amdhsa_group_segment_fixed_size 0
  .amdhsa_kernarg_size 104
  .amdhsa_user_sgpr_count 2
  .amdhsa_user_sgpr_kernarg_segment_ptr 1
  .amdhsa_system_sgpr_workgroup_id_x 1
.end_amdhsa_kernel
.p2align 6
.amdhsa_kernel oproj_kernel
  .amdhsa_next_free_vgpr 256
  .amdhsa_next_free_sgpr 96
  .amdhsa_accum_offset 256
  .amdhsa_group_segment_fixed_size 0
  .amdhsa_kernarg_size 104
  .amdhsa_user_sgpr_count 2
  .amdhsa_user_sgpr_kernarg_segment_ptr 1
  .amdhsa_system_sgpr_workgroup_id_x 1
.end_amdhsa_kernel
''')
dst = sys.argv[1] if len(sys.argv) > 1 else "cdna_kernels/%s.s" % NAME
open(dst, "w").write("".join(out))
print("wrote", dst, sum(len(x) for x in out))
```

```python
from asmlib import Asm
import math, struct, os
EXP = os.environ.get('EXP', '')

SLOT = 16384
NSLOT = 10
XSCR = 8 * SLOT
LA = 5
NFR = 7
THR = 256.0

V_T1 = 1
V_XOFF = 2
V_XW = [3, 4]
V_STOFF = 5
V_DW, V_DV, V_DK = 6, 7, 8
V_L = [9, 12]
V_RC = 10
V_NM = 13
V_TS = [14, 15]
V_ET = [16, 17, 18, 19]
V_VW = [20, 21, 22, 23]
V_KA = [24 + i for i in range(8)]
V_FR = 32
V_XR = [60, 61, 62, 63]
V_THR = 60
V_STMP = 61
V_EP = 62
V_QACC = 64
V_S = [64, 80]
V_P = [96, 104]
V_NEGM = 112
V_Q = 128
A_O = 0
A_XF = 64

S_X, S_W, S_K, S_V, S_WS = 4, 8, 12, 16, 20
S_KVB = [26, 28]
S_WCB = [27, 29]
S_T = [34, 35, 36, 37, 38, 39]
S_SCALE = 40
S_WV1K = 42
S_STB = [43, 44, 45, 46]
S_XSO = [52, 53, 54, 55]
S_CLS = 47
S_WO = 56
S_WOS = 60 - 10
S_WOD = 51
WOT = 32 << 20
V_WOV = 152
STFLAG = os.environ.get('STFLAG', '')
SHIFT = int(os.environ.get('SHIFT', '8'))

def vr(b, n):
    return "v[%d:%d]" % (b, b + n - 1)
def ar(b, n):
    return "a[%d:%d]" % (b, b + n - 1)

class K1:
    def __init__(self, a, stamps=False):
        self.a = a
        self.stamps = stamps
        self.plan()

    def plan(self):
        steps = []
        for j in range(8):
            steps.append([('W', 0, j), ('W', 1, j)])
        for T in range(17):
            st = []
            if T < 16:
                st.append(('K', T // 8, T % 8))
            if T >= 1:
                st.append(('V', (T - 1) // 8, (T - 1) % 8))
            steps.append(st)
        self.steps = steps
        seq = [c for st in steps for c in st]
        self.seq = seq
        cons_step = {}
        for si, st in enumerate(steps):
            for c in st:
                cons_step[c] = si
        self.cons_step = cons_step
        free_at = {s: -1 for s in range(8)}
        free_at[8] = 8
        free_at[9] = 8
        self.slot = {}
        self.issue_step = {}
        for c in seq:
            s = min(free_at, key=lambda k: (free_at[k], k))
            self.slot[c] = s
            self.issue_step[c] = free_at[s]
            free_at[s] = cons_step[c] + 1
            assert self.issue_step[c] <= cons_step[c] - 2 or self.issue_step[c] == -1, (c, self.issue_step[c], cons_step[c])
        self.issue_at = {}
        for c in seq:
            self.issue_at.setdefault(self.issue_step[c], []).append(c)

    def stamp(self):
        if not self.stamps:
            return
        a = self.a
        a.emit("s_memtime s[60:61]")
        a.emit("s_waitcnt lgkmcnt(0)")
        a.emit("v_mov_b32 v%d, s60" % V_T1)
        a.emit("v_cmp_eq_u32 vcc, s62, v0")
        a.emit("s_nop 1")
        a.emit("v_cndmask_b32 v%d, v%d, v%d, vcc" % (V_STMP2, V_STMP2, V_T1))
        a.emit("s_add_u32 s62, s62, 1")

    def dma_ops(self, c):
        a = self.a
        kind, u, j = c
        ops = []
        for i in range(2):
            def op(i=i):
                if kind == 'W':
                    srd, base, goff, vo = S_W, S_WCB[u], j * 524288 + i * 262144, V_DW
                elif kind == 'K':
                    srd, base, goff, vo = S_K, S_KVB[u], j * 16384 + i * 8192, V_DK
                else:
                    srd, base, goff, vo = S_V, S_KVB[u], j * 16384 + i * 8192, V_DV
                a.emit("s_add_u32 m0, s%d, %d" % (S_WV1K, self.slot[c] * SLOT + i * 8192))
                a.emit("s_add_u32 s%d, s%d, %d" % (S_T[0], base, goff))
                fl = " nt" if (kind != 'W' and 'kvnt' in EXP) else ""
                a.vmem("buffer_load_dwordx4 v%d, s[%d:%d], s%d offen%s lds" % (vo, srd, srd + 3, S_T[0], fl), ('dma', c, i))
            ops.append((op, 4))
        return ops

    def dma_tags(self, c):
        return [('dma', c, i) for i in range(2)]

    def addr_update(self, c):
        a = self.a
        kind = c[0]
        key = 'K' if kind == 'K' else 'VW'
        new = self.slot[c] * SLOT
        d = new - self.cur_base[key]
        self.cur_base[key] = new
        if d == 0:
            return
        for r in (V_KA if kind == 'K' else V_VW):
            a.emit("v_add_u32 v%d, 0x%x, v%d" % (r, d & 0xffffffff, r))

    def xraw_reg(self, j, i):
        return vr(V_Q + (j % 2) * 16 + i * 4, 4)

    def x_raw_load(self, j, i):
        a = self.a
        a.vmem("buffer_load_dwordx4 %s, v%d, s[%d:%d], s%d offen offset:%d" %
               (self.xraw_reg(j, i), V_XOFF, S_X, S_X + 3, S_XSO[i], j * 128), ('xr', j, i))

    def x_write(self, j, i):
        a = self.a
        if 'noxvm' not in EXP:
            a.wait(vm=[('xr', j, i)])
        if 'noxw' in EXP:
            return
        a.ds("ds_write_b128 v%d, %s offset:%d" % (V_XW[i % 2], self.xraw_reg(j, i), i * 1024), ('xw', j, i))

    def x_read(self, j, ks):
        a = self.a
        if 'noxr' in EXP and j > 0:
            a.lgi[('xf', j, ks)] = a.lgi.get(('xf', 0, 0), 0)
            return
        a.ds("ds_read_b128 %s, v%d" % (ar(A_XF + (j % 2) * 16 + ks * 4, 4), V_XR[ks]), ('xf', j, ks))

    def build_frags(self):
        fr = []
        for j in range(8):
            for ks in range(4):
                for u in range(2):
                    for t in range(4):
                        fr.append(('W', u, j, ks, t))
        def ktile(g):
            for s in range(8):
                fr.append(('K', g, s))
        def vtile(g):
            for dt in range(4):
                for ks in range(2):
                    fr.append(('V', g, dt, ks))
        self.order = []
        ktile(0)
        ktile(1)
        for g in range(1, 31):
            if g == 16:
                vtile(15)
                ktile(17)
            else:
                ktile(g + 1)
                vtile(g - 1)
        vtile(30)
        vtile(31)
        return fr

    def frag_reg(self, f):
        return V_FR + (f % NFR) * 4

    def frag_chunk(self, f):
        d = self.frags[f]
        if d[0] == 'W':
            return ('W', d[1], d[2])
        g = d[1]
        return (d[0], g // 16, (g % 16) // 2)

    def issue_frag(self, f):
        a = self.a
        d = self.frags[f]
        r = self.frag_reg(f)
        c = self.frag_chunk(f)
        if d[0] == 'W':
            _, u, j, ks, t = d
            base = self.slot[c] * SLOT - self.cur_base['VW']
            off = base + (16 * ks) * 256
            if off < 0 or off + 1024 + 8 > 65535:
                self.addr_update(c)
                off = (16 * ks) * 256
            for e2 in range(2):
                a.ds("ds_read_b64_tr_b16 %s, v%d offset:%d" % (vr(r + 2 * e2, 2), V_VW[t], off + 1024 * e2), ('fr', f, e2))
        elif d[0] == 'V':
            _, g, dt, ks = d
            base = self.slot[c] * SLOT - self.cur_base['VW']
            off = base + (32 * (g & 1) + 16 * ks) * 256
            if off < 0 or off + 1024 + 8 > 65535:
                self.addr_update(c)
                off = (32 * (g & 1) + 16 * ks) * 256
            for e2 in range(2):
                a.ds("ds_read_b64_tr_b16 %s, v%d offset:%d" % (vr(r + 2 * e2, 2), V_VW[dt], off + 1024 * e2), ('fr', f, e2))
        else:
            _, g, s = d
            base = self.slot[c] * SLOT - self.cur_base['K']
            off = base + (g & 1) * 8192
            if off < 0 or off + 16 > 65535:
                self.addr_update(c)
                off = (g & 1) * 8192
            a.ds("ds_read_b128 %s, v%d offset:%d" % (vr(r, 4), V_KA[s], off), ('fr', f, 1))

    def softmax_ops(self, g):
        a = self.a
        cb = g & 1
        ops = []
        def E(p):
            ta, tb = V_ET[2 * (p & 1)], V_ET[2 * (p & 1) + 1]
            s0 = V_S[cb] + 2 * p
            ops.append((lambda: a.emit("v_exp_f32 v%d, v%d" % (ta, s0)), 8))
            ops.append((lambda: a.emit("v_exp_f32 v%d, v%d" % (tb, s0 + 1)), 8))
        def R(p):
            ta, tb = V_ET[2 * (p & 1)], V_ET[2 * (p & 1) + 1]
            if p == 0:
                ops.append((lambda: a.emit("v_mov_b32 v%d, v%d" % (V_TS[0], ta)), 4))
                ops.append((lambda: a.emit("v_mov_b32 v%d, v%d" % (V_TS[1], tb)), 4))
            else:
                ops.append((lambda: a.emit("v_add_f32 v%d, v%d, v%d" % (V_TS[0], V_TS[0], ta)), 4))
                ops.append((lambda: a.emit("v_add_f32 v%d, v%d, v%d" % (V_TS[1], V_TS[1], tb)), 4))
            pr = V_P[cb] + p
            ops.append((lambda: a.emit("v_cvt_pk_bf16_f32 v%d, v%d, v%d" % (pr, ta, tb)), 4))
        E(0)
        for p in range(1, 8):
            E(p)
            R(p - 1)
        ops.append((lambda: a.emit("s_nop 0"), 4))
        R(7)
        ops.append((lambda: a.emit("v_add_f32 v%d, v%d, v%d" % (V_TS[0], V_TS[0], V_TS[1])), 4))
        return ops

    def check_ops(self, g):
        a = self.a
        u = g // 16
        if g % 16 == 0:
            a.emit("v_mov_b32 v%d, v%d" % (V_L[u], V_TS[0]))
            return
        a.emit("v_cmp_nle_f32 vcc, v%d, v%d" % (V_TS[0], V_THR))
        a.emit("s_cbranch_vccnz L_slow%d" % g)
        a.label("L_back%d" % g)
        a.emit("v_add_f32 v%d, v%d, v%d" % (V_L[u], V_L[u], V_TS[0]))

    def rowmax_ops(self, s, T0, T1):
        a = self.a
        ops = []
        ops.append((lambda: a.emit("v_max3_f32 v%d, v%d, v%d, v%d" % (T0, s, s + 1, s + 2)), 4))
        for i in range(3, 15, 2):
            ops.append((lambda i=i: a.emit("v_max3_f32 v%d, v%d, v%d, v%d" % (T0, T0, s + i, s + i + 1)), 4))
        ops.append((lambda: a.emit("v_max_f32 v%d, v%d, v%d" % (T0, T0, s + 15)), 4))
        def sw():
            a.emit("v_mov_b32 v%d, v%d" % (T1, T0))
            a.emit("s_nop 1")
            a.emit("v_permlane32_swap_b32 v%d, v%d" % (T0, T1))
            a.emit("s_nop 1")
        ops.append((sw, 16))
        return ops

    def init_ops(self, g):
        a = self.a
        s = V_S[g & 1]
        T0, T1 = V_ET[0], V_ET[1]
        ops = self.rowmax_ops(s, T0, T1)
        ops.append((lambda: a.emit("v_max_f32 v%d, v%d, v%d" % (T0, T0, T1)), 4))
        ops.append((lambda: a.emit("v_sub_f32 v%d, 0, v%d" % (V_NM, T0)), 4))
        for i in range(16):
            ops.append((lambda i=i: a.emit("v_mov_b32 v%d, v%d" % (V_NEGM + i, V_NM)), 4))
        for i in range(16):
            ops.append((lambda i=i: a.emit("v_add_f32 v%d, v%d, v%d" % (s + i, s + i, V_NM)), 4))
        return ops

    def slow_path(self, g):
        a = self.a
        u = g // 16
        cb = g & 1
        nb = cb ^ 1
        a.label("L_slow%d" % g)
        a.emit("s_nop 15")
        a.emit("s_nop 15")
        T0, T1 = V_ET[0], V_ET[1]
        s = V_S[cb]
        for op, c in self.rowmax_ops(s, T0, T1):
            op()
        a.emit("v_max3_f32 v%d, v%d, v%d, 0" % (T0, T0, T1))
        a.emit("v_exp_f32 v%d, -v%d" % (T1, T0))
        if g % 16 != 15:
            a.emit("v_sub_f32 v%d, v%d, v%d" % (V_NM, V_NM, T0))
            for i in range(16):
                a.emit("v_mov_b32 v%d, v%d" % (V_NEGM + i, V_NM))
            for i in range(16):
                r = V_S[nb] + i
                a.emit("v_sub_f32 v%d, v%d, v%d" % (r, r, T0))
        a.emit("v_mul_f32 v%d, v%d, v%d" % (V_L[u], V_L[u], T1))
        for i in range(64):
            r = A_O + i
            a.emit("v_accvgpr_read_b32 v%d, a%d" % (V_ET[2], r))
            a.emit("v_mul_f32 v%d, v%d, v%d" % (V_ET[3], V_ET[2], T1))
            a.emit("v_accvgpr_write_b32 a%d, v%d" % (r, V_ET[3]))
        a.emit("v_mov_b32 v%d, 0" % V_TS[0])
        for p in range(8):
            a.emit("v_sub_f32 v%d, v%d, v%d" % (V_ET[2], s + 2 * p, T0))
            a.emit("v_sub_f32 v%d, v%d, v%d" % (V_ET[3], s + 2 * p + 1, T0))
            a.emit("v_exp_f32 v%d, v%d" % (V_ET[2], V_ET[2]))
            a.emit("v_exp_f32 v%d, v%d" % (V_ET[3], V_ET[3]))
            a.emit("s_nop 0")
            a.emit("v_add_f32 v%d, v%d, v%d" % (V_TS[0], V_TS[0], V_ET[2]))
            a.emit("v_add_f32 v%d, v%d, v%d" % (V_TS[0], V_TS[0], V_ET[3]))
            a.emit("v_cvt_pk_bf16_f32 v%d, v%d, v%d" % (V_P[cb] + p, V_ET[2], V_ET[3]))
        a.emit("s_nop 3")
        a.emit("s_branch L_back%d" % g)

    def wo_ld(self, k):
        a = self.a
        if k == 0:
            a.emit("v_and_b32 v%d, 0xff, v%d" % (V_TS[0], V_DV))
            a.emit("v_lshrrev_b32 v%d, 8, v%d" % (V_TS[1], V_DV))
            a.emit("v_lshl_add_u32 v%d, v%d, 10, v%d" % (V_TS[0], V_TS[1], V_TS[0]))
            a.emit("v_lshlrev_b32 v%d, 4, v0" % V_TS[1])
        a.emit("s_add_u32 s%d, s%d, %d" % (S_T[0], S_WOS, k * 32768))
        a.vmem("buffer_load_dwordx4 %s, v%d, s[%d:%d], s%d offen" % (vr(V_ET[0], 4), V_TS[0], S_WO, S_WO + 3, S_T[0]), ('wo', k))

    def wo_st(self, k):
        a = self.a
        a.wait(vm=[('wo', k)])
        a.emit("s_add_u32 s%d, s%d, %d" % (S_T[0], S_WOD, k * 8192))
        a.vmem("buffer_store_dwordx4 %s, v%d, s[%d:%d], s%d offen" % (vr(V_ET[0], 4), V_TS[1], S_WS, S_WS + 3, S_T[0]), None)

    def epilogue_ops(self, u, tmp):
        a = self.a
        ops = []
        T0, T1 = V_RC, 63
        def pre():
            a.emit("v_mov_b32 v%d, v%d" % (T0, V_L[u]))
            a.emit("v_mov_b32 v%d, v%d" % (T1, V_L[u]))
            a.emit("s_nop 1")
            a.emit("v_permlane32_swap_b32 v%d, v%d" % (T0, T1))
            a.emit("s_nop 1")
            a.emit("v_add_f32 v%d, v%d, v%d" % (T0, T0, T1))
            a.emit("v_rcp_f32 v%d, v%d" % (T0, T0))
            a.emit("s_nop 0")
        ops.append((pre, 30))
        k = 0
        for dt in range(4):
            for G in range(2):
                base = tmp[k % len(tmp)]
                k += 1
                o = A_O + dt * 16 + 8 * G
                for i in range(8):
                    ops.append((lambda base=base, i=i, o=o: a.emit("v_accvgpr_read_b32 v%d, a%d" % (base + i, o + i)), 4))
                for i in range(8):
                    ops.append((lambda base=base, i=i: a.emit("v_mul_f32 v%d, v%d, v%d" % (base + i, base + i, T0)), 4))
                for i in range(0, 8, 2):
                    ops.append((lambda base=base, i=i: a.emit("v_cvt_pk_bf16_f32 v%d, v%d, v%d" % (base + 8 + i // 2, base + i, base + i + 1)), 4))
                kq = 2 * dt + G
                so = S_STB[u * 2 + (kq // 4)]
                ops.append((lambda base=base, so=so, kq=kq: a.vmem(
                    "buffer_store_dwordx4 %s, v%d, s[%d:%d], s%d offen offset:%d%s" %
                    (vr(base + 8, 4), V_STOFF, S_WS, S_WS + 3, so, (kq % 4) * 1024, STFLAG), None), 4))
        return ops

    def body(self):
        a = self.a
        frags = self.frags
        self.fpos = 0
        self.fiss = 0
        fillers = []
        timed = {}

        def time_ops(ops, span):
            n = len(ops)
            for cls in range(2):
                for k, (op, c) in enumerate(ops):
                    pos = self.fpos + cls * (span // 2) + 1 + (k * (span // 2 - 1)) // n
                    timed.setdefault(pos, []).append((cls, op))

        def pump(budget):
            while fillers and budget > 0:
                op, c = fillers.pop(0)
                op()
                budget -= c

        def flush():
            while fillers:
                op, c = fillers.pop(0)
                op()

        def issue_upto(n):
            while self.fiss < min(n, len(frags)):
                self.issue_frag(self.fiss)
                self.fiss += 1

        def step_start(si, front=False):
            need = []
            if si + 1 < len(self.steps):
                for c in self.steps[si + 1]:
                    need += self.dma_tags(c)
            if need:
                a.wait(vm=need)
            a.emit("s_barrier")
            if si in (0, 8, 9, 16, 17, 24) or 'allst' in EXP:
                self.stamp()
            ops = []
            for c in self.issue_at.get(si, []):
                ops.extend(self.dma_ops(c))
            return ops

        def consume(mf, extra_lg=(), per=14):
            f = self.fpos
            a.wait(lg=[('fr', f, 1)] + list(extra_lg))
            mf(self.frag_reg(f))
            issue_upto(f + 1 + LA)
            for cls, fn in timed.pop(f, []):
                if cls is None:
                    fn()
                else:
                    a.cond(cls, fn, S_CLS)
            pump(per)
            self.fpos += 1

        for i in range(4):
            self.x_write(0, i)
        for ks in range(4):
            self.x_read(0, ks)
        for j in range(8):
            dma = step_start(j)
            if j == 0:
                issue_upto(LA)
                dma = self.late_prologue + dma
            mi = 0
            sched = {}
            for cls in range(2):
                sh = cls * SHIFT
                if j + 2 < 8:
                    for i in range(4):
                        sched.setdefault(1 + 2 * i + sh, []).append((cls, lambda i=i: self.x_raw_load(j + 2, i)))
                for k, (op, c) in enumerate(dma):
                    sched.setdefault(min(9 + 2 * k + sh, 31), []).append((cls, op))
                if j + 1 < 8:
                    for i in range(4):
                        sched.setdefault(2 + 4 * i + sh, []).append((cls, lambda i=i: self.x_write(j + 1, i)))
                    for k in range(4):
                        sched.setdefault(17 + k + sh, []).append((cls, lambda k=k: self.x_read(j + 1, k)))
            for ks in range(4):
                for u in range(2):
                    for t in range(4):
                        def m(fr):
                            if u == 0:
                                acc = vr(V_QACC + t * 16, 16)
                            else:
                                acc = ar(A_O + t * 16, 16)
                            c = "0" if (j == 0 and ks == 0) else acc
                            a.emit("v_mfma_f32_32x32x16_bf16 %s, %s, %s, %s" %
                                   (acc, vr(fr, 4), ar(A_XF + (j % 2) * 16 + ks * 4, 4), c))
                        consume(m, [('xf', j, ks)] if (t == 0 and u == 0) else [])
                        for cls, fn in sched.get(mi, []):
                            a.cond(cls, fn, S_CLS)
                        TN = int(os.environ.get("TN", "0"))
                        if mi == 24 and j < TN:
                            cls = j % 2
                            def tch(cls=cls, r=j // 2):
                                srd = S_K if cls == 0 else S_V
                                a.emit("s_add_u32 s%d, s%d, %d" % (S_T[0], S_KVB[0], r * 32768))
                                a.vmem("buffer_load_dword v%d, v%d, s[%d:%d], s%d offen" % (V_L[1], V_L[0], srd, srd + 3, S_T[0]), None)
                            a.cond(cls, tch, S_CLS)
                        if mi == 28 and j % 2 == 0 and j >= 2:
                            self.wo_st((j - 2) // 2)
                        if mi == 30 and j % 2 == 0:
                            self.wo_ld(j // 2)
                        mi += 1
            flush()

        self.wo_st(3)
        a.emit("s_nop 7")
        a.emit("s_nop 7")
        tb = struct.unpack("<I", struct.pack("<f", THR))[0]
        a.emit("v_mov_b32 v%d, 0x%08x" % (V_THR, tb))
        for t in range(4):
            acc = V_QACC + t * 16
            for i in range(0, 16, 2):
                a.emit("v_pk_mul_f32 %s, %s, s[%d:%d]" % (vr(acc + i, 2), vr(acc + i, 2), S_SCALE, S_SCALE + 1))
            for i in range(0, 16, 2):
                q = V_Q + (2 * t + i // 8) * 4 + (i % 8) // 2
                a.emit("v_cvt_pk_bf16_f32 v%d, v%d, v%d" % (q, acc + i, acc + i + 1))
        conv1 = []
        CT = [V_P[1], V_P[1] + 2, V_P[1] + 4, V_P[1] + 6]
        k = 0
        for t in range(4):
            for i in range(0, 16, 2):
                tt = CT[k % 4]
                k += 1
                o = A_O + t * 16 + i
                q = A_XF + (2 * t + i // 8) * 4 + (i % 8) // 2
                def cv(tt=tt, o=o, q=q):
                    a.emit("v_accvgpr_read_b32 v%d, a%d" % (tt, o))
                    a.emit("v_accvgpr_read_b32 v%d, a%d" % (tt + 1, o + 1))
                    a.emit("v_mul_f32 v%d, s%d, v%d" % (tt, S_SCALE, tt))
                    a.emit("v_mul_f32 v%d, s%d, v%d" % (tt + 1, S_SCALE, tt + 1))
                    a.emit("v_cvt_pk_bf16_f32 v%d, v%d, v%d" % (tt, tt, tt + 1))
                    a.emit("v_accvgpr_write_b32 a%d, v%d" % (q, tt))
                conv1.append((cv, 24))

        def A_mfmas(g, per=14):
            nb = g & 1
            u = g // 16
            for s in range(8):
                def m(fr):
                    sreg = V_S[nb]
                    if s == 0:
                        c = "0" if g % 16 == 0 else vr(V_NEGM, 16)
                    else:
                        c = vr(sreg, 16)
                    q = vr(V_Q + s * 4, 4) if u == 0 else ar(A_XF + s * 4, 4)
                    a.emit("v_mfma_f32_32x32x16_bf16 %s, %s, %s, %s" % (vr(sreg, 16), vr(fr, 4), q, c))
                consume(m, per=per)

        def C_mfmas(g, per=14):
            pb = g & 1
            for dt in range(4):
                for ks in range(2):
                    def m(fr):
                        o = A_O + dt * 16
                        c = "0" if (g % 16 == 0 and ks == 0) else ar(o, 16)
                        a.emit("v_mfma_f32_32x32x16_bf16 %s, %s, %s, %s" %
                               (ar(o, 16), vr(fr, 4), vr(V_P[pb] + ks * 4, 4), c))
                    consume(m, per=per)

        time_ops(step_start(8), 16)
        fillers.extend(conv1[:16])
        a.emit("s_nop 1")
        A_mfmas(0, per=24)
        flush()
        a.emit("s_nop 7")
        for op, c in self.init_ops(0):
            op()
        fillers.extend(self.softmax_ops(0))
        fillers.extend(conv1[16:])
        A_mfmas(1, per=40)
        flush()
        self.check_ops(0)
        for T in range(1, 16):
            time_ops(step_start(8 + T), 32)
            for g in (2 * T - 1, 2 * T):
                if g == 16:
                    a.emit("s_nop 1")
                    fillers.extend([(lambda: a.emit("s_nop 7"), 8)] + self.init_ops(16))
                    C_mfmas(15, per=30)
                    flush()
                    a.emit("s_nop 1")
                    ep = self.epilogue_ops(0, [V_Q, V_Q + 12])
                    fillers.extend(self.softmax_ops(16))
                    fillers.append((lambda: a.emit("s_nop 7"), 8))
                    fillers.extend(ep[:90])
                    self.ep_rest = ep[90:]
                    A_mfmas(17, per=40)
                    flush()
                    self.check_ops(16)
                    continue
                if g == 17:
                    fillers.extend(self.ep_rest)
                    fillers.extend(self.softmax_ops(g))
                    A_mfmas(g + 1, per=40)
                    while any(True for _ in ()):
                        pass
                    n_sm = len(self.softmax_ops(g))
                    while len(fillers) > n_sm:
                        op, c = fillers.pop(0)
                        op()
                    a.emit("s_nop 1")
                    C_mfmas(g - 1, per=24)
                    flush()
                    self.check_ops(g)
                    continue
                fillers.extend(self.softmax_ops(g))
                A_mfmas(g + 1)
                C_mfmas(g - 1)
                flush()
                self.check_ops(g)
        time_ops(step_start(24), 16)
        fillers.extend(self.softmax_ops(31))
        C_mfmas(30, per=30)
        flush()
        self.check_ops(31)
        a.emit("s_nop 1")
        C_mfmas(31)
        flush()
        self.stamp()
        a.emit("s_nop 15")
        for op, c in self.epilogue_ops(1, [64, 76, 88, 100]):
            op()

    def prologue(self):
        a = self.a
        e = a.emit
        self.cur_base = {'K': 0, 'VW': 0}
        e("s_cmp_ge_u32 s2, 256")
        e("s_cbranch_scc1 L_end")
        if self.stamps:
            e("s_memtime s[90:91]")
            e("s_memrealtime s[92:93]")
        e("s_and_b32 s%d, s2, 7" % S_T[0])
        e("s_lshr_b32 s%d, s2, 3" % S_T[1])
        e("s_and_b32 s%d, s%d, 1" % (S_T[2], S_T[0]))
        e("s_load_dwordx16 s[64:79], s[0:1], 0")
        e("s_load_dwordx8 s[80:87], s[0:1], 64")
        e("s_load_dwordx2 s[88:89], s[0:1], 96")
        e("s_lshr_b32 s%d, s%d, 1" % (S_T[3], S_T[0]))
        e("s_and_b32 s%d, s%d, 1" % (S_T[3], S_T[3]))
        e("s_lshl_b32 s%d, s%d, 2" % (S_T[3], S_T[3]))
        e("s_and_b32 s%d, s%d, 3" % (S_T[4], S_T[1]))
        e("s_add_u32 s%d, s%d, s%d" % (S_T[3], S_T[3], S_T[4]))
        e("s_lshr_b32 s%d, s%d, 2" % (S_T[4], S_T[0]))
        e("s_lshl_b32 s%d, s%d, 4" % (S_T[4], S_T[4]))
        e("s_lshr_b32 s%d, s%d, 2" % (S_T[5], S_T[1]))
        e("s_add_u32 s%d, s%d, s%d" % (S_T[4], S_T[4], S_T[5]))
        e("s_waitcnt lgkmcnt(0)")
        e("s_cmp_eq_u32 s%d, 0" % S_T[2])
        for (dst, pa, pb, sz) in ((S_X, 64, 74, 8 * 240 * 512 * 2), (S_K, 66, 76, 8 * 32 * 512 * 128 * 2),
                                  (S_V, 68, 78, 8 * 32 * 512 * 128 * 2), (S_W, 70, 80, 512 * 4096 * 2)):
            e("s_cselect_b32 s%d, s%d, s%d" % (dst, pa, pb))
            e("s_cselect_b32 s%d, s%d, s%d" % (dst + 1, pa + 1, pb + 1))
            e("s_mov_b32 s%d, %d" % (dst + 2, sz))
            e("s_mov_b32 s%d, 0x00020000" % (dst + 3))
        e("s_cselect_b32 s%d, s72, s82" % S_WO)
        e("s_cselect_b32 s%d, s73, s83" % (S_WO + 1))
        e("s_mov_b32 s%d, %d" % (S_WO + 2, 4096 * 512 * 2))
        e("s_mov_b32 s%d, 0x00020000" % (S_WO + 3))
        e("s_lshr_b32 s%d, s%d, 1" % (S_WOS, S_T[0]))
        e("s_lshl_b32 s%d, s%d, 5" % (S_WOS, S_WOS))
        e("s_add_u32 s%d, s%d, s%d" % (S_WOS, S_WOS, S_T[1]))
        e("s_lshl_b32 s%d, s%d, 1" % (S_WOS, S_WOS))
        e("s_lshl_b32 s%d, s%d, 22" % (S_WOD, S_T[2]))
        e("s_lshl_b32 s63, s%d, 14" % S_WOS)
        e("s_add_u32 s%d, s%d, s63" % (S_WOD, S_WOD))
        e("s_add_u32 s%d, s%d, %d" % (S_WOD, S_WOD, WOT))
        e("s_lshr_b32 s63, s%d, 6" % S_WOS)
        e("s_lshl_b32 s63, s63, 8")
        e("s_and_b32 s%d, s%d, 63" % (S_WOS, S_WOS))
        e("s_lshl_b32 s%d, s%d, 16" % (S_WOS, S_WOS))
        e("s_add_u32 s%d, s%d, s63" % (S_WOS, S_WOS))
        e("s_mov_b32 s%d, s88" % S_WS)
        e("s_mov_b32 s%d, s89" % (S_WS + 1))
        e("s_mov_b32 s%d, %d" % (S_WS + 2, WOT + (8 << 20)))
        e("s_mov_b32 s%d, 0x00020000" % (S_WS + 3))
        e("s_lshl_b32 s%d, s%d, 5" % (S_T[5], S_T[3]))
        e("s_add_u32 s%d, s%d, s%d" % (S_T[5], S_T[5], S_T[4]))
        e("s_lshl_b32 s%d, s%d, 17" % (S_KVB[0], S_T[5]))
        e("s_lshl_b32 s%d, s%d, 8" % (S_WCB[0], S_T[4]))
        e("s_add_u32 s%d, s%d, %d" % (S_KVB[1], S_KVB[0], 8 * 131072))
        e("s_add_u32 s%d, s%d, %d" % (S_WCB[1], S_WCB[0], 8 * 256))
        e("s_mul_i32 s%d, s%d, %d" % (S_STB[0], S_T[2], 60 * 262144))
        e("s_lshl_b32 s%d, s%d, 13" % (S_T[5], S_T[4]))
        e("s_add_u32 s%d, s%d, s%d" % (S_STB[0], S_STB[0], S_T[5]))
        e("s_add_u32 s%d, s%d, 4096" % (S_STB[1], S_STB[0]))
        e("s_add_u32 s%d, s%d, %d" % (S_STB[2], S_STB[0], 65536))
        e("s_add_u32 s%d, s%d, %d" % (S_STB[3], S_STB[0], 65536 + 4096))
        c = math.log2(math.e) / math.sqrt(128.0)
        cb = struct.unpack("<I", struct.pack("<f", c))[0]
        e("s_mov_b32 s%d, 0x%08x" % (S_SCALE, cb))
        e("s_mov_b32 s%d, 0x%08x" % (S_SCALE + 1, cb))
        for i in range(4):
            e("s_mov_b32 s%d, %d" % (S_XSO[i], i * 8192))
        e("v_lshrrev_b32 v%d, 6, v0" % V_T1)
        e("s_nop 0")
        e("v_readfirstlane_b32 s%d, v%d" % (S_T[0], V_T1))
        e("s_lshl_b32 s%d, s%d, 10" % (S_WV1K, S_T[0]))
        e("s_lshl_b32 s62, s%d, 6" % S_T[0])
        e("s_lshr_b32 s%d, s%d, 2" % (S_CLS, S_T[0]))
        L = V_L[0]
        HH = V_L[1]
        e("v_and_b32 v%d, 63, v0" % L)
        e("v_lshrrev_b32 v%d, 5, v%d" % (HH, L))
        e("s_mul_i32 s%d, s%d, 240" % (S_T[1], S_T[3]))
        e("s_lshl_b32 s%d, s%d, 5" % (S_T[2], S_T[0]))
        e("s_add_u32 s%d, s%d, s%d" % (S_T[1], S_T[1], S_T[2]))
        RP, CH = V_ET[0], V_ET[1]
        e("v_lshrrev_b32 v%d, 4, v%d" % (V_ET[2], L))
        e("s_lshl_b32 s%d, s%d, 2" % (S_T[5], S_T[0]))
        e("v_add_u32 v%d, s%d, v%d" % (RP, S_T[5], V_ET[2]))
        e("v_and_b32 v%d, 15, v%d" % (CH, L))
        e("v_lshlrev_b32 v%d, 2, v%d" % (V_ET[3], V_ET[2]))
        e("v_xor_b32 v%d, v%d, v%d" % (V_ET[3], CH, V_ET[3]))
        e("v_lshlrev_b32 v%d, 4, v%d" % (V_ET[3], V_ET[3]))
        e("v_lshl_add_u32 v%d, v%d, 13, v%d" % (V_DW, RP, V_ET[3]))
        e("v_lshl_add_u32 v%d, v%d, 8, v%d" % (V_DV, RP, V_ET[3]))
        e("v_and_b32 v%d, 15, v%d" % (V_ET[3], RP))
        e("v_xor_b32 v%d, v%d, v%d" % (V_ET[3], CH, V_ET[3]))
        e("v_lshlrev_b32 v%d, 4, v%d" % (V_ET[3], V_ET[3]))
        e("v_lshl_add_u32 v%d, v%d, 8, v%d" % (V_DK, RP, V_ET[3]))
        e("v_lshrrev_b32 v%d, 3, v%d" % (V_ET[0], L))
        e("v_add_u32 v%d, s%d, v%d" % (V_ET[1], S_T[1], V_ET[0]))
        e("v_lshlrev_b32 v%d, 10, v%d" % (V_XOFF, V_ET[1]))
        e("v_and_b32 v%d, 7, v%d" % (V_ET[1], L))
        e("v_lshl_add_u32 v%d, v%d, 4, v%d" % (V_XOFF, V_ET[1], V_XOFF))
        first = self.issue_at[-1]
        for i in range(4):
            self.x_raw_load(0, i)
        for c in first[:2]:
            for op, cc in self.dma_ops(c):
                op()
        for i in range(4):
            self.x_raw_load(1, i)
        for c in first[2:4]:
            for op, cc in self.dma_ops(c):
                op()
        self.late_prologue = []
        for c in first[4:]:
            self.late_prologue.extend(self.dma_ops(c))
        e("v_lshrrev_b32 v%d, 4, v%d" % (V_ET[2], L))
        e("v_xor_b32 v%d, v%d, v%d" % (V_ET[2], V_ET[1], V_ET[2]))
        e("v_lshlrev_b32 v%d, 4, v%d" % (V_ET[2], V_ET[2]))
        e("v_lshl_add_u32 v%d, v%d, 7, v%d" % (V_ET[2], V_ET[0], V_ET[2]))
        e("s_lshl_b32 s%d, s%d, 2" % (S_T[5], S_WV1K))
        e("s_add_u32 s%d, s%d, %d" % (S_T[5], S_T[5], XSCR))
        e("v_add_u32 v%d, s%d, v%d" % (V_XW[0], S_T[5], V_ET[2]))
        e("v_xor_b32 v%d, 64, v%d" % (V_XW[1], V_XW[0]))
        e("v_and_b32 v%d, 31, v%d" % (V_ET[0], L))
        e("v_bfe_u32 v%d, v%d, 1, 3" % (V_ET[1], L))
        e("v_xor_b32 v%d, v%d, v%d" % (V_ET[1], V_ET[1], HH))
        for ks in range(4):
            e("v_xor_b32 v%d, %d, v%d" % (V_ET[2], 2 * ks, V_ET[1]))
            e("v_lshlrev_b32 v%d, 4, v%d" % (V_ET[2], V_ET[2]))
            e("v_lshl_add_u32 v%d, v%d, 7, v%d" % (V_ET[2], V_ET[0], V_ET[2]))
            e("v_add_u32 v%d, s%d, v%d" % (V_XR[ks], S_T[5], V_ET[2]))
        R = V_ET[0]
        e("v_and_b32 v%d, 31, v%d" % (V_ET[3], L))
        e("v_add_u32 v%d, s%d, v%d" % (R, S_T[1], V_ET[3]))
        e("v_lshrrev_b32 v%d, 5, v%d" % (V_ET[1], R))
        e("v_lshlrev_b32 v%d, 18, v%d" % (V_ET[1], V_ET[1]))
        e("v_and_b32 v%d, 31, v%d" % (V_ET[2], R))
        e("v_lshlrev_b32 v%d, 4, v%d" % (V_ET[2], V_ET[2]))
        e("v_lshl_add_u32 v%d, v%d, 9, v%d" % (V_ET[2], HH, V_ET[2]))
        e("v_add_u32 v%d, v%d, v%d" % (V_STOFF, V_ET[1], V_ET[2]))
        e("v_add_u32 v%d, s%d, v%d" % (V_ET[3], S_T[2], V_ET[3]))
        e("v_mov_b32 v%d, 0x7f000000" % V_ET[0])
        e("v_cmp_gt_u32 vcc, 240, v%d" % V_ET[3])
        e("s_nop 1")
        e("v_cndmask_b32 v%d, v%d, v%d, vcc" % (V_STOFF, V_ET[0], V_STOFF))
        r_, c4 = V_ET[0], V_ET[1]
        e("v_bfe_u32 v%d, v%d, 2, 2" % (r_, L))
        e("v_and_b32 v%d, 3, v%d" % (c4, L))
        e("v_lshl_add_u32 v%d, v%d, 3, v%d" % (V_ET[2], HH, r_))
        e("v_lshlrev_b32 v%d, 8, v%d" % (V_ET[2], V_ET[2]))
        e("v_bfe_u32 v%d, v%d, 4, 1" % (V_ET[3], L))
        e("v_lshl_add_u32 v%d, v%d, 5, v%d" % (V_ET[2], V_ET[3], V_ET[2]))
        e("v_and_b32 v%d, 1, v%d" % (V_ET[3], c4))
        e("v_lshl_add_u32 v%d, v%d, 4, v%d" % (V_ET[2], V_ET[3], V_ET[2]))
        e("v_lshrrev_b32 v%d, 1, v%d" % (V_ET[3], c4))
        e("v_lshl_add_u32 v%d, v%d, 3, v%d" % (V_ET[2], V_ET[3], V_ET[2]))
        for t in range(4):
            e("v_xor_b32 v%d, %d, v%d" % (V_ET[3], t, r_))
            e("v_lshl_add_u32 v%d, v%d, 6, v%d" % (V_VW[t], V_ET[3], V_ET[2]))
        key = V_ET[0]
        e("v_and_b32 v%d, 0x13, v%d" % (key, L))
        e("v_bfe_u32 v%d, v%d, 2, 1" % (V_ET[1], L))
        e("v_lshl_add_u32 v%d, v%d, 3, v%d" % (key, V_ET[1], key))
        e("v_bfe_u32 v%d, v%d, 3, 1" % (V_ET[1], L))
        e("v_lshl_add_u32 v%d, v%d, 2, v%d" % (key, V_ET[1], key))
        e("v_and_b32 v%d, 15, v%d" % (V_ET[1], key))
        e("v_xor_b32 v%d, v%d, v%d" % (V_ET[1], V_ET[1], HH))
        for s in range(8):
            e("v_xor_b32 v%d, %d, v%d" % (V_ET[2], 2 * s, V_ET[1]))
            e("v_lshlrev_b32 v%d, 4, v%d" % (V_ET[2], V_ET[2]))
            e("v_lshl_add_u32 v%d, v%d, 8, v%d" % (V_KA[s], key, V_ET[2]))
        e("v_and_b32 v%d, 0xff, v0" % V_L[0])
        e("v_lshlrev_b32 v%d, 7, v%d" % (V_L[0], V_L[0]))
        need = []
        for c in self.steps[0]:
            need += self.dma_tags(c)
        a.wait(vm=need)
        a.emit("s_barrier")
        self.stamp()

    def gen(self):
        a = self.a
        self.frags = self.build_frags()
        for cls in (0, 1):
            a.new_trace(cls)
            self.prologue()
            self.body()
        a.trace = False
        a.reset_sites(0)
        self.prologue()
        self.body()
        if self.stamps:
            self.stamp()
            a.emit("v_subrev_u32 v%d, s90, v%d" % (V_STMP2, V_STMP2))
            a.emit("s_memrealtime s[60:61]")
            a.emit("s_waitcnt lgkmcnt(0)")
            a.emit("s_sub_u32 s60, s60, s92")
            a.emit("v_mov_b32 v%d, s60" % V_T1)
            a.emit("v_cmp_eq_u32 vcc, s62, v0")
            a.emit("s_nop 1")
            a.emit("v_cndmask_b32 v%d, v%d, v%d, vcc" % (V_STMP2, V_STMP2, V_T1))
            a.emit("s_add_u32 s62, s62, 1")
            a.emit("v_mov_b32 v%d, s92" % V_T1)
            a.emit("v_cmp_eq_u32 vcc, s62, v0")
            a.emit("s_nop 1")
            a.emit("v_cndmask_b32 v%d, v%d, v%d, vcc" % (V_STMP2, V_STMP2, V_T1))
            a.emit("v_lshlrev_b32 v%d, 2, v0" % V_T1)
            a.emit("s_lshl_b32 s60, s2, 11")
            a.emit("s_add_u32 s60, s60, %d" % (64 << 20))
            a.emit("s_mov_b32 s%d, 0x10000000" % (S_WS + 2))
            a.emit("buffer_store_dword v%d, v%d, s[%d:%d], s60 offen" % (V_STMP2, V_T1, S_WS, S_WS + 3))
        a.label("L_end")
        a.emit("s_endpgm")
        for g in range(32):
            if g % 16 != 0:
                self.slow_path(g)

V_STMP2 = 11
```

```python
from asmlib import Asm
import os
EXP = os.environ.get('EXP', '')

NSH = 5
SLOT2 = 16384
RINGH = NSH * SLOT2
LA2 = 5
NFR2 = 8
NB = 16
PART = 96 << 20
WOT = 32 << 20

V_T1 = 1
V_BOFF = 2
V_DMA = 3
V_AA = [4, 5, 6, 7]
V_ST = 8
V_RED = 9
V_TMP = [10, 11, 172, 173, 174]
V_FR = 12
V_ACC = 44
V_B = 108
V_OUT = 176
V_PO = 175

S_WO, S_WS, S_OUT, S_WSB, S_DBG = 4, 8, 12, 32, 36
S_T = [16, 17, 18, 19, 20, 21]
S_PSL, S_PSW, S_WVL = 22, 23, 24
S_GOFF = 25
S_BOFF = 26
S_CNT = 27
S_CSL = 28
S_DELTA = 29
S_HB = 30
S_HALF = 31
S_TILE = 40
S_KH = 41
S_PB = 42

def vr(b, n):
    return "v[%d:%d]" % (b, b + n - 1)

class K2:
    def __init__(self, a):
        self.a = a

    def dma_ops(self, ci):
        a = self.a
        ops = []
        for i in range(4):
            def op(i=i):
                a.emit("s_add_u32 m0, s%d, %d" % (S_PSW, i * 4096))
                a.emit("s_add_u32 s%d, s%d, %d" % (S_T[0], S_GOFF, i * 4096))
                a.vmem("buffer_load_dwordx4 v%d, s[%d:%d], s%d offen lds" % (V_DMA, S_WO, S_WO + 3, S_T[0]), ('dma', ci, i))
                if i == 3:
                    a.emit("s_add_u32 s%d, s%d, %d" % (S_GOFF, S_GOFF, 16384))
                    a.emit("s_add_u32 s%d, s%d, %d" % (S_PSL, S_PSL, SLOT2))
                    a.emit("s_cmp_eq_u32 s%d, %d" % (S_PSL, RINGH))
                    a.emit("s_cselect_b32 s%d, 0, s%d" % (S_PSL, S_PSL))
                    a.emit("s_add_u32 s%d, s%d, s%d" % (S_PSW, S_PSL, S_WVL))
            ops.append(op)
        return ops

    def dma_tags(self, ci):
        return [('dma', ci, i) for i in range(4)]

    def b_load(self, s_abs, pre=False):
        a = self.a
        loc = s_abs % NB
        grp = loc // 4
        a.emit("s_add_u32 s%d, s%d, %d" % (S_T[1], S_BOFF, (grp * 4096 - (NB * 1024 if pre else 0)) & 0xffffffff))
        a.vmem("buffer_load_dwordx4 %s, v%d, s[%d:%d], s%d offen offset:%d" %
               (vr(V_B + loc * 4, 4), V_BOFF, S_WSB, S_WSB + 3, S_T[1], (loc % 4) * 1024), ('b', s_abs))

    def issue_frag(self, f):
        a = self.a
        s = f // 4
        t = f % 4
        ks = s % 4
        r = V_FR + (f % NFR2) * 4
        for e2 in range(2):
            a.ds("ds_read_b64_tr_b16 %s, v%d offset:%d" % (vr(r + 2 * e2, 2), V_AA[t], (16 * ks + 4 * e2) * 256), ('fr', f, e2))

    def slot_adv(self):
        a = self.a
        a.emit("s_mov_b32 s%d, s%d" % (S_DELTA, S_CSL))
        a.emit("s_add_u32 s%d, s%d, %d" % (S_CSL, S_CSL, SLOT2))
        a.emit("s_cmp_eq_u32 s%d, %d" % (S_CSL, RINGH))
        a.emit("s_cselect_b32 s%d, 0, s%d" % (S_CSL, S_CSL))
        a.emit("s_sub_u32 s%d, s%d, s%d" % (S_DELTA, S_CSL, S_DELTA))
        for t in range(4):
            a.emit("v_add_u32 v%d, s%d, v%d" % (V_AA[t], S_DELTA, V_AA[t]))

    def body(self, trip, first=False):
        a = self.a
        if not first:
            a.emit("s_cmp_eq_u32 s%d, 3" % S_CNT)
            a.emit("s_cselect_b32 s%d, 0, s%d" % (S_WO + 2, S_WO + 2))
            a.emit("s_cselect_b32 s%d, 0, s%d" % (S_WSB + 2, S_WSB + 2))
        extra = []
        if first:
            for s2 in range(8, 12):
                extra.append(lambda s2=s2: self.b_load(s2, pre=True))
            extra.extend(self.dma_ops(2))
            for s2 in range(12, 16):
                extra.append(lambda s2=s2: self.b_load(s2, pre=True))
            extra.extend(self.dma_ops(3))
        for q in range(4):
            ci = trip * 4 + q
            a.wait(vm=self.dma_tags(ci + 1))
            a.emit("s_barrier")
            dma = self.dma_ops(ci + NSH - 1)
            if first and q == 0:
                deferred = dma
                dma = [lambda: None] * 4
            if first and q == 1:
                d0 = deferred
                d1 = dma
                dma = [(lambda x=x, y=y: (x(), y())) for x, y in zip([d0[0], d0[2], d1[0], d1[2]], [d0[1], d0[3], d1[1], d1[3]])]
            for ks in range(4):
                s = ci * 4 + ks
                for t in range(4):
                    f = 4 * s + t
                    a.wait(vm=[('b', s)] if t == 0 else [], lg=[('fr', f, 1)])
                    acc = V_ACC + t * 16
                    a.emit("v_mfma_f32_32x32x16_bf16 %s, %s, %s, %s" %
                           (vr(acc, 16), vr(V_FR + (f % NFR2) * 4, 4), vr(V_B + (s % NB) * 4, 4), vr(acc, 16)))
                    nf = f + LA2
                    if nf % 16 == 0:
                        self.slot_adv()
                    self.issue_frag(nf)
                    if t == 1:
                        dma[ks]()
                    if extra:
                        extra.pop(0)()
                self.b_load(s + NB)
        a.emit("s_add_u32 s%d, s%d, %d" % (S_BOFF, S_BOFF, NB * 1024))

    def prologue(self):
        a = self.a
        e = a.emit
        e("s_cmp_ge_u32 s2, 256")
        e("s_cbranch_scc1 L2_end")
        if 'st2' in EXP:
            e("s_memtime s[80:81]")
        e("s_load_dwordx2 s[64:65], s[0:1], 32")
        e("s_load_dwordx2 s[66:67], s[0:1], 72")
        e("s_load_dwordx4 s[68:71], s[0:1], 80")
        e("s_load_dwordx2 s[72:73], s[0:1], 96")
        e("s_and_b32 s%d, s2, 7" % S_T[0])
        e("s_lshr_b32 s%d, s2, 3" % S_T[1])
        e("s_lshr_b32 s%d, s%d, 2" % (S_T[2], S_T[0]))
        e("s_and_b32 s%d, s%d, 3" % (S_T[3], S_T[0]))
        e("s_lshl_b32 s%d, s%d, 2" % (S_T[3], S_T[3]))
        e("s_lshr_b32 s%d, s%d, 3" % (S_T[4], S_T[1]))
        e("s_add_u32 s%d, s%d, s%d" % (S_T[3], S_T[3], S_T[4]))
        e("s_bfe_u32 s%d, s%d, 0x20001" % (S_T[4], S_T[1]))
        e("s_and_b32 s%d, s%d, 1" % (S_KH, S_T[1]))
        e("s_cmp_ge_u32 s%d, 15" % S_T[3])
        e("s_cbranch_scc1 L2_end")
        e("s_waitcnt lgkmcnt(0)")
        e("s_cmp_eq_u32 s%d, 0" % S_T[2])
        e("s_mov_b32 s%d, s72" % S_WO)
        e("s_mov_b32 s%d, s73" % (S_WO + 1))
        e("s_mov_b32 s%d, %d" % (S_WO + 2, WOT + (8 << 20)))
        e("s_mov_b32 s%d, 0x00020000" % (S_WO + 3))
        for r in (S_WS, S_WSB):
            e("s_mov_b32 s%d, s72" % r)
            e("s_mov_b32 s%d, s73" % (r + 1))
            e("s_mov_b32 s%d, %d" % (r + 2, (2 * 60 * 262144) if r == S_WSB else (PART + 120 * 131072)))
            e("s_mov_b32 s%d, 0x00020000" % (r + 3))
        e("s_mov_b32 s%d, s68" % S_OUT)
        e("s_mov_b32 s%d, s69" % (S_OUT + 1))
        e("s_mov_b32 s%d, %d" % (S_OUT + 2, 1920 * 1024 * 2))
        e("s_mov_b32 s%d, 0x00020000" % (S_OUT + 3))
        e("s_mov_b32 s%d, s70" % S_DBG)
        e("s_mov_b32 s%d, s71" % (S_DBG + 1))
        e("s_mov_b32 s%d, 256" % (S_DBG + 2))
        e("s_mov_b32 s%d, 0x00020000" % (S_DBG + 3))
        e("s_mul_i32 s%d, s%d, 15" % (S_TILE, S_T[2]))
        e("s_add_u32 s%d, s%d, s%d" % (S_TILE, S_TILE, S_T[3]))
        e("s_lshl_b32 s%d, s%d, 2" % (S_TILE, S_TILE))
        e("s_add_u32 s%d, s%d, s%d" % (S_TILE, S_TILE, S_T[4]))
        e("v_lshrrev_b32 v%d, 6, v0" % V_T1)
        e("s_nop 0")
        e("v_readfirstlane_b32 s%d, v%d" % (S_T[5], V_T1))
        e("s_lshr_b32 s%d, s%d, 2" % (S_HALF, S_T[5]))
        e("s_and_b32 s%d, s%d, 3" % (S_T[5], S_T[5]))
        e("s_mul_i32 s%d, s%d, %d" % (S_HB, S_HALF, RINGH))
        e("s_lshl_b32 s%d, s%d, 10" % (S_WVL, S_T[5]))
        e("s_add_u32 s%d, s%d, s%d" % (S_WVL, S_WVL, S_HB))
        e("s_mov_b32 s%d, s%d" % (S_PSW, S_WVL))
        e("s_mov_b32 s%d, 0" % S_PSL)
        e("s_mov_b32 s%d, 0" % S_CSL)
        L = V_TMP[0]
        HH = V_TMP[1]
        e("v_and_b32 v%d, 63, v0" % L)
        e("v_lshrrev_b32 v%d, 5, v%d" % (HH, L))
        e("s_lshl_b32 s%d, s%d, 1" % (S_CNT, S_KH))
        e("s_add_u32 s%d, s%d, s%d" % (S_CNT, S_CNT, S_HALF))
        e("s_lshl_b32 s%d, s%d, 18" % (S_GOFF, S_CNT))
        e("s_lshl_b32 s%d, s%d, 20" % (S_T[0], S_T[4]))
        e("s_add_u32 s%d, s%d, s%d" % (S_GOFF, S_GOFF, S_T[0]))
        e("s_lshl_b32 s%d, s%d, 22" % (S_T[0], S_T[2]))
        e("s_add_u32 s%d, s%d, s%d" % (S_GOFF, S_GOFF, S_T[0]))
        e("s_add_u32 s%d, s%d, %d" % (S_GOFF, S_GOFF, WOT))
        e("s_lshl_b32 s%d, s%d, 16" % (S_BOFF, S_CNT))
        e("s_mul_i32 s%d, s%d, 60" % (S_CNT, S_T[2]))
        e("s_lshl_b32 s%d, s%d, 2" % (S_T[0], S_T[3]))
        e("s_add_u32 s%d, s%d, s%d" % (S_T[0], S_T[0], S_T[5]))
        e("s_add_u32 s%d, s%d, s%d" % (S_CNT, S_CNT, S_T[0]))
        e("s_lshl_b32 s%d, s%d, 18" % (S_CNT, S_CNT))
        e("s_add_u32 s%d, s%d, s%d" % (S_BOFF, S_BOFF, S_CNT))
        e("v_lshlrev_b32 v%d, 4, v%d" % (V_BOFF, L))
        e("s_lshl_b32 s%d, s%d, 5" % (S_T[0], S_T[0]))
        e("v_and_b32 v%d, 31, v%d" % (V_T1, L))
        e("v_add_u32 v%d, s%d, v%d" % (V_T1, S_T[0], V_T1))
        e("v_lshlrev_b32 v%d, 11, v%d" % (V_ST, V_T1))
        e("v_lshl_add_u32 v%d, v%d, 4, v%d" % (V_ST, HH, V_ST))
        e("s_lshl_b32 s%d, s%d, 10" % (S_T[0], S_T[2]))
        e("s_lshl_b32 s%d, s%d, 8" % (S_T[1], S_T[4]))
        e("s_add_u32 s%d, s%d, s%d" % (S_T[0], S_T[0], S_T[1]))
        e("v_add_u32 v%d, s%d, v%d" % (V_ST, S_T[0], V_ST))
        e("v_lshrrev_b32 v%d, 4, v%d" % (V_TMP[2], L))
        e("v_lshlrev_b32 v%d, 2, v%d" % (V_TMP[3], V_TMP[2]))
        e("v_and_b32 v%d, 15, v%d" % (V_TMP[4], L))
        e("v_xor_b32 v%d, v%d, v%d" % (V_TMP[3], V_TMP[3], V_TMP[4]))
        e("v_lshlrev_b32 v%d, 4, v%d" % (V_TMP[3], V_TMP[3]))
        e("s_lshl_b32 s%d, s%d, 2" % (S_T[0], S_T[5]))
        e("v_add_u32 v%d, s%d, v%d" % (V_TMP[2], S_T[0], V_TMP[2]))
        e("v_lshlrev_b32 v%d, 4, v%d" % (V_DMA, L))
        e("s_lshl_b32 s%d, s%d, 10" % (S_T[0], S_T[5]))
        e("v_add_u32 v%d, s%d, v%d" % (V_DMA, S_T[0], V_DMA))
        e("s_lshl_b32 s%d, s%d, 17" % (S_PB, S_TILE))
        e("s_add_u32 s%d, s%d, %d" % (S_PB, S_PB, PART))
        e("s_lshl_b32 s%d, s%d, 14" % (S_T[0], S_T[5]))
        e("v_lshlrev_b32 v%d, 4, v%d" % (V_RED, L))
        e("v_add_u32 v%d, s%d, v%d" % (V_RED, S_T[0], V_RED))
        for op in self.dma_ops(0):
            op()
        for s in range(4):
            self.b_load(s)
        for op in self.dma_ops(1):
            op()
        r_, t2, t3 = V_TMP[2], V_TMP[3], V_TMP[4]
        e("v_bfe_u32 v%d, v%d, 2, 2" % (r_, L))
        e("v_lshl_add_u32 v%d, v%d, 3, v%d" % (t2, HH, r_))
        e("v_lshlrev_b32 v%d, 8, v%d" % (t2, t2))
        e("v_bfe_u32 v%d, v%d, 4, 1" % (t3, L))
        e("v_lshl_add_u32 v%d, v%d, 5, v%d" % (t2, t3, t2))
        e("v_and_b32 v%d, 1, v%d" % (t3, L))
        e("v_lshl_add_u32 v%d, v%d, 4, v%d" % (t2, t3, t2))
        e("v_bfe_u32 v%d, v%d, 1, 1" % (t3, L))
        e("v_lshl_add_u32 v%d, v%d, 3, v%d" % (t2, t3, t2))
        e("v_add_u32 v%d, s%d, v%d" % (t2, S_HB, t2))
        for t in range(4):
            e("v_xor_b32 v%d, %d, v%d" % (t3, t, r_))
            e("v_lshl_add_u32 v%d, v%d, 6, v%d" % (V_AA[t], t3, t2))
        for i in range(64):
            e("v_mov_b32 v%d, 0" % (V_ACC + i))
        for s in range(4, 8):
            self.b_load(s)
        e("s_add_u32 s%d, s%d, %d" % (S_BOFF, S_BOFF, NB * 1024))
        a.wait(vm=self.dma_tags(0))
        e("s_barrier")
        if 'st2' in EXP:
            e("s_memtime s[82:83]")
            e("s_waitcnt lgkmcnt(0)")
        for f in range(LA2):
            self.issue_frag(f)
        e("s_mov_b32 s%d, 0" % S_CNT)

    def epilogue(self):
        a = self.a
        e = a.emit
        e("s_nop 15")
        e("s_nop 3")
        e("s_waitcnt vmcnt(0) lgkmcnt(0)")
        e("s_barrier")
        if 'st2' in EXP:
            e("s_memtime s[84:85]")
            e("s_waitcnt lgkmcnt(0)")
        e("s_cmp_eq_u32 s%d, 0" % S_HALF)
        e("s_cbranch_scc1 L2_h0")
        for i in range(8):
            e("ds_write_b128 v%d, %s offset:%d" % (V_RED, vr(V_ACC + 4 * i, 4), 8192 + i * 1024))
        e("s_waitcnt lgkmcnt(0)")
        e("s_barrier")
        for i in range(8):
            e("ds_read_b128 %s, v%d offset:%d" % (vr(V_B + 4 * i, 4), V_RED, i * 1024))
        e("s_waitcnt lgkmcnt(0)")
        for i in range(32):
            e("v_add_f32 v%d, v%d, v%d" % (V_ACC + i, V_ACC + 32 + i, V_B + i))
        e("s_branch L2_j")
        a.label("L2_h0")
        for i in range(8):
            e("ds_write_b128 v%d, %s offset:%d" % (V_RED, vr(V_ACC + 32 + 4 * i, 4), i * 1024))
        e("s_waitcnt lgkmcnt(0)")
        e("s_barrier")
        for i in range(8):
            e("ds_read_b128 %s, v%d offset:%d" % (vr(V_B + 4 * i, 4), V_RED, 8192 + i * 1024))
        e("s_waitcnt lgkmcnt(0)")
        for i in range(32):
            e("v_add_f32 v%d, v%d, v%d" % (V_ACC + i, V_ACC + i, V_B + i))
        a.label("L2_j")
        e("s_lshl_b32 s%d, s%d, 13" % (S_T[2], S_HALF))
        e("s_add_u32 s%d, s%d, s%d" % (S_PB, S_PB, S_T[2]))
        e("s_lshl_b32 s%d, s%d, 16" % (S_T[0], S_KH))
        e("s_add_u32 s%d, s%d, s%d" % (S_T[0], S_T[0], S_PB))
        for g in range(2):
            e("s_add_u32 s%d, s%d, %d" % (S_T[1], S_T[0], g * 4096))
            for i in range(4):
                e("buffer_store_dwordx4 %s, v%d, s[%d:%d], s%d offen offset:%d sc1" %
                  (vr(V_ACC + 16 * g + 4 * i, 4), V_RED, S_WS, S_WS + 3, S_T[1], i * 1024))
        e("s_waitcnt vmcnt(0)")
        e("s_barrier")
        e("s_cmp_eq_u32 s%d, 0" % S_WVL)
        e("s_cbranch_scc0 L2_noat")
        e("s_lshr_b32 s%d, s%d, 1" % (S_T[0], S_TILE))
        e("s_lshl_b32 s%d, s%d, 2" % (S_T[0], S_T[0]))
        e("s_and_b32 s%d, s%d, 1" % (S_T[1], S_TILE))
        e("s_lshl_b32 s%d, s%d, 4" % (S_T[1], S_T[1]))
        e("s_lshl_b32 s%d, 1, s%d" % (S_T[2], S_T[1]))
        e("v_mov_b32 v%d, s%d" % (V_TMP[2], S_T[2]))
        e("v_mov_b32 v%d, s%d" % (V_TMP[3], S_T[0]))
        e("s_mov_b64 s[44:45], exec")
        e("s_mov_b64 exec, 1")
        e("buffer_atomic_add v%d, v%d, s[%d:%d], 0 offen sc0 sc1" % (V_TMP[2], V_TMP[3], S_DBG, S_DBG + 3))
        e("s_waitcnt vmcnt(0)")
        e("v_lshrrev_b32 v%d, s%d, v%d" % (V_TMP[2], S_T[1], V_TMP[2]))
        e("v_and_b32 v%d, 0xffff, v%d" % (V_TMP[2], V_TMP[2]))
        e("v_mov_b32 v%d, 65536" % V_TMP[3])
        e("ds_write_b32 v%d, v%d" % (V_TMP[3], V_TMP[2]))
        e("s_waitcnt lgkmcnt(0)")
        e("s_mov_b64 exec, s[44:45]")
        a.label("L2_noat")
        e("s_barrier")
        e("v_mov_b32 v%d, 65536" % V_TMP[3])
        e("ds_read_b32 v%d, v%d" % (V_TMP[2], V_TMP[3]))
        e("s_waitcnt lgkmcnt(0)")
        e("v_readfirstlane_b32 s%d, v%d" % (S_T[0], V_TMP[2]))
        e("s_and_b32 s%d, s%d, 1" % (S_T[0], S_T[0]))
        e("s_cmp_eq_u32 s%d, 0" % S_T[0])
        e("s_cbranch_scc1 L2_end")
        e("s_xor_b32 s%d, s%d, 1" % (S_T[0], S_KH))
        e("s_lshl_b32 s%d, s%d, 16" % (S_T[0], S_T[0]))
        e("s_add_u32 s%d, s%d, s%d" % (S_T[0], S_T[0], S_PB))
        for g in range(2):
            e("s_add_u32 s%d, s%d, %d" % (S_T[1], S_T[0], g * 4096))
            for i in range(4):
                e("buffer_load_dwordx4 %s, v%d, s[%d:%d], s%d offen offset:%d sc1" %
                  (vr(V_B + 16 * g + 4 * i, 4), V_RED, S_WS, S_WS + 3, S_T[1], i * 1024))
        e("s_lshl_b32 s%d, s%d, 7" % (S_T[2], S_HALF))
        for t in range(2):
            e("s_waitcnt vmcnt(%d)" % (4 - 4 * t + 2 * t))
            for i in range(16):
                e("v_add_f32 v%d, v%d, v%d" % (V_ACC + 16 * t + i, V_ACC + 16 * t + i, V_B + 16 * t + i))
            for i in range(0, 16, 2):
                e("v_cvt_pk_bf16_f32 v%d, v%d, v%d" % (V_OUT + t * 8 + i // 2, V_ACC + t * 16 + i, V_ACC + t * 16 + i + 1))
            for G in range(2):
                e("buffer_store_dwordx4 %s, v%d, s[%d:%d], s%d offen offset:%d" %
                  (vr(V_OUT + t * 8 + 4 * G, 4), V_ST, S_OUT, S_OUT + 3, S_T[2], t * 64 + G * 32))

    def gen(self):
        a = self.a
        a.new_trace(0)
        self.prologue()
        self.body(0, first=True)
        base = a.site
        for trip in range(1, 4):
            a.reset_sites(base)
            self.body(trip)
        a.trace = False
        a.reset_sites(0)
        self.prologue()
        self.body(0, first=True)
        a.emit("s_mov_b32 s%d, 1" % S_CNT)
        a.label("L2_loop")
        self.body(1)
        a.emit("s_add_u32 s%d, s%d, 1" % (S_CNT, S_CNT))
        a.emit("s_cmp_lt_u32 s%d, 4" % S_CNT)
        a.emit("s_cbranch_scc1 L2_loop")
        self.epilogue()
        a.label("L2_end")
        if 'st2' in EXP:
            e = a.emit
            e("s_cmp_ge_u32 s2, 256")
            e("s_cbranch_scc1 L2_end2")
            e("s_waitcnt vmcnt(0)")
            e("s_memtime s[86:87]")
            e("s_waitcnt lgkmcnt(0)")
            e("s_sub_u32 s82, s82, s80")
            e("s_sub_u32 s84, s84, s80")
            e("s_sub_u32 s86, s86, s80")
            e("v_mov_b32 v20, s82")
            e("v_mov_b32 v21, s84")
            e("v_mov_b32 v22, s86")
            e("v_mov_b32 v23, 0")
            e("v_lshrrev_b32 v24, 6, v0")
            e("v_lshlrev_b32 v24, 4, v24")
            e("s_lshl_b32 s80, s2, 7")
            e("s_add_u32 s80, s80, %d" % (64 << 20))
            e("s_load_dwordx2 s[8:9], s[0:1], 96")
            e("s_mov_b32 s10, 0x10000000")
            e("s_mov_b32 s11, 0x00020000")
            e("s_waitcnt lgkmcnt(0)")
            e("buffer_store_dwordx4 v[20:23], v24, s[8:11], s80 offen")
            a.label("L2_end2")
        a.emit("s_endpgm")
```

```python
class Asm:
    def __init__(self):
        self.lines = []
        self.trace = True
        self.vm = []
        self.lg = []
        self.vmi = {}
        self.lgi = {}
        self.site = 0
        self.site_vm = {}
        self.site_lg = {}
        self.uniq = 0
        self.dry = False
        self.cls = 0

    def new_trace(self, cls):
        self.trace = True
        self.cls = cls
        self.vm = []; self.lg = []; self.vmi = {}; self.lgi = {}
        self.site = 0

    def cond(self, cls, fn, sreg):
        import os
        if 'cond' not in os.environ.get('EXP', ''):
            if cls == 0:
                fn()
            return
        if self.trace:
            if self.cls == cls:
                fn()
            else:
                self.dry = True
                fn()
                self.dry = False
        else:
            self.uniq += 1
            lab = "L_c%d" % self.uniq
            self.lines.append("    s_cmp_eq_u32 s%d, %d" % (sreg, cls))
            self.lines.append("    s_cbranch_scc0 %s" % lab)
            fn()
            self.lines.append(lab + ":")

    def reset_sites(self, base):
        self.site = base

    def emit(self, s):
        if not self.trace:
            self.lines.append("    " + s)

    def label(self, s):
        if not self.trace:
            self.lines.append(s + ":")

    def comment(self, s):
        if not self.trace:
            self.lines.append("    ; " + s)

    def vmem(self, s, tag=None):
        if self.dry:
            return
        if self.trace:
            self.vm.append(tag)
            if tag is not None:
                self.vmi[tag] = len(self.vm) - 1
        else:
            self.lines.append("    " + s)

    def ds(self, s, tag=None):
        if self.dry:
            return
        if self.trace:
            self.lg.append(tag)
            if tag is not None:
                self.lgi[tag] = len(self.lg) - 1
        else:
            self.lines.append("    " + s)

    def wait(self, vm=(), lg=()):
        site = self.site
        self.site += 1
        if self.dry:
            return
        if self.trace:
            if vm:
                idx = max(self.vmi[t] for t in vm)
                n = len(self.vm) - 1 - idx
                self.site_vm[site] = min(self.site_vm.get(site, 63), n, 63)
            if lg:
                idx = max(self.lgi[t] for t in lg)
                n = len(self.lg) - 1 - idx
                self.site_lg[site] = min(self.site_lg.get(site, 15), n, 15)
        else:
            parts = []
            if site in self.site_vm:
                parts.append("vmcnt(%d)" % min(self.site_vm[site], 62))
            if site in self.site_lg:
                parts.append("lgkmcnt(%d)" % min(self.site_lg[site], 14))
            if parts:
                self.lines.append("    s_waitcnt " + " ".join(parts))

    def text(self):
        return "\n".join(self.lines) + "\n"
```

```python
from asmlib import Asm
import math, struct, os
EXP = os.environ.get('EXP', '')

SLOT = 16384
NSLOT = 10
XSCR = 8 * SLOT
LA = int(os.environ.get('LA', '5'))
NFR = 7
THR = 256.0

V_T1 = 1
V_XOFF = 2
V_XW = [3, 4]
V_STOFF = 5
V_DW, V_DV, V_DK = 6, 7, 8
V_L = [9, 12]
V_RC = 10
V_NM = 13
V_TS = [14, 15]
V_ET = [16, 17, 18, 19]
V_VW = [20, 21, 22, 23]
V_KA = [24 + i for i in range(8)]
V_FR = 32
V_XR = [60, 61, 62, 63]
V_THR = 60
V_STMP = 61
V_EP = 62
V_QACC = 64
V_S = [64, 80]
V_P = [96, 104]
V_NEGM = 112
V_Q = 128
A_O = 0
A_XF = 64

S_X, S_W, S_K, S_V, S_WS = 4, 8, 12, 16, 20
S_KVB = [26, 28]
S_WCB = [27, 29]
S_T = [34, 35, 36, 37, 38, 39]
S_SCALE = 40
S_WV1K = 42
S_STB = [43, 44, 45, 46]
S_XSO = [52, 53, 54, 55]
S_CLS = 47
S_WO = 56
S_WOS = 60 - 10
S_WOD = 51
WOT = 32 << 20
V_WOV = 152
STFLAG = os.environ.get('STFLAG', '')
SHIFT = int(os.environ.get('SHIFT', '8'))

def vr(b, n):
    return "v[%d:%d]" % (b, b + n - 1)
def ar(b, n):
    return "a[%d:%d]" % (b, b + n - 1)

class K1:
    def __init__(self, a, stamps=False):
        self.a = a
        self.stamps = stamps
        self.plan()

    def plan(self):
        steps = []
        for j in range(8):
            steps.append([('W', 0, j), ('W', 1, j)])
        for T in range(17):
            st = []
            if T < 16:
                st.append(('K', T // 8, T % 8))
            if T >= 1:
                st.append(('V', (T - 1) // 8, (T - 1) % 8))
            steps.append(st)
        self.steps = steps
        seq = [c for st in steps for c in st]
        self.seq = seq
        cons_step = {}
        for si, st in enumerate(steps):
            for c in st:
                cons_step[c] = si
        self.cons_step = cons_step
        free_at = {s: -1 for s in range(8)}
        free_at[8] = 8
        free_at[9] = 8
        self.slot = {}
        self.issue_step = {}
        for c in seq:
            s = min(free_at, key=lambda k: (free_at[k], k))
            self.slot[c] = s
            self.issue_step[c] = free_at[s]
            free_at[s] = cons_step[c] + 1
            assert self.issue_step[c] <= cons_step[c] - 2 or self.issue_step[c] == -1, (c, self.issue_step[c], cons_step[c])
        self.issue_at = {}
        for c in seq:
            self.issue_at.setdefault(self.issue_step[c], []).append(c)

    def stamp(self):
        if not self.stamps:
            return
        a = self.a
        a.emit("s_memtime s[60:61]")
        a.emit("s_waitcnt lgkmcnt(0)")
        a.emit("v_mov_b32 v%d, s60" % V_T1)
        a.emit("v_cmp_eq_u32 vcc, s62, v0")
        a.emit("s_nop 1")
        a.emit("v_cndmask_b32 v%d, v%d, v%d, vcc" % (V_STMP2, V_STMP2, V_T1))
        a.emit("s_add_u32 s62, s62, 1")

    def dma_ops(self, c):
        a = self.a
        kind, u, j = c
        ops = []
        for i in range(2):
            def op(i=i):
                if kind == 'W':
                    srd, base, goff, vo = S_W, S_WCB[u], j * 524288 + i * 262144, V_DW
                elif kind == 'K':
                    srd, base, goff, vo = S_K, S_KVB[u], j * 16384 + i * 8192, V_DK
                else:
                    srd, base, goff, vo = S_V, S_KVB[u], j * 16384 + i * 8192, V_DV
                a.emit("s_add_u32 m0, s%d, %d" % (S_WV1K, self.slot[c] * SLOT + i * 8192))
                a.emit("s_add_u32 s%d, s%d, %d" % (S_T[0], base, goff))
                fl = " nt" if (kind != 'W' or 'ntw' in EXP) else ""
                a.vmem("buffer_load_dwordx4 v%d, s[%d:%d], s%d offen%s lds" % (vo, srd, srd + 3, S_T[0], fl), ('dma', c, i))
            ops.append((op, 4))
        return ops

    def dma_tags(self, c):
        return [('dma', c, i) for i in range(2)]

    def addr_update(self, c):
        a = self.a
        kind = c[0]
        key = 'K' if kind == 'K' else 'VW'
        new = self.slot[c] * SLOT
        d = new - self.cur_base[key]
        self.cur_base[key] = new
        if d == 0:
            return
        for r in (V_KA if kind == 'K' else V_VW):
            a.emit("v_add_u32 v%d, 0x%x, v%d" % (r, d & 0xffffffff, r))

    def xraw_reg(self, j, i):
        return vr(V_Q + (j % 2) * 16 + i * 4, 4)

    def x_raw_load(self, j, i):
        a = self.a
        a.vmem("buffer_load_dwordx4 %s, v%d, s[%d:%d], s%d offen offset:%d" %
               (self.xraw_reg(j, i), V_XOFF, S_X, S_X + 3, S_XSO[i], j * 128) + (" nt" if 'ntx' in EXP else ""), ('xr', j, i))

    def x_write(self, j, i):
        a = self.a
        if 'noxvm' not in EXP:
            a.wait(vm=[('xr', j, i)])
        if 'noxw' in EXP:
            return
        a.ds("ds_write_b128 v%d, %s offset:%d" % (V_XW[i % 2], self.xraw_reg(j, i), i * 1024), ('xw', j, i))

    def x_read(self, j, ks):
        a = self.a
        if 'noxr' in EXP and j > 0:
            a.lgi[('xf', j, ks)] = a.lgi.get(('xf', 0, 0), 0)
            return
        a.ds("ds_read_b128 %s, v%d" % (ar(A_XF + (j % 2) * 16 + ks * 4, 4), V_XR[ks]), ('xf', j, ks))

    def build_frags(self):
        fr = []
        for j in range(8):
            for ks in range(4):
                for u in range(2):
                    for t in range(4):
                        fr.append(('W', u, j, ks, t))
        def ktile(g):
            for s in range(8):
                fr.append(('K', g, s))
        def vtile(g):
            for dt in range(4):
                for ks in range(2):
                    fr.append(('V', g, dt, ks))
        self.order = []
        ktile(0)
        ktile(1)
        for g in range(1, 31):
            if g == 16:
                vtile(15)
                ktile(17)
            else:
                ktile(g + 1)
                vtile(g - 1)
        vtile(30)
        vtile(31)
        return fr

    def frag_reg(self, f):
        return V_FR + (f % NFR) * 4

    def frag_chunk(self, f):
        d = self.frags[f]
        if d[0] == 'W':
            return ('W', d[1], d[2])
        g = d[1]
        return (d[0], g // 16, (g % 16) // 2)

    def issue_frag(self, f):
        a = self.a
        d = self.frags[f]
        r = self.frag_reg(f)
        c = self.frag_chunk(f)
        if d[0] == 'W':
            _, u, j, ks, t = d
            base = self.slot[c] * SLOT - self.cur_base['VW']
            off = base + (16 * ks) * 256
            if off < 0 or off + 1024 + 8 > 65535:
                self.addr_update(c)
                off = (16 * ks) * 256
            for e2 in range(2):
                a.ds("ds_read_b64_tr_b16 %s, v%d offset:%d" % (vr(r + 2 * e2, 2), V_VW[t], off + 1024 * e2), ('fr', f, e2))
        elif d[0] == 'V':
            _, g, dt, ks = d
            base = self.slot[c] * SLOT - self.cur_base['VW']
            off = base + (32 * (g & 1) + 16 * ks) * 256
            if off < 0 or off + 1024 + 8 > 65535:
                self.addr_update(c)
                off = (32 * (g & 1) + 16 * ks) * 256
            for e2 in range(2):
                a.ds("ds_read_b64_tr_b16 %s, v%d offset:%d" % (vr(r + 2 * e2, 2), V_VW[dt], off + 1024 * e2), ('fr', f, e2))
        else:
            _, g, s = d
            base = self.slot[c] * SLOT - self.cur_base['K']
            off = base + (g & 1) * 8192
            if off < 0 or off + 16 > 65535:
                self.addr_update(c)
                off = (g & 1) * 8192
            a.ds("ds_read_b128 %s, v%d offset:%d" % (vr(r, 4), V_KA[s], off), ('fr', f, 1))

    def softmax_ops(self, g):
        a = self.a
        cb = g & 1
        ops = []
        def E(p):
            ta, tb = V_ET[2 * (p & 1)], V_ET[2 * (p & 1) + 1]
            s0 = V_S[cb] + 2 * p
            ops.append((lambda: a.emit("v_exp_f32 v%d, v%d" % (ta, s0)), 8))
            ops.append((lambda: a.emit("v_exp_f32 v%d, v%d" % (tb, s0 + 1)), 8))
        def R(p):
            ta, tb = V_ET[2 * (p & 1)], V_ET[2 * (p & 1) + 1]
            if p == 0:
                ops.append((lambda: a.emit("v_mov_b32 v%d, v%d" % (V_TS[0], ta)), 4))
                ops.append((lambda: a.emit("v_mov_b32 v%d, v%d" % (V_TS[1], tb)), 4))
            else:
                ops.append((lambda: a.emit("v_add_f32 v%d, v%d, v%d" % (V_TS[0], V_TS[0], ta)), 4))
                ops.append((lambda: a.emit("v_add_f32 v%d, v%d, v%d" % (V_TS[1], V_TS[1], tb)), 4))
            pr = V_P[cb] + p
            ops.append((lambda: a.emit("v_cvt_pk_bf16_f32 v%d, v%d, v%d" % (pr, ta, tb)), 4))
        E(0)
        for p in range(1, 8):
            E(p)
            R(p - 1)
        ops.append((lambda: a.emit("s_nop 0"), 4))
        R(7)
        ops.append((lambda: a.emit("v_add_f32 v%d, v%d, v%d" % (V_TS[0], V_TS[0], V_TS[1])), 4))
        return ops

    def check_ops(self, g):
        a = self.a
        u = g // 16
        if g % 16 == 0:
            a.emit("v_mov_b32 v%d, v%d" % (V_L[u], V_TS[0]))
            return
        a.emit("v_cmp_nle_f32 vcc, v%d, v%d" % (V_TS[0], V_THR))
        a.emit("s_cbranch_vccnz L_slow%d" % g)
        a.label("L_back%d" % g)
        a.emit("v_add_f32 v%d, v%d, v%d" % (V_L[u], V_L[u], V_TS[0]))

    def rowmax_ops(self, s, T0, T1):
        a = self.a
        ops = []
        ops.append((lambda: a.emit("v_max3_f32 v%d, v%d, v%d, v%d" % (T0, s, s + 1, s + 2)), 4))
        for i in range(3, 15, 2):
            ops.append((lambda i=i: a.emit("v_max3_f32 v%d, v%d, v%d, v%d" % (T0, T0, s + i, s + i + 1)), 4))
        ops.append((lambda: a.emit("v_max_f32 v%d, v%d, v%d" % (T0, T0, s + 15)), 4))
        def sw():
            a.emit("v_mov_b32 v%d, v%d" % (T1, T0))
            a.emit("s_nop 1")
            a.emit("v_permlane32_swap_b32 v%d, v%d" % (T0, T1))
            a.emit("s_nop 1")
        ops.append((sw, 16))
        return ops

    def init_ops(self, g):
        a = self.a
        s = V_S[g & 1]
        T0, T1 = V_ET[0], V_ET[1]
        ops = self.rowmax_ops(s, T0, T1)
        ops.append((lambda: a.emit("v_max_f32 v%d, v%d, v%d" % (T0, T0, T1)), 4))
        ops.append((lambda: a.emit("v_sub_f32 v%d, 0, v%d" % (V_NM, T0)), 4))
        for i in range(16):
            ops.append((lambda i=i: a.emit("v_mov_b32 v%d, v%d" % (V_NEGM + i, V_NM)), 4))
        for i in range(16):
            ops.append((lambda i=i: a.emit("v_add_f32 v%d, v%d, v%d" % (s + i, s + i, V_NM)), 4))
        return ops

    def slow_path(self, g):
        a = self.a
        u = g // 16
        cb = g & 1
        nb = cb ^ 1
        a.label("L_slow%d" % g)
        a.emit("s_nop 15")
        a.emit("s_nop 15")
        T0, T1 = V_ET[0], V_ET[1]
        s = V_S[cb]
        for op, c in self.rowmax_ops(s, T0, T1):
            op()
        a.emit("v_max3_f32 v%d, v%d, v%d, 0" % (T0, T0, T1))
        a.emit("v_exp_f32 v%d, -v%d" % (T1, T0))
        if g % 16 != 15:
            a.emit("v_sub_f32 v%d, v%d, v%d" % (V_NM, V_NM, T0))
            for i in range(16):
                a.emit("v_mov_b32 v%d, v%d" % (V_NEGM + i, V_NM))
            for i in range(16):
                r = V_S[nb] + i
                a.emit("v_sub_f32 v%d, v%d, v%d" % (r, r, T0))
        a.emit("v_mul_f32 v%d, v%d, v%d" % (V_L[u], V_L[u], T1))
        for i in range(64):
            r = A_O + i
            a.emit("v_accvgpr_read_b32 v%d, a%d" % (V_ET[2], r))
            a.emit("v_mul_f32 v%d, v%d, v%d" % (V_ET[3], V_ET[2], T1))
            a.emit("v_accvgpr_write_b32 a%d, v%d" % (r, V_ET[3]))
        a.emit("v_mov_b32 v%d, 0" % V_TS[0])
        for p in range(8):
            a.emit("v_sub_f32 v%d, v%d, v%d" % (V_ET[2], s + 2 * p, T0))
            a.emit("v_sub_f32 v%d, v%d, v%d" % (V_ET[3], s + 2 * p + 1, T0))
            a.emit("v_exp_f32 v%d, v%d" % (V_ET[2], V_ET[2]))
            a.emit("v_exp_f32 v%d, v%d" % (V_ET[3], V_ET[3]))
            a.emit("s_nop 0")
            a.emit("v_add_f32 v%d, v%d, v%d" % (V_TS[0], V_TS[0], V_ET[2]))
            a.emit("v_add_f32 v%d, v%d, v%d" % (V_TS[0], V_TS[0], V_ET[3]))
            a.emit("v_cvt_pk_bf16_f32 v%d, v%d, v%d" % (V_P[cb] + p, V_ET[2], V_ET[3]))
        a.emit("s_nop 3")
        a.emit("s_branch L_back%d" % g)

    def wo_ld(self, k):
        a = self.a
        if k == 0:
            a.emit("v_and_b32 v%d, 0xff, v%d" % (V_TS[0], V_DV))
            a.emit("v_lshrrev_b32 v%d, 8, v%d" % (V_TS[1], V_DV))
            a.emit("v_lshl_add_u32 v%d, v%d, 10, v%d" % (V_TS[0], V_TS[1], V_TS[0]))
            a.emit("v_lshlrev_b32 v%d, 4, v0" % V_TS[1])
        a.emit("s_add_u32 s%d, s%d, %d" % (S_T[0], S_WOS, k * 32768))
        a.vmem("buffer_load_dwordx4 %s, v%d, s[%d:%d], s%d offen" % (vr(V_ET[0], 4), V_TS[0], S_WO, S_WO + 3, S_T[0]) + (" nt" if 'ntwo' in EXP else ""), ('wo', k))

    def wo_st(self, k):
        a = self.a
        a.wait(vm=[('wo', k)])
        a.emit("s_add_u32 s%d, s%d, %d" % (S_T[0], S_WOD, k * 8192))
        a.vmem("buffer_store_dwordx4 %s, v%d, s[%d:%d], s%d offen" % (vr(V_ET[0], 4), V_TS[1], S_WS, S_WS + 3, S_T[0]) + STFLAG, None)

    def epilogue_ops(self, u, tmp):
        a = self.a
        ops = []
        T0, T1 = V_RC, 63
        def pre():
            a.emit("v_mov_b32 v%d, v%d" % (T0, V_L[u]))
            a.emit("v_mov_b32 v%d, v%d" % (T1, V_L[u]))
            a.emit("s_nop 1")
            a.emit("v_permlane32_swap_b32 v%d, v%d" % (T0, T1))
            a.emit("s_nop 1")
            a.emit("v_add_f32 v%d, v%d, v%d" % (T0, T0, T1))
            a.emit("v_rcp_f32 v%d, v%d" % (T0, T0))
            a.emit("s_nop 0")
        ops.append((pre, 30))
        k = 0
        for dt in range(4):
            for G in range(2):
                base = tmp[k % len(tmp)]
                k += 1
                o = A_O + dt * 16 + 8 * G
                for i in range(8):
                    ops.append((lambda base=base, i=i, o=o: a.emit("v_accvgpr_read_b32 v%d, a%d" % (base + i, o + i)), 4))
                for i in range(8):
                    ops.append((lambda base=base, i=i: a.emit("v_mul_f32 v%d, v%d, v%d" % (base + i, base + i, T0)), 4))
                for i in range(0, 8, 2):
                    ops.append((lambda base=base, i=i: a.emit("v_cvt_pk_bf16_f32 v%d, v%d, v%d" % (base + 8 + i // 2, base + i, base + i + 1)), 4))
                kq = 2 * dt + G
                so = S_STB[u * 2 + (kq // 4)]
                ops.append((lambda base=base, so=so, kq=kq: a.vmem(
                    "buffer_store_dwordx4 %s, v%d, s[%d:%d], s%d offen offset:%d%s" %
                    (vr(base + 8, 4), V_STOFF, S_WS, S_WS + 3, so, (kq % 4) * 1024, STFLAG), None), 4))
        return ops

    def body(self):
        a = self.a
        frags = self.frags
        self.fpos = 0
        self.fiss = 0
        fillers = []
        timed = {}

        def time_ops(ops, span):
            n = len(ops)
            for cls in range(2):
                for k, (op, c) in enumerate(ops):
                    pos = self.fpos + cls * (span // 2) + 1 + (k * (span // 2 - 1)) // n
                    timed.setdefault(pos, []).append((cls, op))

        def pump(budget):
            while fillers and budget > 0:
                op, c = fillers.pop(0)
                op()
                budget -= c

        def flush():
            while fillers:
                op, c = fillers.pop(0)
                op()

        def issue_upto(n):
            while self.fiss < min(n, len(frags)):
                self.issue_frag(self.fiss)
                self.fiss += 1

        def step_start(si, front=False):
            need = []
            if si + 1 < len(self.steps):
                for c in self.steps[si + 1]:
                    need += self.dma_tags(c)
            if need:
                a.wait(vm=need)
            a.emit("s_barrier")
            if si in (0, 8, 9, 16, 17, 24) or 'allst' in EXP:
                self.stamp()
            ops = []
            for c in self.issue_at.get(si, []):
                ops.extend(self.dma_ops(c))
            return ops

        def consume(mf, extra_lg=(), per=14):
            f = self.fpos
            a.wait(lg=[('fr', f, 1)] + list(extra_lg))
            mf(self.frag_reg(f))
            issue_upto(f + 1 + LA)
            for cls, fn in timed.pop(f, []):
                if cls is None:
                    fn()
                else:
                    a.cond(cls, fn, S_CLS)
            pump(per)
            self.fpos += 1

        for i in range(4):
            self.x_write(0, i)
        for ks in range(4):
            self.x_read(0, ks)
        for j in range(8):
            dma = step_start(j)
            if j == 0:
                issue_upto(LA)
                dma = self.late_prologue + dma
            mi = 0
            sched = {}
            for cls in range(2):
                sh = cls * SHIFT
                if j + 2 < 8:
                    for i in range(4):
                        sched.setdefault(1 + 2 * i + sh, []).append((cls, lambda i=i: self.x_raw_load(j + 2, i)))
                for k, (op, c) in enumerate(dma):
                    sched.setdefault(min(9 + 2 * k + sh, 31), []).append((cls, op))
                if j + 1 < 8:
                    for i in range(4):
                        sched.setdefault(2 + 4 * i + sh, []).append((cls, lambda i=i: self.x_write(j + 1, i)))
                    for k in range(4):
                        sched.setdefault(17 + k + sh, []).append((cls, lambda k=k: self.x_read(j + 1, k)))
            for ks in range(4):
                for u in range(2):
                    for t in range(4):
                        def m(fr):
                            if u == 0:
                                acc = vr(V_QACC + t * 16, 16)
                            else:
                                acc = ar(A_O + t * 16, 16)
                            c = "0" if (j == 0 and ks == 0) else acc
                            a.emit("v_mfma_f32_32x32x16_bf16 %s, %s, %s, %s" %
                                   (acc, vr(fr, 4), ar(A_XF + (j % 2) * 16 + ks * 4, 4), c))
                        consume(m, [('xf', j, ks)] if (t == 0 and u == 0) else [])
                        for cls, fn in sched.get(mi, []):
                            a.cond(cls, fn, S_CLS)
                        TN = int(os.environ.get("TN", "0"))
                        if mi == 24 and j < TN:
                            cls = j % 2
                            def tch(cls=cls, r=j // 2):
                                srd = S_K if cls == 0 else S_V
                                a.emit("s_add_u32 s%d, s%d, %d" % (S_T[0], S_KVB[0], r * 32768))
                                a.vmem("buffer_load_dword v%d, v%d, s[%d:%d], s%d offen" % (V_L[1], V_L[0], srd, srd + 3, S_T[0]), None)
                            a.cond(cls, tch, S_CLS)
                        if mi == 28 and j % 2 == 0 and j >= 2:
                            self.wo_st((j - 2) // 2)
                        if mi == 30 and j % 2 == 0:
                            self.wo_ld(j // 2)
                        mi += 1
            flush()

        self.wo_st(3)
        a.emit("s_nop 7")
        a.emit("s_nop 7")
        tb = struct.unpack("<I", struct.pack("<f", THR))[0]
        a.emit("v_mov_b32 v%d, 0x%08x" % (V_THR, tb))
        for t in range(4):
            acc = V_QACC + t * 16
            for i in range(0, 16, 2):
                a.emit("v_pk_mul_f32 %s, %s, s[%d:%d]" % (vr(acc + i, 2), vr(acc + i, 2), S_SCALE, S_SCALE + 1))
            for i in range(0, 16, 2):
                q = V_Q + (2 * t + i // 8) * 4 + (i % 8) // 2
                a.emit("v_cvt_pk_bf16_f32 v%d, v%d, v%d" % (q, acc + i, acc + i + 1))
        conv1 = []
        CT = [V_P[1], V_P[1] + 2, V_P[1] + 4, V_P[1] + 6]
        k = 0
        for t in range(4):
            for i in range(0, 16, 2):
                tt = CT[k % 4]
                k += 1
                o = A_O + t * 16 + i
                q = A_XF + (2 * t + i // 8) * 4 + (i % 8) // 2
                def cv(tt=tt, o=o, q=q):
                    a.emit("v_accvgpr_read_b32 v%d, a%d" % (tt, o))
                    a.emit("v_accvgpr_read_b32 v%d, a%d" % (tt + 1, o + 1))
                    a.emit("v_mul_f32 v%d, s%d, v%d" % (tt, S_SCALE, tt))
                    a.emit("v_mul_f32 v%d, s%d, v%d" % (tt + 1, S_SCALE, tt + 1))
                    a.emit("v_cvt_pk_bf16_f32 v%d, v%d, v%d" % (tt, tt, tt + 1))
                    a.emit("v_accvgpr_write_b32 a%d, v%d" % (q, tt))
                conv1.append((cv, 24))

        def A_mfmas(g, per=14):
            nb = g & 1
            u = g // 16
            for s in range(8):
                def m(fr):
                    sreg = V_S[nb]
                    if s == 0:
                        c = "0" if g % 16 == 0 else vr(V_NEGM, 16)
                    else:
                        c = vr(sreg, 16)
                    q = vr(V_Q + s * 4, 4) if u == 0 else ar(A_XF + s * 4, 4)
                    a.emit("v_mfma_f32_32x32x16_bf16 %s, %s, %s, %s" % (vr(sreg, 16), vr(fr, 4), q, c))
                consume(m, per=per)

        def C_mfmas(g, per=14):
            pb = g & 1
            for dt in range(4):
                for ks in range(2):
                    def m(fr):
                        o = A_O + dt * 16
                        c = "0" if (g % 16 == 0 and ks == 0) else ar(o, 16)
                        a.emit("v_mfma_f32_32x32x16_bf16 %s, %s, %s, %s" %
                               (ar(o, 16), vr(fr, 4), vr(V_P[pb] + ks * 4, 4), c))
                    consume(m, per=per)

        time_ops(step_start(8), 16)
        fillers.extend(conv1[:16])
        a.emit("s_nop 1")
        A_mfmas(0, per=24)
        flush()
        a.emit("s_nop 7")
        for op, c in self.init_ops(0):
            op()
        fillers.extend(self.softmax_ops(0))
        fillers.extend(conv1[16:])
        A_mfmas(1, per=40)
        flush()
        self.check_ops(0)
        for T in range(1, 16):
            time_ops(step_start(8 + T), 32)
            for g in (2 * T - 1, 2 * T):
                if g == 16:
                    a.emit("s_nop 1")
                    fillers.extend([(lambda: a.emit("s_nop 7"), 8)] + self.init_ops(16))
                    C_mfmas(15, per=30)
                    flush()
                    a.emit("s_nop 1")
                    ep = self.epilogue_ops(0, [V_Q, V_Q + 12])
                    fillers.extend(self.softmax_ops(16))
                    fillers.append((lambda: a.emit("s_nop 7"), 8))
                    fillers.extend(ep[:90])
                    self.ep_rest = ep[90:]
                    A_mfmas(17, per=40)
                    flush()
                    self.check_ops(16)
                    continue
                if g == 17:
                    fillers.extend(self.ep_rest)
                    fillers.extend(self.softmax_ops(g))
                    A_mfmas(g + 1, per=40)
                    while any(True for _ in ()):
                        pass
                    n_sm = len(self.softmax_ops(g))
                    while len(fillers) > n_sm:
                        op, c = fillers.pop(0)
                        op()
                    a.emit("s_nop 1")
                    C_mfmas(g - 1, per=24)
                    flush()
                    self.check_ops(g)
                    continue
                fillers.extend(self.softmax_ops(g))
                A_mfmas(g + 1)
                C_mfmas(g - 1)
                flush()
                self.check_ops(g)
        time_ops(step_start(24), 16)
        fillers.extend(self.softmax_ops(31))
        C_mfmas(30, per=30)
        flush()
        self.check_ops(31)
        a.emit("s_nop 1")
        C_mfmas(31)
        flush()
        self.stamp()
        a.emit("s_nop 15")
        for op, c in self.epilogue_ops(1, [64, 76, 88, 100]):
            op()

    def prologue(self):
        a = self.a
        e = a.emit
        self.cur_base = {'K': 0, 'VW': 0}
        e("s_cmp_ge_u32 s2, 256")
        e("s_cbranch_scc1 L_end")
        if self.stamps:
            e("s_memtime s[90:91]")
            e("s_memrealtime s[92:93]")
        e("s_and_b32 s%d, s2, 7" % S_T[0])
        e("s_lshr_b32 s%d, s2, 3" % S_T[1])
        e("s_and_b32 s%d, s%d, 1" % (S_T[2], S_T[0]))
        e("s_load_dwordx16 s[64:79], s[0:1], 0")
        e("s_load_dwordx8 s[80:87], s[0:1], 64")
        e("s_load_dwordx2 s[88:89], s[0:1], 96")
        e("s_lshr_b32 s%d, s%d, 1" % (S_T[3], S_T[0]))
        e("s_and_b32 s%d, s%d, 1" % (S_T[3], S_T[3]))
        e("s_lshl_b32 s%d, s%d, 2" % (S_T[3], S_T[3]))
        e("s_and_b32 s%d, s%d, 3" % (S_T[4], S_T[1]))
        e("s_add_u32 s%d, s%d, s%d" % (S_T[3], S_T[3], S_T[4]))
        e("s_lshr_b32 s%d, s%d, 2" % (S_T[4], S_T[0]))
        e("s_lshl_b32 s%d, s%d, 4" % (S_T[4], S_T[4]))
        e("s_lshr_b32 s%d, s%d, 2" % (S_T[5], S_T[1]))
        e("s_add_u32 s%d, s%d, s%d" % (S_T[4], S_T[4], S_T[5]))
        e("s_waitcnt lgkmcnt(0)")
        e("s_cmp_eq_u32 s%d, 0" % S_T[2])
        for (dst, pa, pb, sz) in ((S_X, 64, 74, 8 * 240 * 512 * 2), (S_K, 66, 76, 8 * 32 * 512 * 128 * 2),
                                  (S_V, 68, 78, 8 * 32 * 512 * 128 * 2), (S_W, 70, 80, 512 * 4096 * 2)):
            e("s_cselect_b32 s%d, s%d, s%d" % (dst, pa, pb))
            e("s_cselect_b32 s%d, s%d, s%d" % (dst + 1, pa + 1, pb + 1))
            e("s_mov_b32 s%d, %d" % (dst + 2, sz))
            e("s_mov_b32 s%d, 0x00020000" % (dst + 3))
        e("s_cselect_b32 s%d, s72, s82" % S_WO)
        e("s_cselect_b32 s%d, s73, s83" % (S_WO + 1))
        e("s_mov_b32 s%d, %d" % (S_WO + 2, 4096 * 512 * 2))
        e("s_mov_b32 s%d, 0x00020000" % (S_WO + 3))
        e("s_lshr_b32 s%d, s%d, 1" % (S_WOS, S_T[0]))
        e("s_lshl_b32 s%d, s%d, 5" % (S_WOS, S_WOS))
        e("s_add_u32 s%d, s%d, s%d" % (S_WOS, S_WOS, S_T[1]))
        e("s_lshl_b32 s%d, s%d, 1" % (S_WOS, S_WOS))
        e("s_lshl_b32 s%d, s%d, 22" % (S_WOD, S_T[2]))
        e("s_lshl_b32 s63, s%d, 14" % S_WOS)
        e("s_add_u32 s%d, s%d, s63" % (S_WOD, S_WOD))
        e("s_add_u32 s%d, s%d, %d" % (S_WOD, S_WOD, WOT))
        e("s_lshr_b32 s63, s%d, 6" % S_WOS)
        e("s_lshl_b32 s63, s63, 8")
        e("s_and_b32 s%d, s%d, 63" % (S_WOS, S_WOS))
        e("s_lshl_b32 s%d, s%d, 16" % (S_WOS, S_WOS))
        e("s_add_u32 s%d, s%d, s63" % (S_WOS, S_WOS))
        e("s_mov_b32 s%d, s88" % S_WS)
        e("s_mov_b32 s%d, s89" % (S_WS + 1))
        e("s_mov_b32 s%d, %d" % (S_WS + 2, WOT + (8 << 20)))
        e("s_mov_b32 s%d, 0x00020000" % (S_WS + 3))
        e("s_lshl_b32 s%d, s%d, 5" % (S_T[5], S_T[3]))
        e("s_add_u32 s%d, s%d, s%d" % (S_T[5], S_T[5], S_T[4]))
        e("s_lshl_b32 s%d, s%d, 17" % (S_KVB[0], S_T[5]))
        e("s_lshl_b32 s%d, s%d, 8" % (S_WCB[0], S_T[4]))
        e("s_add_u32 s%d, s%d, %d" % (S_KVB[1], S_KVB[0], 8 * 131072))
        e("s_add_u32 s%d, s%d, %d" % (S_WCB[1], S_WCB[0], 8 * 256))
        e("s_mul_i32 s%d, s%d, %d" % (S_STB[0], S_T[2], 60 * 262144))
        e("s_lshl_b32 s%d, s%d, 13" % (S_T[5], S_T[4]))
        e("s_add_u32 s%d, s%d, s%d" % (S_STB[0], S_STB[0], S_T[5]))
        e("s_add_u32 s%d, s%d, 4096" % (S_STB[1], S_STB[0]))
        e("s_add_u32 s%d, s%d, %d" % (S_STB[2], S_STB[0], 65536))
        e("s_add_u32 s%d, s%d, %d" % (S_STB[3], S_STB[0], 65536 + 4096))
        c = math.log2(math.e) / math.sqrt(128.0)
        cb = struct.unpack("<I", struct.pack("<f", c))[0]
        e("s_mov_b32 s%d, 0x%08x" % (S_SCALE, cb))
        e("s_mov_b32 s%d, 0x%08x" % (S_SCALE + 1, cb))
        for i in range(4):
            e("s_mov_b32 s%d, %d" % (S_XSO[i], i * 8192))
        e("v_lshrrev_b32 v%d, 6, v0" % V_T1)
        e("s_nop 0")
        e("v_readfirstlane_b32 s%d, v%d" % (S_T[0], V_T1))
        e("s_lshl_b32 s%d, s%d, 10" % (S_WV1K, S_T[0]))
        e("s_lshl_b32 s62, s%d, 6" % S_T[0])
        e("s_lshr_b32 s%d, s%d, 2" % (S_CLS, S_T[0]))
        L = V_L[0]
        HH = V_L[1]
        e("v_and_b32 v%d, 63, v0" % L)
        e("v_lshrrev_b32 v%d, 5, v%d" % (HH, L))
        e("s_mul_i32 s%d, s%d, 240" % (S_T[1], S_T[3]))
        e("s_lshl_b32 s%d, s%d, 5" % (S_T[2], S_T[0]))
        e("s_add_u32 s%d, s%d, s%d" % (S_T[1], S_T[1], S_T[2]))
        RP, CH = V_ET[0], V_ET[1]
        e("v_lshrrev_b32 v%d, 4, v%d" % (V_ET[2], L))
        e("s_lshl_b32 s%d, s%d, 2" % (S_T[5], S_T[0]))
        e("v_add_u32 v%d, s%d, v%d" % (RP, S_T[5], V_ET[2]))
        e("v_and_b32 v%d, 15, v%d" % (CH, L))
        e("v_lshlrev_b32 v%d, 2, v%d" % (V_ET[3], V_ET[2]))
        e("v_xor_b32 v%d, v%d, v%d" % (V_ET[3], CH, V_ET[3]))
        e("v_lshlrev_b32 v%d, 4, v%d" % (V_ET[3], V_ET[3]))
        e("v_lshl_add_u32 v%d, v%d, 13, v%d" % (V_DW, RP, V_ET[3]))
        e("v_lshl_add_u32 v%d, v%d, 8, v%d" % (V_DV, RP, V_ET[3]))
        e("v_and_b32 v%d, 15, v%d" % (V_ET[3], RP))
        e("v_xor_b32 v%d, v%d, v%d" % (V_ET[3], CH, V_ET[3]))
        e("v_lshlrev_b32 v%d, 4, v%d" % (V_ET[3], V_ET[3]))
        e("v_lshl_add_u32 v%d, v%d, 8, v%d" % (V_DK, RP, V_ET[3]))
        e("v_lshrrev_b32 v%d, 3, v%d" % (V_ET[0], L))
        e("v_add_u32 v%d, s%d, v%d" % (V_ET[1], S_T[1], V_ET[0]))
        e("v_lshlrev_b32 v%d, 10, v%d" % (V_XOFF, V_ET[1]))
        e("v_and_b32 v%d, 7, v%d" % (V_ET[1], L))
        e("v_lshl_add_u32 v%d, v%d, 4, v%d" % (V_XOFF, V_ET[1], V_XOFF))
        first = self.issue_at[-1]
        for i in range(4):
            self.x_raw_load(0, i)
        for c in first[:2]:
            for op, cc in self.dma_ops(c):
                op()
        for i in range(4):
            self.x_raw_load(1, i)
        for c in first[2:4]:
            for op, cc in self.dma_ops(c):
                op()
        self.late_prologue = []
        for c in first[4:]:
            self.late_prologue.extend(self.dma_ops(c))
        e("v_lshrrev_b32 v%d, 4, v%d" % (V_ET[2], L))
        e("v_xor_b32 v%d, v%d, v%d" % (V_ET[2], V_ET[1], V_ET[2]))
        e("v_lshlrev_b32 v%d, 4, v%d" % (V_ET[2], V_ET[2]))
        e("v_lshl_add_u32 v%d, v%d, 7, v%d" % (V_ET[2], V_ET[0], V_ET[2]))
        e("s_lshl_b32 s%d, s%d, 2" % (S_T[5], S_WV1K))
        e("s_add_u32 s%d, s%d, %d" % (S_T[5], S_T[5], XSCR))
        e("v_add_u32 v%d, s%d, v%d" % (V_XW[0], S_T[5], V_ET[2]))
        e("v_xor_b32 v%d, 64, v%d" % (V_XW[1], V_XW[0]))
        e("v_and_b32 v%d, 31, v%d" % (V_ET[0], L))
        e("v_bfe_u32 v%d, v%d, 1, 3" % (V_ET[1], L))
        e("v_xor_b32 v%d, v%d, v%d" % (V_ET[1], V_ET[1], HH))
        for ks in range(4):
            e("v_xor_b32 v%d, %d, v%d" % (V_ET[2], 2 * ks, V_ET[1]))
            e("v_lshlrev_b32 v%d, 4, v%d" % (V_ET[2], V_ET[2]))
            e("v_lshl_add_u32 v%d, v%d, 7, v%d" % (V_ET[2], V_ET[0], V_ET[2]))
            e("v_add_u32 v%d, s%d, v%d" % (V_XR[ks], S_T[5], V_ET[2]))
        R = V_ET[0]
        e("v_and_b32 v%d, 31, v%d" % (V_ET[3], L))
        e("v_add_u32 v%d, s%d, v%d" % (R, S_T[1], V_ET[3]))
        e("v_lshrrev_b32 v%d, 5, v%d" % (V_ET[1], R))
        e("v_lshlrev_b32 v%d, 18, v%d" % (V_ET[1], V_ET[1]))
        e("v_and_b32 v%d, 31, v%d" % (V_ET[2], R))
        e("v_lshlrev_b32 v%d, 4, v%d" % (V_ET[2], V_ET[2]))
        e("v_lshl_add_u32 v%d, v%d, 9, v%d" % (V_ET[2], HH, V_ET[2]))
        e("v_add_u32 v%d, v%d, v%d" % (V_STOFF, V_ET[1], V_ET[2]))
        e("v_add_u32 v%d, s%d, v%d" % (V_ET[3], S_T[2], V_ET[3]))
        e("v_mov_b32 v%d, 0x7f000000" % V_ET[0])
        e("v_cmp_gt_u32 vcc, 240, v%d" % V_ET[3])
        e("s_nop 1")
        e("v_cndmask_b32 v%d, v%d, v%d, vcc" % (V_STOFF, V_ET[0], V_STOFF))
        r_, c4 = V_ET[0], V_ET[1]
        e("v_bfe_u32 v%d, v%d, 2, 2" % (r_, L))
        e("v_and_b32 v%d, 3, v%d" % (c4, L))
        e("v_lshl_add_u32 v%d, v%d, 3, v%d" % (V_ET[2], HH, r_))
        e("v_lshlrev_b32 v%d, 8, v%d" % (V_ET[2], V_ET[2]))
        e("v_bfe_u32 v%d, v%d, 4, 1" % (V_ET[3], L))
        e("v_lshl_add_u32 v%d, v%d, 5, v%d" % (V_ET[2], V_ET[3], V_ET[2]))
        e("v_and_b32 v%d, 1, v%d" % (V_ET[3], c4))
        e("v_lshl_add_u32 v%d, v%d, 4, v%d" % (V_ET[2], V_ET[3], V_ET[2]))
        e("v_lshrrev_b32 v%d, 1, v%d" % (V_ET[3], c4))
        e("v_lshl_add_u32 v%d, v%d, 3, v%d" % (V_ET[2], V_ET[3], V_ET[2]))
        for t in range(4):
            e("v_xor_b32 v%d, %d, v%d" % (V_ET[3], t, r_))
            e("v_lshl_add_u32 v%d, v%d, 6, v%d" % (V_VW[t], V_ET[3], V_ET[2]))
        key = V_ET[0]
        e("v_and_b32 v%d, 0x13, v%d" % (key, L))
        e("v_bfe_u32 v%d, v%d, 2, 1" % (V_ET[1], L))
        e("v_lshl_add_u32 v%d, v%d, 3, v%d" % (key, V_ET[1], key))
        e("v_bfe_u32 v%d, v%d, 3, 1" % (V_ET[1], L))
        e("v_lshl_add_u32 v%d, v%d, 2, v%d" % (key, V_ET[1], key))
        e("v_and_b32 v%d, 15, v%d" % (V_ET[1], key))
        e("v_xor_b32 v%d, v%d, v%d" % (V_ET[1], V_ET[1], HH))
        for s in range(8):
            e("v_xor_b32 v%d, %d, v%d" % (V_ET[2], 2 * s, V_ET[1]))
            e("v_lshlrev_b32 v%d, 4, v%d" % (V_ET[2], V_ET[2]))
            e("v_lshl_add_u32 v%d, v%d, 8, v%d" % (V_KA[s], key, V_ET[2]))
        e("v_and_b32 v%d, 0xff, v0" % V_L[0])
        e("v_lshlrev_b32 v%d, 7, v%d" % (V_L[0], V_L[0]))
        need = []
        for c in self.steps[0]:
            need += self.dma_tags(c)
        a.wait(vm=need)
        a.emit("s_barrier")
        self.stamp()

    def gen(self):
        a = self.a
        self.frags = self.build_frags()
        for cls in (0, 1):
            a.new_trace(cls)
            self.prologue()
            self.body()
        a.trace = False
        a.reset_sites(0)
        self.prologue()
        self.body()
        if self.stamps:
            self.stamp()
            a.emit("v_subrev_u32 v%d, s90, v%d" % (V_STMP2, V_STMP2))
            a.emit("s_memrealtime s[60:61]")
            a.emit("s_waitcnt lgkmcnt(0)")
            a.emit("s_sub_u32 s60, s60, s92")
            a.emit("v_mov_b32 v%d, s60" % V_T1)
            a.emit("v_cmp_eq_u32 vcc, s62, v0")
            a.emit("s_nop 1")
            a.emit("v_cndmask_b32 v%d, v%d, v%d, vcc" % (V_STMP2, V_STMP2, V_T1))
            a.emit("s_add_u32 s62, s62, 1")
            a.emit("v_mov_b32 v%d, s92" % V_T1)
            a.emit("v_cmp_eq_u32 vcc, s62, v0")
            a.emit("s_nop 1")
            a.emit("v_cndmask_b32 v%d, v%d, v%d, vcc" % (V_STMP2, V_STMP2, V_T1))
            a.emit("v_lshlrev_b32 v%d, 2, v0" % V_T1)
            a.emit("s_lshl_b32 s60, s2, 11")
            a.emit("s_add_u32 s60, s60, %d" % (64 << 20))
            a.emit("s_mov_b32 s%d, 0x10000000" % (S_WS + 2))
            a.emit("buffer_store_dword v%d, v%d, s[%d:%d], s60 offen" % (V_STMP2, V_T1, S_WS, S_WS + 3))
        a.label("L_end")
        a.emit("s_endpgm")
        for g in range(32):
            if g % 16 != 0:
                self.slow_path(g)

V_STMP2 = 11
```

```python
from asmlib import Asm
import os
EXP = os.environ.get('EXP', '')

NSH = 5
SLOT2 = 16384
RINGH = NSH * SLOT2
LA2 = 5
NFR2 = 8
NB = int(os.environ.get('NB', '16'))
PART = 96 << 20
WOT = 32 << 20

V_T1 = 1
V_BOFF = 2
V_DMA = 3
V_AA = [4, 5, 6, 7]
V_ST = 8
V_RED = 9
V_TMP = [10, 11, 240, 241, 242]
V_FR = 12
V_ACC = 44
V_B = 108
V_OUT = 236 - 64

S_WO, S_WS, S_OUT, S_WSB, S_DBG = 4, 8, 12, 32, 36
S_T = [16, 17, 18, 19, 20, 21]
S_PSL, S_PSW, S_WVL = 22, 23, 24
S_GOFF = 25
S_BOFF = 26
S_CNT = 27
S_CSL = 28
S_DELTA = 29
S_HB = 30
S_HALF = 31
S_TILE = 40
S_KH = 41
S_PB = 42

def vr(b, n):
    return "v[%d:%d]" % (b, b + n - 1)

class K2:
    def __init__(self, a):
        self.a = a

    def dma_ops(self, ci):
        a = self.a
        ops = []
        for i in range(4):
            def op(i=i):
                a.emit("s_add_u32 m0, s%d, %d" % (S_PSW, i * 4096))
                a.emit("s_add_u32 s%d, s%d, %d" % (S_T[0], S_GOFF, i * 4096))
                if 'nodma' in EXP:
                    a.vmem("s_nop 0", ('dma', ci, i))
                else:
                  a.vmem("buffer_load_dwordx4 v%d, s[%d:%d], s%d offen%s lds" % (V_DMA, S_WO, S_WO + 3, S_T[0], " nt" if 'ntd' in EXP else ""), ('dma', ci, i))
                if i == 3:
                    a.emit("s_add_u32 s%d, s%d, %d" % (S_GOFF, S_GOFF, 16384))
                    a.emit("s_add_u32 s%d, s%d, %d" % (S_PSL, S_PSL, SLOT2))
                    a.emit("s_cmp_eq_u32 s%d, %d" % (S_PSL, RINGH))
                    a.emit("s_cselect_b32 s%d, 0, s%d" % (S_PSL, S_PSL))
                    a.emit("s_add_u32 s%d, s%d, s%d" % (S_PSW, S_PSL, S_WVL))
            ops.append(op)
        return ops

    def dma_tags(self, ci):
        return [('dma', ci, i) for i in range(4)]

    def b_load(self, s_abs, pre=False):
        a = self.a
        loc = s_abs % NB
        grp = loc // 4
        a.emit("s_add_u32 s%d, s%d, %d" % (S_T[1], S_BOFF, (grp * 4096 - (NB * 1024 if pre else 0)) & 0xffffffff))
        if 'nob' in EXP:
            a.vmem("s_nop 0", ('b', s_abs))
            return
        a.vmem("buffer_load_dwordx4 %s, v%d, s[%d:%d], s%d offen offset:%d" %
               (vr(V_B + loc * 4, 4), V_BOFF, S_WSB, S_WSB + 3, S_T[1], (loc % 4) * 1024) + (" nt" if 'ntb' in EXP else ""), ('b', s_abs))

    def issue_frag(self, f):
        a = self.a
        s = f // 4
        t = f % 4
        ks = s % 4
        r = V_FR + (f % NFR2) * 4
        for e2 in range(2):
            a.ds("ds_read_b64_tr_b16 %s, v%d offset:%d" % (vr(r + 2 * e2, 2), V_AA[t], (16 * ks + 4 * e2) * 256), ('fr', f, e2))

    def slot_adv(self):
        a = self.a
        a.emit("s_mov_b32 s%d, s%d" % (S_DELTA, S_CSL))
        a.emit("s_add_u32 s%d, s%d, %d" % (S_CSL, S_CSL, SLOT2))
        a.emit("s_cmp_eq_u32 s%d, %d" % (S_CSL, RINGH))
        a.emit("s_cselect_b32 s%d, 0, s%d" % (S_CSL, S_CSL))
        a.emit("s_sub_u32 s%d, s%d, s%d" % (S_DELTA, S_CSL, S_DELTA))
        for t in range(4):
            a.emit("v_add_u32 v%d, s%d, v%d" % (V_AA[t], S_DELTA, V_AA[t]))

    def body_all(self):
        a = self.a
        extra = []
        for s2 in range(8, NB):
            extra.append(lambda s2=s2: self.b_load2(s2))
            if s2 == 11:
                extra.extend(self.dma_ops(2))
            if s2 == 15:
                extra.extend(self.dma_ops(3))
        pend = []
        for ci in range(16):
            if ci + 1 < 16:
                a.wait(vm=self.dma_tags(ci + 1))
            a.emit("s_barrier")
            if ci + NSH - 1 < 16 and ci >= 0:
                pend.extend(self.dma_ops(ci + NSH - 1))
            for ks in range(4):
                s = ci * 4 + ks
                for t in range(4):
                    f = 4 * s + t
                    a.wait(vm=[('b', s)] if t == 0 else [], lg=[('fr', f, 1)])
                    acc = V_ACC + t * 16
                    a.emit("v_mfma_f32_32x32x16_bf16 %s, %s, %s, %s" %
                           (vr(acc, 16), vr(V_FR + (f % NFR2) * 4, 4), vr(V_B + (s % NB) * 4, 4), vr(acc, 16)))
                    nf = f + LA2
                    if nf < 256:
                        if nf % 16 == 0:
                            self.slot_adv()
                        self.issue_frag(nf)
                    if extra:
                        extra.pop(0)()
                    elif pend and t in (1, 3):
                        pend.pop(0)()
                if s + NB < 64:
                    self.b_load2(s + NB)

    def b_load2(self, s_abs):
        a = self.a
        loc = s_abs % NB
        if 'nob' in EXP:
            a.vmem("s_nop 0", ('b', s_abs))
            return
        a.emit("s_add_u32 s%d, s%d, %d" % (S_T[1], S_BOFF, (s_abs // 4) * 4096))
        a.vmem("buffer_load_dwordx4 %s, v%d, s[%d:%d], s%d offen offset:%d" %
               (vr(V_B + loc * 4, 4), V_BOFF, S_WSB, S_WSB + 3, S_T[1], (s_abs % 4) * 1024), ('b', s_abs))

    def prologue(self):
        a = self.a
        e = a.emit
        e("s_cmp_ge_u32 s2, 256")
        e("s_cbranch_scc1 L2_end")
        if 'st2' in EXP:
            e("s_memtime s[80:81]")
        e("s_load_dwordx2 s[64:65], s[0:1], 32")
        e("s_load_dwordx2 s[66:67], s[0:1], 72")
        e("s_load_dwordx4 s[68:71], s[0:1], 80")
        e("s_load_dwordx2 s[72:73], s[0:1], 96")
        e("s_and_b32 s%d, s2, 7" % S_T[0])
        e("s_lshr_b32 s%d, s2, 3" % S_T[1])
        e("s_lshr_b32 s%d, s%d, 2" % (S_T[2], S_T[0]))
        e("s_and_b32 s%d, s%d, 3" % (S_T[3], S_T[0]))
        e("s_lshl_b32 s%d, s%d, 2" % (S_T[3], S_T[3]))
        e("s_lshr_b32 s%d, s%d, 3" % (S_T[4], S_T[1]))
        e("s_add_u32 s%d, s%d, s%d" % (S_T[3], S_T[3], S_T[4]))
        e("s_bfe_u32 s%d, s%d, 0x20001" % (S_T[4], S_T[1]))
        e("s_and_b32 s%d, s%d, 1" % (S_KH, S_T[1]))
        e("s_cmp_ge_u32 s%d, 15" % S_T[3])
        e("s_cbranch_scc1 L2_end")
        e("s_waitcnt lgkmcnt(0)")
        e("s_cmp_eq_u32 s%d, 0" % S_T[2])
        e("s_mov_b32 s%d, s72" % S_WO)
        e("s_mov_b32 s%d, s73" % (S_WO + 1))
        e("s_mov_b32 s%d, %d" % (S_WO + 2, WOT + (8 << 20)))
        e("s_mov_b32 s%d, 0x00020000" % (S_WO + 3))
        for r in (S_WS, S_WSB):
            e("s_mov_b32 s%d, s72" % r)
            e("s_mov_b32 s%d, s73" % (r + 1))
            e("s_mov_b32 s%d, %d" % (r + 2, (2 * 60 * 262144) if r == S_WSB else (PART + 120 * 131072)))
            e("s_mov_b32 s%d, 0x00020000" % (r + 3))
        e("s_mov_b32 s%d, s68" % S_OUT)
        e("s_mov_b32 s%d, s69" % (S_OUT + 1))
        e("s_mov_b32 s%d, %d" % (S_OUT + 2, 1920 * 1024 * 2))
        e("s_mov_b32 s%d, 0x00020000" % (S_OUT + 3))
        e("s_mov_b32 s%d, s70" % S_DBG)
        e("s_mov_b32 s%d, s71" % (S_DBG + 1))
        e("s_mov_b32 s%d, 256" % (S_DBG + 2))
        e("s_mov_b32 s%d, 0x00020000" % (S_DBG + 3))
        e("s_mul_i32 s%d, s%d, 15" % (S_TILE, S_T[2]))
        e("s_add_u32 s%d, s%d, s%d" % (S_TILE, S_TILE, S_T[3]))
        e("s_lshl_b32 s%d, s%d, 2" % (S_TILE, S_TILE))
        e("s_add_u32 s%d, s%d, s%d" % (S_TILE, S_TILE, S_T[4]))
        e("v_lshrrev_b32 v%d, 6, v0" % V_T1)
        e("s_nop 0")
        e("v_readfirstlane_b32 s%d, v%d" % (S_T[5], V_T1))
        e("s_lshr_b32 s%d, s%d, 2" % (S_HALF, S_T[5]))
        e("s_and_b32 s%d, s%d, 3" % (S_T[5], S_T[5]))
        e("s_mul_i32 s%d, s%d, %d" % (S_HB, S_HALF, RINGH))
        e("s_lshl_b32 s%d, s%d, 10" % (S_WVL, S_T[5]))
        e("s_add_u32 s%d, s%d, s%d" % (S_WVL, S_WVL, S_HB))
        e("s_mov_b32 s%d, s%d" % (S_PSW, S_WVL))
        e("s_mov_b32 s%d, 0" % S_PSL)
        e("s_mov_b32 s%d, 0" % S_CSL)
        L = V_TMP[0]
        HH = V_TMP[1]
        e("v_and_b32 v%d, 63, v0" % L)
        e("v_lshrrev_b32 v%d, 5, v%d" % (HH, L))
        e("s_lshl_b32 s%d, s%d, 1" % (S_CNT, S_KH))
        e("s_add_u32 s%d, s%d, s%d" % (S_CNT, S_CNT, S_HALF))
        e("s_lshl_b32 s%d, s%d, 18" % (S_GOFF, S_CNT))
        e("s_lshl_b32 s%d, s%d, 20" % (S_T[0], S_T[4]))
        e("s_add_u32 s%d, s%d, s%d" % (S_GOFF, S_GOFF, S_T[0]))
        e("s_lshl_b32 s%d, s%d, 22" % (S_T[0], S_T[2]))
        e("s_add_u32 s%d, s%d, s%d" % (S_GOFF, S_GOFF, S_T[0]))
        e("s_add_u32 s%d, s%d, %d" % (S_GOFF, S_GOFF, WOT))
        e("s_lshl_b32 s%d, s%d, 16" % (S_BOFF, S_CNT))
        e("s_mul_i32 s%d, s%d, 60" % (S_CNT, S_T[2]))
        e("s_lshl_b32 s%d, s%d, 2" % (S_T[0], S_T[3]))
        e("s_add_u32 s%d, s%d, s%d" % (S_T[0], S_T[0], S_T[5]))
        e("s_add_u32 s%d, s%d, s%d" % (S_CNT, S_CNT, S_T[0]))
        e("s_lshl_b32 s%d, s%d, 18" % (S_CNT, S_CNT))
        e("s_add_u32 s%d, s%d, s%d" % (S_BOFF, S_BOFF, S_CNT))
        e("v_lshlrev_b32 v%d, 4, v%d" % (V_BOFF, L))
        e("s_lshl_b32 s%d, s%d, 5" % (S_T[0], S_T[0]))
        e("v_and_b32 v%d, 31, v%d" % (V_T1, L))
        e("v_add_u32 v%d, s%d, v%d" % (V_T1, S_T[0], V_T1))
        e("v_lshlrev_b32 v%d, 11, v%d" % (V_ST, V_T1))
        e("v_lshl_add_u32 v%d, v%d, 4, v%d" % (V_ST, HH, V_ST))
        e("s_lshl_b32 s%d, s%d, 10" % (S_T[0], S_T[2]))
        e("s_lshl_b32 s%d, s%d, 8" % (S_T[1], S_T[4]))
        e("s_add_u32 s%d, s%d, s%d" % (S_T[0], S_T[0], S_T[1]))
        e("v_add_u32 v%d, s%d, v%d" % (V_ST, S_T[0], V_ST))
        e("v_lshrrev_b32 v%d, 4, v%d" % (V_TMP[2], L))
        e("v_lshlrev_b32 v%d, 2, v%d" % (V_TMP[3], V_TMP[2]))
        e("v_and_b32 v%d, 15, v%d" % (V_TMP[4], L))
        e("v_xor_b32 v%d, v%d, v%d" % (V_TMP[3], V_TMP[3], V_TMP[4]))
        e("v_lshlrev_b32 v%d, 4, v%d" % (V_TMP[3], V_TMP[3]))
        e("s_lshl_b32 s%d, s%d, 2" % (S_T[0], S_T[5]))
        e("v_add_u32 v%d, s%d, v%d" % (V_TMP[2], S_T[0], V_TMP[2]))
        e("v_lshlrev_b32 v%d, 4, v%d" % (V_DMA, L))
        e("s_lshl_b32 s%d, s%d, 10" % (S_T[0], S_T[5]))
        e("v_add_u32 v%d, s%d, v%d" % (V_DMA, S_T[0], V_DMA))
        e("s_lshl_b32 s%d, s%d, 17" % (S_PB, S_TILE))
        e("s_add_u32 s%d, s%d, %d" % (S_PB, S_PB, PART))
        e("s_lshl_b32 s%d, s%d, 14" % (S_T[0], S_T[5]))
        e("v_lshlrev_b32 v%d, 4, v%d" % (V_RED, L))
        e("v_add_u32 v%d, s%d, v%d" % (V_RED, S_T[0], V_RED))
        for op in self.dma_ops(0):
            op()
        for s in range(4):
            self.b_load2(s)
        for op in self.dma_ops(1):
            op()
        r_, t2, t3 = V_TMP[2], V_TMP[3], V_TMP[4]
        e("v_bfe_u32 v%d, v%d, 2, 2" % (r_, L))
        e("v_lshl_add_u32 v%d, v%d, 3, v%d" % (t2, HH, r_))
        e("v_lshlrev_b32 v%d, 8, v%d" % (t2, t2))
        e("v_bfe_u32 v%d, v%d, 4, 1" % (t3, L))
        e("v_lshl_add_u32 v%d, v%d, 5, v%d" % (t2, t3, t2))
        e("v_and_b32 v%d, 1, v%d" % (t3, L))
        e("v_lshl_add_u32 v%d, v%d, 4, v%d" % (t2, t3, t2))
        e("v_bfe_u32 v%d, v%d, 1, 1" % (t3, L))
        e("v_lshl_add_u32 v%d, v%d, 3, v%d" % (t2, t3, t2))
        e("v_add_u32 v%d, s%d, v%d" % (t2, S_HB, t2))
        for t in range(4):
            e("v_xor_b32 v%d, %d, v%d" % (t3, t, r_))
            e("v_lshl_add_u32 v%d, v%d, 6, v%d" % (V_AA[t], t3, t2))
        for i in range(64):
            e("v_mov_b32 v%d, 0" % (V_ACC + i))
        for s in range(4, 8):
            self.b_load2(s)
        a.wait(vm=self.dma_tags(0))
        e("s_barrier")
        if 'st2' in EXP:
            e("s_memtime s[82:83]")
            e("s_waitcnt lgkmcnt(0)")
        for f in range(LA2):
            self.issue_frag(f)
        e("s_mov_b32 s%d, 0" % S_CNT)

    def epilogue(self):
        a = self.a
        e = a.emit
        e("s_nop 15")
        e("s_nop 3")
        e("s_waitcnt vmcnt(0) lgkmcnt(0)")
        e("s_barrier")
        if 'st2' in EXP:
            e("s_memtime s[84:85]")
            e("s_waitcnt lgkmcnt(0)")
        e("s_cmp_eq_u32 s%d, 0" % S_HALF)
        e("s_cbranch_scc1 L2_h0")
        for i in range(8):
            e("ds_write_b128 v%d, %s offset:%d" % (V_RED, vr(V_ACC + 4 * i, 4), 8192 + i * 1024))
        e("s_waitcnt lgkmcnt(0)")
        e("s_barrier")
        for i in range(8):
            e("ds_read_b128 %s, v%d offset:%d" % (vr(V_B + 4 * i, 4), V_RED, i * 1024))
        e("s_waitcnt lgkmcnt(0)")
        for i in range(32):
            e("v_add_f32 v%d, v%d, v%d" % (V_ACC + i, V_ACC + 32 + i, V_B + i))
        e("s_branch L2_j")
        a.label("L2_h0")
        for i in range(8):
            e("ds_write_b128 v%d, %s offset:%d" % (V_RED, vr(V_ACC + 32 + 4 * i, 4), i * 1024))
        e("s_waitcnt lgkmcnt(0)")
        e("s_barrier")
        for i in range(8):
            e("ds_read_b128 %s, v%d offset:%d" % (vr(V_B + 4 * i, 4), V_RED, 8192 + i * 1024))
        e("s_waitcnt lgkmcnt(0)")
        for i in range(32):
            e("v_add_f32 v%d, v%d, v%d" % (V_ACC + i, V_ACC + i, V_B + i))
        a.label("L2_j")
        e("s_lshl_b32 s%d, s%d, 13" % (S_T[2], S_HALF))
        e("s_add_u32 s%d, s%d, s%d" % (S_PB, S_PB, S_T[2]))
        e("s_lshl_b32 s%d, s%d, 16" % (S_T[0], S_KH))
        e("s_add_u32 s%d, s%d, s%d" % (S_T[0], S_T[0], S_PB))
        for g in range(2):
            e("s_add_u32 s%d, s%d, %d" % (S_T[1], S_T[0], g * 4096))
            for i in range(4):
                e("buffer_store_dwordx4 %s, v%d, s[%d:%d], s%d offen offset:%d sc1" %
                  (vr(V_ACC + 16 * g + 4 * i, 4), V_RED, S_WS, S_WS + 3, S_T[1], i * 1024))
        e("s_waitcnt vmcnt(0)")
        e("s_barrier")
        e("s_cmp_eq_u32 s%d, 0" % S_WVL)
        e("s_cbranch_scc0 L2_noat")
        e("s_lshr_b32 s%d, s%d, 1" % (S_T[0], S_TILE))
        e("s_lshl_b32 s%d, s%d, 2" % (S_T[0], S_T[0]))
        e("s_and_b32 s%d, s%d, 1" % (S_T[1], S_TILE))
        e("s_lshl_b32 s%d, s%d, 4" % (S_T[1], S_T[1]))
        e("s_lshl_b32 s%d, 1, s%d" % (S_T[2], S_T[1]))
        e("v_mov_b32 v%d, s%d" % (V_TMP[2], S_T[2]))
        e("v_mov_b32 v%d, s%d" % (V_TMP[3], S_T[0]))
        e("s_mov_b64 s[44:45], exec")
        e("s_mov_b64 exec, 1")
        e("buffer_atomic_add v%d, v%d, s[%d:%d], 0 offen sc0 sc1" % (V_TMP[2], V_TMP[3], S_DBG, S_DBG + 3))
        e("s_waitcnt vmcnt(0)")
        e("v_lshrrev_b32 v%d, s%d, v%d" % (V_TMP[2], S_T[1], V_TMP[2]))
        e("v_and_b32 v%d, 0xffff, v%d" % (V_TMP[2], V_TMP[2]))
        e("v_mov_b32 v%d, 65536" % V_TMP[3])
        e("ds_write_b32 v%d, v%d" % (V_TMP[3], V_TMP[2]))
        e("s_waitcnt lgkmcnt(0)")
        e("s_mov_b64 exec, s[44:45]")
        a.label("L2_noat")
        e("s_barrier")
        e("v_mov_b32 v%d, 65536" % V_TMP[3])
        e("ds_read_b32 v%d, v%d" % (V_TMP[2], V_TMP[3]))
        e("s_waitcnt lgkmcnt(0)")
        e("v_readfirstlane_b32 s%d, v%d" % (S_T[0], V_TMP[2]))
        e("s_and_b32 s%d, s%d, 1" % (S_T[0], S_T[0]))
        e("s_cmp_eq_u32 s%d, 0" % S_T[0])
        e("s_cbranch_scc1 L2_end")
        e("s_xor_b32 s%d, s%d, 1" % (S_T[0], S_KH))
        e("s_lshl_b32 s%d, s%d, 16" % (S_T[0], S_T[0]))
        e("s_add_u32 s%d, s%d, s%d" % (S_T[0], S_T[0], S_PB))
        for g in range(2):
            e("s_add_u32 s%d, s%d, %d" % (S_T[1], S_T[0], g * 4096))
            for i in range(4):
                e("buffer_load_dwordx4 %s, v%d, s[%d:%d], s%d offen offset:%d sc1" %
                  (vr(V_B + 16 * g + 4 * i, 4), V_RED, S_WS, S_WS + 3, S_T[1], i * 1024))
        e("s_lshl_b32 s%d, s%d, 7" % (S_T[2], S_HALF))
        for t in range(2):
            e("s_waitcnt vmcnt(%d)" % (4 - 4 * t + 2 * t))
            for i in range(16):
                e("v_add_f32 v%d, v%d, v%d" % (V_ACC + 16 * t + i, V_ACC + 16 * t + i, V_B + 16 * t + i))
            for i in range(0, 16, 2):
                e("v_cvt_pk_bf16_f32 v%d, v%d, v%d" % (V_OUT + t * 8 + i // 2, V_ACC + t * 16 + i, V_ACC + t * 16 + i + 1))
            for G in range(2):
                e("buffer_store_dwordx4 %s, v%d, s[%d:%d], s%d offen offset:%d" %
                  (vr(V_OUT + t * 8 + 4 * G, 4), V_ST, S_OUT, S_OUT + 3, S_T[2], t * 64 + G * 32) + (" nt" if 'nto' in EXP else ""))

    def gen(self):
        a = self.a
        a.new_trace(0)
        self.prologue()
        self.body_all()
        a.trace = False
        a.reset_sites(0)
        self.prologue()
        self.body_all()
        self.epilogue()
        a.label("L2_end")
        if 'st2' in EXP:
            e = a.emit
            e("s_cmp_ge_u32 s2, 256")
            e("s_cbranch_scc1 L2_end2")
            e("s_waitcnt vmcnt(0)")
            e("s_memtime s[86:87]")
            e("s_waitcnt lgkmcnt(0)")
            e("s_sub_u32 s82, s82, s80")
            e("s_sub_u32 s84, s84, s80")
            e("s_sub_u32 s86, s86, s80")
            e("v_mov_b32 v20, s82")
            e("v_mov_b32 v21, s84")
            e("v_mov_b32 v22, s86")
            e("v_mov_b32 v23, 0")
            e("v_lshrrev_b32 v24, 6, v0")
            e("v_lshlrev_b32 v24, 4, v24")
            e("s_lshl_b32 s80, s2, 7")
            e("s_add_u32 s80, s80, %d" % (64 << 20))
            e("s_load_dwordx2 s[8:9], s[0:1], 96")
            e("s_mov_b32 s10, 0x10000000")
            e("s_mov_b32 s11, 0x00020000")
            e("s_waitcnt lgkmcnt(0)")
            e("buffer_store_dwordx4 v[20:23], v24, s[8:11], s80 offen")
            a.label("L2_end2")
        a.emit("s_endpgm")
```

```python
from asmlib import Asm
import math, struct, os
EXP = os.environ.get('EXP', '')

SLOT = 16384
NSLOT = 10
XSCR = 8 * SLOT
LA = int(os.environ.get('LA', '5'))
NFR = 7
THR = 256.0

V_T1 = 1
V_XOFF = 2
V_XW = [3, 4]
V_STOFF = 5
V_DW, V_DV, V_DK = 6, 7, 8
V_L = [9, 12]
V_RC = 10
V_NM = 13
V_TS = [14, 15]
V_ET = [16, 17, 18, 19]
V_VW = [20, 21, 22, 23]
V_KA = [24 + i for i in range(8)]
V_FR = 32
V_XR = [60, 61, 62, 63]
V_THR = 60
V_STMP = 61
V_EP = 62
V_QACC = 64
V_S = [64, 80]
V_P = [96, 104]
V_NEGM = 112
V_Q = 128
A_O = 0
A_XF = 64

S_X, S_W, S_K, S_V, S_WS = 4, 8, 12, 16, 20
S_KVB = [26, 28]
S_WCB = [27, 29]
S_T = [34, 35, 36, 37, 38, 39]
S_SCALE = 40
S_WV1K = 42
S_STB = [43, 44, 45, 46]
S_XSO = [52, 53, 54, 55]
S_CLS = 47
S_TCH = 84
V_TCH = 62
TPOS = int(os.environ.get('TPOS', '12'))
S_WO = 56
S_WOS = 60 - 10
S_WOD = 51
WOT = 32 << 20
V_WOV = 152
STFLAG = os.environ.get('STFLAG', '')
SHIFT = int(os.environ.get('SHIFT', '8'))

def vr(b, n):
    return "v[%d:%d]" % (b, b + n - 1)
def ar(b, n):
    return "a[%d:%d]" % (b, b + n - 1)

class K1:
    def __init__(self, a, stamps=False):
        self.a = a
        self.stamps = stamps
        self.plan()

    def plan(self):
        steps = []
        for j in range(8):
            steps.append([('W', 0, j), ('W', 1, j)])
        for T in range(17):
            st = []
            if T < 16:
                st.append(('K', T // 8, T % 8))
            if T >= 1:
                st.append(('V', (T - 1) // 8, (T - 1) % 8))
            steps.append(st)
        self.steps = steps
        seq = [c for st in steps for c in st]
        self.seq = seq
        cons_step = {}
        for si, st in enumerate(steps):
            for c in st:
                cons_step[c] = si
        self.cons_step = cons_step
        free_at = {s: -1 for s in range(8)}
        free_at[8] = 8
        free_at[9] = 8
        self.slot = {}
        self.issue_step = {}
        for c in seq:
            s = min(free_at, key=lambda k: (free_at[k], k))
            self.slot[c] = s
            self.issue_step[c] = free_at[s]
            free_at[s] = cons_step[c] + 1
            assert self.issue_step[c] <= cons_step[c] - 2 or self.issue_step[c] == -1, (c, self.issue_step[c], cons_step[c])
        self.issue_at = {}
        for c in seq:
            self.issue_at.setdefault(self.issue_step[c], []).append(c)

    def stamp(self):
        if not self.stamps:
            return
        a = self.a
        a.emit("s_memtime s[60:61]")
        a.emit("s_waitcnt lgkmcnt(0)")
        a.emit("v_mov_b32 v%d, s60" % V_T1)
        a.emit("v_cmp_eq_u32 vcc, s62, v0")
        a.emit("s_nop 1")
        a.emit("v_cndmask_b32 v%d, v%d, v%d, vcc" % (V_STMP2, V_STMP2, V_T1))
        a.emit("s_add_u32 s62, s62, 1")

    def dma_ops(self, c):
        a = self.a
        kind, u, j = c
        ops = []
        for i in range(2):
            def op(i=i):
                if kind == 'W':
                    srd, base, goff, vo = S_W, S_WCB[u], j * 524288 + i * 262144, V_DW
                elif kind == 'K':
                    srd, base, goff, vo = S_K, S_KVB[u], j * 16384 + i * 8192, V_DK
                else:
                    srd, base, goff, vo = S_V, S_KVB[u], j * 16384 + i * 8192, V_DV
                a.emit("s_add_u32 m0, s%d, %d" % (S_WV1K, self.slot[c] * SLOT + i * 8192))
                a.emit("s_add_u32 s%d, s%d, %d" % (S_T[0], base, goff))
                fl = " nt" if (kind != 'W' or 'ntw' in EXP) else ""
                a.vmem("buffer_load_dwordx4 v%d, s[%d:%d], s%d offen%s lds" % (vo, srd, srd + 3, S_T[0], fl), ('dma', c, i))
            ops.append((op, 4))
        return ops

    def dma_tags(self, c):
        return [('dma', c, i) for i in range(2)]

    def addr_update(self, c):
        a = self.a
        kind = c[0]
        key = 'K' if kind == 'K' else 'VW'
        new = self.slot[c] * SLOT
        d = new - self.cur_base[key]
        self.cur_base[key] = new
        if d == 0:
            return
        for r in (V_KA if kind == 'K' else V_VW):
            a.emit("v_add_u32 v%d, 0x%x, v%d" % (r, d & 0xffffffff, r))

    def xraw_reg(self, j, i):
        return vr(V_Q + (j % 2) * 16 + i * 4, 4)

    def x_raw_load(self, j, i):
        a = self.a
        a.vmem("buffer_load_dwordx4 %s, v%d, s[%d:%d], s%d offen offset:%d" %
               (self.xraw_reg(j, i), V_XOFF, S_X, S_X + 3, S_XSO[i], j * 128) + (" nt" if 'ntx' in EXP else ""), ('xr', j, i))

    def x_write(self, j, i):
        a = self.a
        if 'noxvm' not in EXP:
            a.wait(vm=[('xr', j, i)])
        if 'noxw' in EXP:
            return
        a.ds("ds_write_b128 v%d, %s offset:%d" % (V_XW[i % 2], self.xraw_reg(j, i), i * 1024), ('xw', j, i))

    def x_read(self, j, ks):
        a = self.a
        if 'noxr' in EXP and j > 0:
            a.lgi[('xf', j, ks)] = a.lgi.get(('xf', 0, 0), 0)
            return
        a.ds("ds_read_b128 %s, v%d" % (ar(A_XF + (j % 2) * 16 + ks * 4, 4), V_XR[ks]), ('xf', j, ks))

    def build_frags(self):
        fr = []
        for j in range(8):
            for ks in range(4):
                for u in range(2):
                    for t in range(4):
                        fr.append(('W', u, j, ks, t))
        def ktile(g):
            for s in range(8):
                fr.append(('K', g, s))
        def vtile(g):
            for dt in range(4):
                for ks in range(2):
                    fr.append(('V', g, dt, ks))
        self.order = []
        ktile(0)
        ktile(1)
        for g in range(1, 31):
            if g == 16:
                vtile(15)
                ktile(17)
            else:
                ktile(g + 1)
                vtile(g - 1)
        vtile(30)
        vtile(31)
        return fr

    def frag_reg(self, f):
        return V_FR + (f % NFR) * 4

    def frag_chunk(self, f):
        d = self.frags[f]
        if d[0] == 'W':
            return ('W', d[1], d[2])
        g = d[1]
        return (d[0], g // 16, (g % 16) // 2)

    def issue_frag(self, f):
        a = self.a
        d = self.frags[f]
        r = self.frag_reg(f)
        c = self.frag_chunk(f)
        if d[0] == 'W':
            _, u, j, ks, t = d
            base = self.slot[c] * SLOT - self.cur_base['VW']
            off = base + (16 * ks) * 256
            if off < 0 or off + 1024 + 8 > 65535:
                self.addr_update(c)
                off = (16 * ks) * 256
            for e2 in range(2):
                a.ds("ds_read_b64_tr_b16 %s, v%d offset:%d" % (vr(r + 2 * e2, 2), V_VW[t], off + 1024 * e2), ('fr', f, e2))
        elif d[0] == 'V':
            _, g, dt, ks = d
            base = self.slot[c] * SLOT - self.cur_base['VW']
            off = base + (32 * (g & 1) + 16 * ks) * 256
            if off < 0 or off + 1024 + 8 > 65535:
                self.addr_update(c)
                off = (32 * (g & 1) + 16 * ks) * 256
            for e2 in range(2):
                a.ds("ds_read_b64_tr_b16 %s, v%d offset:%d" % (vr(r + 2 * e2, 2), V_VW[dt], off + 1024 * e2), ('fr', f, e2))
        else:
            _, g, s = d
            base = self.slot[c] * SLOT - self.cur_base['K']
            off = base + (g & 1) * 8192
            if off < 0 or off + 16 > 65535:
                self.addr_update(c)
                off = (g & 1) * 8192
            a.ds("ds_read_b128 %s, v%d offset:%d" % (vr(r, 4), V_KA[s], off), ('fr', f, 1))

    def softmax_ops(self, g):
        a = self.a
        cb = g & 1
        ops = []
        def E(p):
            ta, tb = V_ET[2 * (p & 1)], V_ET[2 * (p & 1) + 1]
            s0 = V_S[cb] + 2 * p
            ops.append((lambda: a.emit("v_exp_f32 v%d, v%d" % (ta, s0)), 8))
            ops.append((lambda: a.emit("v_exp_f32 v%d, v%d" % (tb, s0 + 1)), 8))
        def R(p):
            ta, tb = V_ET[2 * (p & 1)], V_ET[2 * (p & 1) + 1]
            if p == 0:
                ops.append((lambda: a.emit("v_mov_b32 v%d, v%d" % (V_TS[0], ta)), 4))
                ops.append((lambda: a.emit("v_mov_b32 v%d, v%d" % (V_TS[1], tb)), 4))
            else:
                ops.append((lambda: a.emit("v_add_f32 v%d, v%d, v%d" % (V_TS[0], V_TS[0], ta)), 4))
                ops.append((lambda: a.emit("v_add_f32 v%d, v%d, v%d" % (V_TS[1], V_TS[1], tb)), 4))
            pr = V_P[cb] + p
            ops.append((lambda: a.emit("v_cvt_pk_bf16_f32 v%d, v%d, v%d" % (pr, ta, tb)), 4))
        E(0)
        for p in range(1, 8):
            E(p)
            R(p - 1)
        ops.append((lambda: a.emit("s_nop 0"), 4))
        R(7)
        ops.append((lambda: a.emit("v_add_f32 v%d, v%d, v%d" % (V_TS[0], V_TS[0], V_TS[1])), 4))
        return ops

    def check_ops(self, g):
        a = self.a
        u = g // 16
        if g % 16 == 0:
            a.emit("v_mov_b32 v%d, v%d" % (V_L[u], V_TS[0]))
            return
        a.emit("v_cmp_nle_f32 vcc, v%d, v%d" % (V_TS[0], V_THR))
        a.emit("s_cbranch_vccnz L_slow%d" % g)
        a.label("L_back%d" % g)
        a.emit("v_add_f32 v%d, v%d, v%d" % (V_L[u], V_L[u], V_TS[0]))

    def rowmax_ops(self, s, T0, T1):
        a = self.a
        ops = []
        ops.append((lambda: a.emit("v_max3_f32 v%d, v%d, v%d, v%d" % (T0, s, s + 1, s + 2)), 4))
        for i in range(3, 15, 2):
            ops.append((lambda i=i: a.emit("v_max3_f32 v%d, v%d, v%d, v%d" % (T0, T0, s + i, s + i + 1)), 4))
        ops.append((lambda: a.emit("v_max_f32 v%d, v%d, v%d" % (T0, T0, s + 15)), 4))
        def sw():
            a.emit("v_mov_b32 v%d, v%d" % (T1, T0))
            a.emit("s_nop 1")
            a.emit("v_permlane32_swap_b32 v%d, v%d" % (T0, T1))
            a.emit("s_nop 1")
        ops.append((sw, 16))
        return ops

    def init_ops(self, g):
        a = self.a
        s = V_S[g & 1]
        T0, T1 = V_ET[0], V_ET[1]
        ops = self.rowmax_ops(s, T0, T1)
        ops.append((lambda: a.emit("v_max_f32 v%d, v%d, v%d" % (T0, T0, T1)), 4))
        ops.append((lambda: a.emit("v_sub_f32 v%d, 0, v%d" % (V_NM, T0)), 4))
        for i in range(16):
            ops.append((lambda i=i: a.emit("v_mov_b32 v%d, v%d" % (V_NEGM + i, V_NM)), 4))
        for i in range(16):
            ops.append((lambda i=i: a.emit("v_add_f32 v%d, v%d, v%d" % (s + i, s + i, V_NM)), 4))
        return ops

    def slow_path(self, g):
        a = self.a
        u = g // 16
        cb = g & 1
        nb = cb ^ 1
        a.label("L_slow%d" % g)
        a.emit("s_nop 15")
        a.emit("s_nop 15")
        T0, T1 = V_ET[0], V_ET[1]
        s = V_S[cb]
        for op, c in self.rowmax_ops(s, T0, T1):
            op()
        a.emit("v_max3_f32 v%d, v%d, v%d, 0" % (T0, T0, T1))
        a.emit("v_exp_f32 v%d, -v%d" % (T1, T0))
        if g % 16 != 15:
            a.emit("v_sub_f32 v%d, v%d, v%d" % (V_NM, V_NM, T0))
            for i in range(16):
                a.emit("v_mov_b32 v%d, v%d" % (V_NEGM + i, V_NM))
            for i in range(16):
                r = V_S[nb] + i
                a.emit("v_sub_f32 v%d, v%d, v%d" % (r, r, T0))
        a.emit("v_mul_f32 v%d, v%d, v%d" % (V_L[u], V_L[u], T1))
        for i in range(64):
            r = A_O + i
            a.emit("v_accvgpr_read_b32 v%d, a%d" % (V_ET[2], r))
            a.emit("v_mul_f32 v%d, v%d, v%d" % (V_ET[3], V_ET[2], T1))
            a.emit("v_accvgpr_write_b32 a%d, v%d" % (r, V_ET[3]))
        a.emit("v_mov_b32 v%d, 0" % V_TS[0])
        for p in range(8):
            a.emit("v_sub_f32 v%d, v%d, v%d" % (V_ET[2], s + 2 * p, T0))
            a.emit("v_sub_f32 v%d, v%d, v%d" % (V_ET[3], s + 2 * p + 1, T0))
            a.emit("v_exp_f32 v%d, v%d" % (V_ET[2], V_ET[2]))
            a.emit("v_exp_f32 v%d, v%d" % (V_ET[3], V_ET[3]))
            a.emit("s_nop 0")
            a.emit("v_add_f32 v%d, v%d, v%d" % (V_TS[0], V_TS[0], V_ET[2]))
            a.emit("v_add_f32 v%d, v%d, v%d" % (V_TS[0], V_TS[0], V_ET[3]))
            a.emit("v_cvt_pk_bf16_f32 v%d, v%d, v%d" % (V_P[cb] + p, V_ET[2], V_ET[3]))
        a.emit("s_nop 3")
        a.emit("s_branch L_back%d" % g)

    def touch(self, e):
        if 'touch' not in EXP:
            return
        a = self.a
        a.emit("s_add_u32 s%d, s%d, %d" % (S_T[0], S_KVB[e // 4], (e % 4) * 32768))
        a.vmem("buffer_load_dword v%d, v%d, s[%d:%d], s%d offen nt" % (V_T1, V_L[0] if e < 4 else V_TCH, S_TCH, S_TCH + 3, S_T[0]), None)

    def wo_ld(self, k):
        a = self.a
        if k == 0:
            a.emit("v_lshrrev_b32 v%d, 3, v0" % V_TS[0])
            a.emit("v_lshlrev_b32 v%d, 10, v%d" % (V_TS[0], V_TS[0]))
            a.emit("v_bfe_u32 v%d, v0, 4, 1" % V_TS[1])
            a.emit("v_lshlrev_b32 v%d, 2, v%d" % (V_TS[1], V_TS[1]))
            a.emit("v_xor_b32 v%d, v0, v%d" % (V_TS[1], V_TS[1]))
            a.emit("v_and_b32 v%d, 7, v%d" % (V_TS[1], V_TS[1]))
            a.emit("v_lshl_add_u32 v%d, v%d, 4, v%d" % (V_TS[0], V_TS[1], V_TS[0]))
            a.emit("v_lshlrev_b32 v%d, 4, v0" % V_TS[1])
        a.emit("s_add_u32 s%d, s%d, %d" % (S_T[0], S_WOS, k * 65536))
        a.vmem("buffer_load_dwordx4 %s, v%d, s[%d:%d], s%d offen" % (vr(V_ET[0], 4), V_TS[0], S_WO, S_WO + 3, S_T[0]) + (" nt" if 'ntwo' in EXP else ""), ('wo', k))

    def wo_st(self, k):
        a = self.a
        a.wait(vm=[('wo', k)])
        a.emit("s_add_u32 s%d, s%d, %d" % (S_T[0], S_WOD, k * 8192))
        a.vmem("buffer_store_dwordx4 %s, v%d, s[%d:%d], s%d offen" % (vr(V_ET[0], 4), V_TS[1], S_WS, S_WS + 3, S_T[0]) + STFLAG, None)

    def epilogue_ops(self, u, tmp):
        a = self.a
        ops = []
        T0, T1 = V_RC, 63
        def pre():
            a.emit("v_mov_b32 v%d, v%d" % (T0, V_L[u]))
            a.emit("v_mov_b32 v%d, v%d" % (T1, V_L[u]))
            a.emit("s_nop 1")
            a.emit("v_permlane32_swap_b32 v%d, v%d" % (T0, T1))
            a.emit("s_nop 1")
            a.emit("v_add_f32 v%d, v%d, v%d" % (T0, T0, T1))
            a.emit("v_rcp_f32 v%d, v%d" % (T0, T0))
            a.emit("s_nop 0")
        ops.append((pre, 30))
        k = 0
        for dt in range(4):
            for G in range(2):
                base = tmp[k % len(tmp)]
                k += 1
                o = A_O + dt * 16 + 8 * G
                for i in range(8):
                    ops.append((lambda base=base, i=i, o=o: a.emit("v_accvgpr_read_b32 v%d, a%d" % (base + i, o + i)), 4))
                for i in range(8):
                    ops.append((lambda base=base, i=i: a.emit("v_mul_f32 v%d, v%d, v%d" % (base + i, base + i, T0)), 4))
                for i in range(0, 8, 2):
                    ops.append((lambda base=base, i=i: a.emit("v_cvt_pk_bf16_f32 v%d, v%d, v%d" % (base + 8 + i // 2, base + i, base + i + 1)), 4))
                kq = 2 * dt + G
                so = S_STB[u * 2 + (kq // 4)]
                ops.append((lambda base=base, so=so, kq=kq: a.vmem(
                    "buffer_store_dwordx4 %s, v%d, s[%d:%d], s%d offen offset:%d%s" %
                    (vr(base + 8, 4), V_STOFF, S_WS, S_WS + 3, so, (kq % 4) * 1024, STFLAG), None), 4))
        return ops

    def body(self):
        a = self.a
        frags = self.frags
        self.fpos = 0
        self.fiss = 0
        fillers = []
        timed = {}

        def time_ops(ops, span):
            n = len(ops)
            for cls in range(2):
                for k, (op, c) in enumerate(ops):
                    pos = self.fpos + cls * (span // 2) + 1 + (k * (span // 2 - 1)) // n
                    timed.setdefault(pos, []).append((cls, op))

        def pump(budget):
            while fillers and budget > 0:
                op, c = fillers.pop(0)
                op()
                budget -= c

        def flush():
            while fillers:
                op, c = fillers.pop(0)
                op()

        def issue_upto(n):
            while self.fiss < min(n, len(frags)):
                self.issue_frag(self.fiss)
                self.fiss += 1

        def step_start(si, front=False):
            need = []
            if si + 1 < len(self.steps):
                for c in self.steps[si + 1]:
                    need += self.dma_tags(c)
            if need:
                a.wait(vm=need)
            a.emit("s_barrier")
            if si in (0, 8, 9, 16, 17, 24) or 'allst' in EXP:
                self.stamp()
            ops = []
            for c in self.issue_at.get(si, []):
                ops.extend(self.dma_ops(c))
            return ops

        def consume(mf, extra_lg=(), per=14):
            f = self.fpos
            a.wait(lg=[('fr', f, 1)] + list(extra_lg))
            mf(self.frag_reg(f))
            issue_upto(f + 1 + LA)
            for cls, fn in timed.pop(f, []):
                if cls is None:
                    fn()
                else:
                    a.cond(cls, fn, S_CLS)
            pump(per)
            self.fpos += 1

        for i in range(4):
            self.x_write(0, i)
        for ks in range(4):
            self.x_read(0, ks)
        for j in range(8):
            dma = step_start(j)
            if j == 0:
                issue_upto(LA)
                dma = self.late_prologue + dma
            mi = 0
            sched = {}
            for cls in range(2):
                sh = cls * SHIFT
                if j + 2 < 8:
                    for i in range(4):
                        sched.setdefault(1 + 2 * i + sh, []).append((cls, lambda i=i: self.x_raw_load(j + 2, i)))
                for k, (op, c) in enumerate(dma):
                    sched.setdefault(min(9 + 2 * k + sh, 31), []).append((cls, op))
                if j + 1 < 8:
                    for i in range(4):
                        sched.setdefault(2 + 4 * i + sh, []).append((cls, lambda i=i: self.x_write(j + 1, i)))
                    for k in range(4):
                        sched.setdefault(17 + k + sh, []).append((cls, lambda k=k: self.x_read(j + 1, k)))
            for ks in range(4):
                for u in range(2):
                    for t in range(4):
                        def m(fr):
                            if u == 0:
                                acc = vr(V_QACC + t * 16, 16)
                            else:
                                acc = ar(A_O + t * 16, 16)
                            c = "0" if (j == 0 and ks == 0) else acc
                            a.emit("v_mfma_f32_32x32x16_bf16 %s, %s, %s, %s" %
                                   (acc, vr(fr, 4), ar(A_XF + (j % 2) * 16 + ks * 4, 4), c))
                        consume(m, [('xf', j, ks)] if (t == 0 and u == 0) else [])
                        for cls, fn in sched.get(mi, []):
                            a.cond(cls, fn, S_CLS)
                        if mi == TPOS and j % 2 == 1:
                            self.touch(j // 2)
                        if mi == 28 and j % 2 == 0 and j >= 2:
                            self.wo_st((j - 2) // 2)
                        if mi == 30 and j % 2 == 0:
                            self.wo_ld(j // 2)
                        mi += 1
            flush()

        self.wo_st(3)
        a.emit("s_nop 7")
        a.emit("s_nop 7")
        tb = struct.unpack("<I", struct.pack("<f", THR))[0]
        a.emit("v_mov_b32 v%d, 0x%08x" % (V_THR, tb))
        a.emit("v_mov_b32 v%d, v%d" % (V_TCH, V_L[0]))
        for t in range(4):
            acc = V_QACC + t * 16
            for i in range(0, 16, 2):
                a.emit("v_pk_mul_f32 %s, %s, s[%d:%d]" % (vr(acc + i, 2), vr(acc + i, 2), S_SCALE, S_SCALE + 1))
            for i in range(0, 16, 2):
                q = V_Q + (2 * t + i // 8) * 4 + (i % 8) // 2
                a.emit("v_cvt_pk_bf16_f32 v%d, v%d, v%d" % (q, acc + i, acc + i + 1))
        conv1 = []
        CT = [V_P[1], V_P[1] + 2, V_P[1] + 4, V_P[1] + 6]
        k = 0
        for t in range(4):
            for i in range(0, 16, 2):
                tt = CT[k % 4]
                k += 1
                o = A_O + t * 16 + i
                q = A_XF + (2 * t + i // 8) * 4 + (i % 8) // 2
                def cv(tt=tt, o=o, q=q):
                    a.emit("v_accvgpr_read_b32 v%d, a%d" % (tt, o))
                    a.emit("v_accvgpr_read_b32 v%d, a%d" % (tt + 1, o + 1))
                    a.emit("v_mul_f32 v%d, s%d, v%d" % (tt, S_SCALE, tt))
                    a.emit("v_mul_f32 v%d, s%d, v%d" % (tt + 1, S_SCALE, tt + 1))
                    a.emit("v_cvt_pk_bf16_f32 v%d, v%d, v%d" % (tt, tt, tt + 1))
                    a.emit("v_accvgpr_write_b32 a%d, v%d" % (q, tt))
                conv1.append((cv, 24))

        def A_mfmas(g, per=14):
            nb = g & 1
            u = g // 16
            for s in range(8):
                def m(fr):
                    sreg = V_S[nb]
                    if s == 0:
                        c = "0" if g % 16 == 0 else vr(V_NEGM, 16)
                    else:
                        c = vr(sreg, 16)
                    q = vr(V_Q + s * 4, 4) if u == 0 else ar(A_XF + s * 4, 4)
                    a.emit("v_mfma_f32_32x32x16_bf16 %s, %s, %s, %s" % (vr(sreg, 16), vr(fr, 4), q, c))
                consume(m, per=per)

        def C_mfmas(g, per=14):
            pb = g & 1
            for dt in range(4):
                for ks in range(2):
                    def m(fr):
                        o = A_O + dt * 16
                        c = "0" if (g % 16 == 0 and ks == 0) else ar(o, 16)
                        a.emit("v_mfma_f32_32x32x16_bf16 %s, %s, %s, %s" %
                               (ar(o, 16), vr(fr, 4), vr(V_P[pb] + ks * 4, 4), c))
                    consume(m, per=per)

        time_ops(step_start(8), 16)
        fillers.extend(conv1[:16])
        a.emit("s_nop 1")
        A_mfmas(0, per=24)
        flush()
        a.emit("s_nop 7")
        for op, c in self.init_ops(0):
            op()
        fillers.extend(self.softmax_ops(0))
        fillers.extend(conv1[16:])
        A_mfmas(1, per=40)
        flush()
        self.check_ops(0)
        for T in range(1, 16):
            time_ops(step_start(8 + T), 32)
            if T in (1, 3, 5, 7):
                timed.setdefault(self.fpos + 20, []).append((None, lambda T=T: self.touch(4 + (T - 1) // 2)))
            for g in (2 * T - 1, 2 * T):
                if g == 16:
                    a.emit("s_nop 1")
                    fillers.extend([(lambda: a.emit("s_nop 7"), 8)] + self.init_ops(16))
                    C_mfmas(15, per=30)
                    flush()
                    a.emit("s_nop 1")
                    ep = self.epilogue_ops(0, [V_Q, V_Q + 12])
                    fillers.extend(self.softmax_ops(16))
                    fillers.append((lambda: a.emit("s_nop 7"), 8))
                    fillers.extend(ep[:90])
                    self.ep_rest = ep[90:]
                    A_mfmas(17, per=40)
                    flush()
                    self.check_ops(16)
                    continue
                if g == 17:
                    fillers.extend(self.ep_rest)
                    fillers.extend(self.softmax_ops(g))
                    A_mfmas(g + 1, per=40)
                    while any(True for _ in ()):
                        pass
                    n_sm = len(self.softmax_ops(g))
                    while len(fillers) > n_sm:
                        op, c = fillers.pop(0)
                        op()
                    a.emit("s_nop 1")
                    C_mfmas(g - 1, per=24)
                    flush()
                    self.check_ops(g)
                    continue
                fillers.extend(self.softmax_ops(g))
                A_mfmas(g + 1)
                C_mfmas(g - 1)
                flush()
                self.check_ops(g)
        time_ops(step_start(24), 16)
        fillers.extend(self.softmax_ops(31))
        C_mfmas(30, per=30)
        flush()
        self.check_ops(31)
        a.emit("s_nop 1")
        C_mfmas(31)
        flush()
        self.stamp()
        a.emit("s_nop 15")
        for op, c in self.epilogue_ops(1, [64, 76, 88, 100]):
            op()

    def prologue(self):
        a = self.a
        e = a.emit
        self.cur_base = {'K': 0, 'VW': 0}
        e("s_cmp_ge_u32 s2, 256")
        e("s_cbranch_scc1 L_end")
        if self.stamps:
            e("s_memtime s[90:91]")
            e("s_memrealtime s[92:93]")
        e("s_and_b32 s%d, s2, 7" % S_T[0])
        e("s_lshr_b32 s%d, s2, 3" % S_T[1])
        e("s_and_b32 s%d, s%d, 1" % (S_T[2], S_T[0]))
        e("s_load_dwordx16 s[64:79], s[0:1], 0")
        e("s_load_dwordx8 s[80:87], s[0:1], 64")
        e("s_load_dwordx2 s[88:89], s[0:1], 96")
        e("s_lshr_b32 s%d, s%d, 1" % (S_T[3], S_T[0]))
        e("s_and_b32 s%d, s%d, 1" % (S_T[3], S_T[3]))
        e("s_lshl_b32 s%d, s%d, 2" % (S_T[3], S_T[3]))
        e("s_and_b32 s%d, s%d, 3" % (S_T[4], S_T[1]))
        e("s_add_u32 s%d, s%d, s%d" % (S_T[3], S_T[3], S_T[4]))
        e("s_lshr_b32 s%d, s%d, 2" % (S_T[4], S_T[0]))
        e("s_lshl_b32 s%d, s%d, 4" % (S_T[4], S_T[4]))
        e("s_lshr_b32 s%d, s%d, 2" % (S_T[5], S_T[1]))
        e("s_add_u32 s%d, s%d, s%d" % (S_T[4], S_T[4], S_T[5]))
        e("s_waitcnt lgkmcnt(0)")
        e("s_cmp_eq_u32 s%d, 0" % S_T[2])
        for (dst, pa, pb, sz) in ((S_X, 64, 74, 8 * 240 * 512 * 2), (S_K, 66, 76, 8 * 32 * 512 * 128 * 2),
                                  (S_V, 68, 78, 8 * 32 * 512 * 128 * 2), (S_W, 70, 80, 512 * 4096 * 2)):
            e("s_cselect_b32 s%d, s%d, s%d" % (dst, pa, pb))
            e("s_cselect_b32 s%d, s%d, s%d" % (dst + 1, pa + 1, pb + 1))
            e("s_mov_b32 s%d, %d" % (dst + 2, sz))
            e("s_mov_b32 s%d, 0x00020000" % (dst + 3))
        e("s_cselect_b32 s%d, s72, s82" % S_WO)
        e("s_cselect_b32 s%d, s73, s83" % (S_WO + 1))
        e("s_mov_b32 s%d, %d" % (S_WO + 2, 4096 * 512 * 2))
        e("s_mov_b32 s%d, 0x00020000" % (S_WO + 3))
        e("s_lshr_b32 s%d, s%d, 1" % (S_WOS, S_T[0]))
        e("s_lshl_b32 s%d, s%d, 5" % (S_WOS, S_WOS))
        e("s_add_u32 s%d, s%d, s%d" % (S_WOS, S_WOS, S_T[1]))
        e("s_lshl_b32 s%d, s%d, 22" % (S_WOD, S_T[2]))
        e("s_lshl_b32 s63, s%d, 15" % S_WOS)
        e("s_add_u32 s%d, s%d, s63" % (S_WOD, S_WOD))
        e("s_add_u32 s%d, s%d, %d" % (S_WOD, S_WOD, WOT))
        e("s_lshr_b32 s63, s%d, 4" % S_WOS)
        e("s_lshl_b32 s63, s63, 7")
        e("s_and_b32 s%d, s%d, 15" % (S_WOS, S_WOS))
        e("s_lshl_b32 s%d, s%d, 18" % (S_WOS, S_WOS))
        e("s_add_u32 s%d, s%d, s63" % (S_WOS, S_WOS))
        e("s_mov_b32 s%d, s88" % S_WS)
        e("s_mov_b32 s%d, s89" % (S_WS + 1))
        e("s_mov_b32 s%d, %d" % (S_WS + 2, WOT + (8 << 20)))
        e("s_mov_b32 s%d, 0x00020000" % (S_WS + 3))
        e("s_lshl_b32 s%d, s%d, 5" % (S_T[5], S_T[3]))
        e("s_add_u32 s%d, s%d, s%d" % (S_T[5], S_T[5], S_T[4]))
        e("s_lshl_b32 s%d, s%d, 17" % (S_KVB[0], S_T[5]))
        e("s_lshl_b32 s%d, s%d, 8" % (S_WCB[0], S_T[4]))
        e("s_add_u32 s%d, s%d, %d" % (S_KVB[1], S_KVB[0], 8 * 131072))
        e("s_add_u32 s%d, s%d, %d" % (S_WCB[1], S_WCB[0], 8 * 256))
        e("s_mul_i32 s%d, s%d, %d" % (S_STB[0], S_T[2], 60 * 262144))
        e("s_lshl_b32 s%d, s%d, 13" % (S_T[5], S_T[4]))
        e("s_add_u32 s%d, s%d, s%d" % (S_STB[0], S_STB[0], S_T[5]))
        e("s_add_u32 s%d, s%d, 4096" % (S_STB[1], S_STB[0]))
        e("s_add_u32 s%d, s%d, %d" % (S_STB[2], S_STB[0], 65536))
        e("s_add_u32 s%d, s%d, %d" % (S_STB[3], S_STB[0], 65536 + 4096))
        c = math.log2(math.e) / math.sqrt(128.0)
        cb = struct.unpack("<I", struct.pack("<f", c))[0]
        e("s_mov_b32 s%d, 0x%08x" % (S_SCALE, cb))
        e("s_mov_b32 s%d, 0x%08x" % (S_SCALE + 1, cb))
        for i in range(4):
            e("s_mov_b32 s%d, %d" % (S_XSO[i], i * 8192))
        e("v_lshrrev_b32 v%d, 6, v0" % V_T1)
        e("s_nop 0")
        e("v_readfirstlane_b32 s%d, v%d" % (S_T[0], V_T1))
        e("s_lshl_b32 s%d, s%d, 10" % (S_WV1K, S_T[0]))
        e("s_lshl_b32 s62, s%d, 6" % S_T[0])
        e("s_lshr_b32 s%d, s%d, 2" % (S_CLS, S_T[0]))
        L = V_L[0]
        HH = V_L[1]
        e("v_and_b32 v%d, 63, v0" % L)
        e("v_lshrrev_b32 v%d, 5, v%d" % (HH, L))
        e("s_mul_i32 s%d, s%d, 240" % (S_T[1], S_T[3]))
        e("s_lshl_b32 s%d, s%d, 5" % (S_T[2], S_T[0]))
        e("s_add_u32 s%d, s%d, s%d" % (S_T[1], S_T[1], S_T[2]))
        RP, CH = V_ET[0], V_ET[1]
        e("v_lshrrev_b32 v%d, 4, v%d" % (V_ET[2], L))
        e("s_lshl_b32 s%d, s%d, 2" % (S_T[5], S_T[0]))
        e("v_add_u32 v%d, s%d, v%d" % (RP, S_T[5], V_ET[2]))
        e("v_and_b32 v%d, 15, v%d" % (CH, L))
        e("v_lshlrev_b32 v%d, 2, v%d" % (V_ET[3], V_ET[2]))
        e("v_xor_b32 v%d, v%d, v%d" % (V_ET[3], CH, V_ET[3]))
        e("v_lshlrev_b32 v%d, 4, v%d" % (V_ET[3], V_ET[3]))
        e("v_lshl_add_u32 v%d, v%d, 13, v%d" % (V_DW, RP, V_ET[3]))
        e("v_lshl_add_u32 v%d, v%d, 8, v%d" % (V_DV, RP, V_ET[3]))
        e("v_and_b32 v%d, 15, v%d" % (V_ET[3], RP))
        e("v_xor_b32 v%d, v%d, v%d" % (V_ET[3], CH, V_ET[3]))
        e("v_lshlrev_b32 v%d, 4, v%d" % (V_ET[3], V_ET[3]))
        e("v_lshl_add_u32 v%d, v%d, 8, v%d" % (V_DK, RP, V_ET[3]))
        e("v_lshrrev_b32 v%d, 3, v%d" % (V_ET[0], L))
        e("v_add_u32 v%d, s%d, v%d" % (V_ET[1], S_T[1], V_ET[0]))
        e("v_lshlrev_b32 v%d, 10, v%d" % (V_XOFF, V_ET[1]))
        e("v_and_b32 v%d, 7, v%d" % (V_ET[1], L))
        e("v_lshl_add_u32 v%d, v%d, 4, v%d" % (V_XOFF, V_ET[1], V_XOFF))
        first = self.issue_at[-1]
        for i in range(4):
            self.x_raw_load(0, i)
        for c in first[:2]:
            for op, cc in self.dma_ops(c):
                op()
        for i in range(4):
            self.x_raw_load(1, i)
        for c in first[2:4]:
            for op, cc in self.dma_ops(c):
                op()
        self.late_prologue = []
        for c in first[4:]:
            self.late_prologue.extend(self.dma_ops(c))
        e("v_lshrrev_b32 v%d, 4, v%d" % (V_ET[2], L))
        e("v_xor_b32 v%d, v%d, v%d" % (V_ET[2], V_ET[1], V_ET[2]))
        e("v_lshlrev_b32 v%d, 4, v%d" % (V_ET[2], V_ET[2]))
        e("v_lshl_add_u32 v%d, v%d, 7, v%d" % (V_ET[2], V_ET[0], V_ET[2]))
        e("s_lshl_b32 s%d, s%d, 2" % (S_T[5], S_WV1K))
        e("s_add_u32 s%d, s%d, %d" % (S_T[5], S_T[5], XSCR))
        e("v_add_u32 v%d, s%d, v%d" % (V_XW[0], S_T[5], V_ET[2]))
        e("v_xor_b32 v%d, 64, v%d" % (V_XW[1], V_XW[0]))
        e("v_and_b32 v%d, 31, v%d" % (V_ET[0], L))
        e("v_bfe_u32 v%d, v%d, 1, 3" % (V_ET[1], L))
        e("v_xor_b32 v%d, v%d, v%d" % (V_ET[1], V_ET[1], HH))
        for ks in range(4):
            e("v_xor_b32 v%d, %d, v%d" % (V_ET[2], 2 * ks, V_ET[1]))
            e("v_lshlrev_b32 v%d, 4, v%d" % (V_ET[2], V_ET[2]))
            e("v_lshl_add_u32 v%d, v%d, 7, v%d" % (V_ET[2], V_ET[0], V_ET[2]))
            e("v_add_u32 v%d, s%d, v%d" % (V_XR[ks], S_T[5], V_ET[2]))
        R = V_ET[0]
        e("v_and_b32 v%d, 31, v%d" % (V_ET[3], L))
        e("v_add_u32 v%d, s%d, v%d" % (R, S_T[1], V_ET[3]))
        e("v_lshrrev_b32 v%d, 5, v%d" % (V_ET[1], R))
        e("v_lshlrev_b32 v%d, 18, v%d" % (V_ET[1], V_ET[1]))
        e("v_and_b32 v%d, 31, v%d" % (V_ET[2], R))
        e("v_lshlrev_b32 v%d, 4, v%d" % (V_ET[2], V_ET[2]))
        e("v_lshl_add_u32 v%d, v%d, 9, v%d" % (V_ET[2], HH, V_ET[2]))
        e("v_add_u32 v%d, v%d, v%d" % (V_STOFF, V_ET[1], V_ET[2]))
        e("v_add_u32 v%d, s%d, v%d" % (V_ET[3], S_T[2], V_ET[3]))
        e("v_mov_b32 v%d, 0x7f000000" % V_ET[0])
        e("v_cmp_gt_u32 vcc, 240, v%d" % V_ET[3])
        e("s_nop 1")
        e("v_cndmask_b32 v%d, v%d, v%d, vcc" % (V_STOFF, V_ET[0], V_STOFF))
        r_, c4 = V_ET[0], V_ET[1]
        e("v_bfe_u32 v%d, v%d, 2, 2" % (r_, L))
        e("v_and_b32 v%d, 3, v%d" % (c4, L))
        e("v_lshl_add_u32 v%d, v%d, 3, v%d" % (V_ET[2], HH, r_))
        e("v_lshlrev_b32 v%d, 8, v%d" % (V_ET[2], V_ET[2]))
        e("v_bfe_u32 v%d, v%d, 4, 1" % (V_ET[3], L))
        e("v_lshl_add_u32 v%d, v%d, 5, v%d" % (V_ET[2], V_ET[3], V_ET[2]))
        e("v_and_b32 v%d, 1, v%d" % (V_ET[3], c4))
        e("v_lshl_add_u32 v%d, v%d, 4, v%d" % (V_ET[2], V_ET[3], V_ET[2]))
        e("v_lshrrev_b32 v%d, 1, v%d" % (V_ET[3], c4))
        e("v_lshl_add_u32 v%d, v%d, 3, v%d" % (V_ET[2], V_ET[3], V_ET[2]))
        for t in range(4):
            e("v_xor_b32 v%d, %d, v%d" % (V_ET[3], t, r_))
            e("v_lshl_add_u32 v%d, v%d, 6, v%d" % (V_VW[t], V_ET[3], V_ET[2]))
        key = V_ET[0]
        e("v_and_b32 v%d, 0x13, v%d" % (key, L))
        e("v_bfe_u32 v%d, v%d, 2, 1" % (V_ET[1], L))
        e("v_lshl_add_u32 v%d, v%d, 3, v%d" % (key, V_ET[1], key))
        e("v_bfe_u32 v%d, v%d, 3, 1" % (V_ET[1], L))
        e("v_lshl_add_u32 v%d, v%d, 2, v%d" % (key, V_ET[1], key))
        e("v_and_b32 v%d, 15, v%d" % (V_ET[1], key))
        e("v_xor_b32 v%d, v%d, v%d" % (V_ET[1], V_ET[1], HH))
        for s in range(8):
            e("v_xor_b32 v%d, %d, v%d" % (V_ET[2], 2 * s, V_ET[1]))
            e("v_lshlrev_b32 v%d, 4, v%d" % (V_ET[2], V_ET[2]))
            e("v_lshl_add_u32 v%d, v%d, 8, v%d" % (V_KA[s], key, V_ET[2]))
        e("v_and_b32 v%d, 0xff, v0" % V_L[0])
        e("v_lshlrev_b32 v%d, 7, v%d" % (V_L[0], V_L[0]))
        e("s_cmp_eq_u32 s%d, 0" % S_CLS)
        e("s_cselect_b32 s%d, s%d, s%d" % (S_TCH, S_K, S_V))
        e("s_cselect_b32 s%d, s%d, s%d" % (S_TCH + 1, S_K + 1, S_V + 1))
        e("s_mov_b32 s%d, s%d" % (S_TCH + 2, S_K + 2))
        e("s_mov_b32 s%d, 0x00020000" % (S_TCH + 3))
        need = []
        for c in self.steps[0]:
            need += self.dma_tags(c)
        a.wait(vm=need)
        a.emit("s_barrier")
        self.stamp()

    def gen(self):
        a = self.a
        self.frags = self.build_frags()
        for cls in (0, 1):
            a.new_trace(cls)
            self.prologue()
            self.body()
        a.trace = False
        a.reset_sites(0)
        self.prologue()
        self.body()
        if self.stamps:
            self.stamp()
            a.emit("v_subrev_u32 v%d, s90, v%d" % (V_STMP2, V_STMP2))
            a.emit("s_memrealtime s[60:61]")
            a.emit("s_waitcnt lgkmcnt(0)")
            a.emit("s_sub_u32 s60, s60, s92")
            a.emit("v_mov_b32 v%d, s60" % V_T1)
            a.emit("v_cmp_eq_u32 vcc, s62, v0")
            a.emit("s_nop 1")
            a.emit("v_cndmask_b32 v%d, v%d, v%d, vcc" % (V_STMP2, V_STMP2, V_T1))
            a.emit("s_add_u32 s62, s62, 1")
            a.emit("v_mov_b32 v%d, s92" % V_T1)
            a.emit("v_cmp_eq_u32 vcc, s62, v0")
            a.emit("s_nop 1")
            a.emit("v_cndmask_b32 v%d, v%d, v%d, vcc" % (V_STMP2, V_STMP2, V_T1))
            a.emit("v_lshlrev_b32 v%d, 2, v0" % V_T1)
            a.emit("s_lshl_b32 s60, s2, 11")
            a.emit("s_add_u32 s60, s60, %d" % (64 << 20))
            a.emit("s_mov_b32 s%d, 0x10000000" % (S_WS + 2))
            a.emit("buffer_store_dword v%d, v%d, s[%d:%d], s60 offen" % (V_STMP2, V_T1, S_WS, S_WS + 3))
        a.label("L_end")
        a.emit("s_endpgm")
        for g in range(32):
            if g % 16 != 0:
                self.slow_path(g)

V_STMP2 = 11
```

```python
from asmlib import Asm
import os
EXP = os.environ.get('EXP', '')

NS2 = 5
CK = 256
SLOT2 = CK * 128
RING2 = NS2 * SLOT2
LA2 = 4
NFR2 = 8
NB = 32
WOT = 32 << 20

V_T1 = 1
V_BOFF = 2
V_DMA = 3
V_AA = [4, 5]
V_ST = 6
V_TMP = [7, 8, 9, 10, 11]
V_FR = 12
V_ACC = 44
V_OUT = 76
V_B = 96

S_WO, S_WS, S_OUT = 4, 8, 12
S_T = [16, 17, 18, 19, 20, 21]
S_WV1K = 24
S_GOFF = 25
S_BOFF = 26
S_CNT = 27

def vr(b, n):
    return "v[%d:%d]" % (b, b + n - 1)

class K2:
    def __init__(self, a):
        self.a = a

    def dma_ops(self, ci):
        a = self.a
        ops = []
        for i in range(8):
            def op(i=i):
                a.emit("s_add_u32 m0, s%d, %d" % (S_WV1K, (ci % NS2) * SLOT2 + i * 4096))
                a.emit("s_add_u32 s%d, s%d, %d" % (S_T[0], S_GOFF, ci * SLOT2 + i * 4096))
                a.vmem("buffer_load_dwordx4 v%d, s[%d:%d], s%d offen lds" % (V_DMA, S_WO, S_WO + 3, S_T[0]), ('dma', ci, i))
            ops.append(op)
        return ops

    def dma_tags(self, ci):
        return [('dma', ci, i) for i in range(8)]

    def b_load(self, s_abs):
        a = self.a
        loc = s_abs % NB
        a.emit("s_add_u32 s%d, s%d, %d" % (S_T[1], S_BOFF, (s_abs // 4) * 4096))
        a.vmem("buffer_load_dwordx4 %s, v%d, s[%d:%d], s%d offen offset:%d" %
               (vr(V_B + loc * 4, 4), V_BOFF, S_WS, S_WS + 3, S_T[1], (s_abs % 4) * 1024), ('b', s_abs))

    def issue_frag(self, f):
        a = self.a
        s = f // 2
        nn = f % 2
        ks = s % 16
        ci = s // 16
        r = V_FR + (f % NFR2) * 4
        new = (ci % NS2) * SLOT2
        off = new - self.cur + (16 * ks) * 128
        if off < 0 or off + 512 + 8 > 65535:
            d = new - self.cur
            self.cur = new
            for n2 in range(2):
                a.emit("v_add_u32 v%d, 0x%x, v%d" % (V_AA[n2], d & 0xffffffff, V_AA[n2]))
            off = (16 * ks) * 128
        for e2 in range(2):
            a.ds("ds_read_b64_tr_b16 %s, v%d offset:%d" % (vr(r + 2 * e2, 2), V_AA[nn], off + 512 * e2), ('fr', f, e2))

    def body(self):
        a = self.a
        extra = []
        for s2 in range(8, NB):
            extra.append(lambda s2=s2: self.b_load(s2))
            if s2 == 15:
                extra.extend(self.dma_ops(2))
            if s2 == 23:
                extra.extend(self.dma_ops(3))
        pend = []
        for ci in range(16):
            if ci + 1 < 16:
                a.wait(vm=self.dma_tags(ci + 1))
            a.emit("s_barrier")
            if ci + NS2 - 1 < 16:
                pend.extend(self.dma_ops(ci + NS2 - 1))
            for ks in range(16):
                s = ci * 16 + ks
                for nn in range(2):
                    f = 2 * s + nn
                    a.wait(vm=[('b', s)] if nn == 0 else [], lg=[('fr', f, 1)])
                    acc = V_ACC + nn * 16
                    c = "0" if s == 0 else vr(acc, 16)
                    a.emit("v_mfma_f32_32x32x16_bf16 %s, %s, %s, %s" %
                           (vr(acc, 16), vr(V_FR + (f % NFR2) * 4, 4), vr(V_B + (s % NB) * 4, 4), c))
                    if f + LA2 < 512:
                        self.issue_frag(f + LA2)
                    if extra:
                        extra.pop(0)()
                    elif pend and nn == 0:
                        pend.pop(0)()
                if s + NB < 256:
                    self.b_load(s + NB)

    def prologue(self):
        a = self.a
        e = a.emit
        self.cur = 0
        e("s_cmp_ge_u32 s2, 256")
        e("s_cbranch_scc1 L2_end")
        if 'st2' in EXP:
            e("s_memtime s[80:81]")
        e("s_load_dwordx2 s[68:69], s[0:1], 80")
        e("s_load_dwordx2 s[70:71], s[0:1], 96")
        e("s_and_b32 s%d, s2, 7" % S_T[0])
        e("s_lshr_b32 s%d, s2, 3" % S_T[1])
        e("s_lshr_b32 s%d, s%d, 2" % (S_T[2], S_T[0]))
        e("s_and_b32 s%d, s%d, 3" % (S_T[3], S_T[0]))
        e("s_lshl_b32 s%d, s%d, 2" % (S_T[3], S_T[3]))
        e("s_lshr_b32 s%d, s%d, 3" % (S_T[4], S_T[1]))
        e("s_add_u32 s%d, s%d, s%d" % (S_T[3], S_T[3], S_T[4]))
        e("s_and_b32 s%d, s%d, 7" % (S_T[4], S_T[1]))
        e("s_cmp_ge_u32 s%d, 15" % S_T[3])
        e("s_cbranch_scc1 L2_end")
        e("v_lshrrev_b32 v%d, 6, v0" % V_T1)
        e("s_nop 0")
        e("v_readfirstlane_b32 s%d, v%d" % (S_T[5], V_T1))
        e("s_lshl_b32 s%d, s%d, 10" % (S_WV1K, S_T[5]))
        L = V_TMP[0]
        HH = V_TMP[1]
        e("v_and_b32 v%d, 63, v0" % L)
        e("v_lshrrev_b32 v%d, 5, v%d" % (HH, L))
        e("v_lshlrev_b32 v%d, 4, v0" % V_DMA)
        e("v_lshlrev_b32 v%d, 4, v%d" % (V_BOFF, L))
        e("s_lshl_b32 s%d, s%d, 22" % (S_GOFF, S_T[2]))
        e("s_lshl_b32 s%d, s%d, 19" % (S_T[0], S_T[4]))
        e("s_add_u32 s%d, s%d, s%d" % (S_GOFF, S_GOFF, S_T[0]))
        e("s_add_u32 s%d, s%d, %d" % (S_GOFF, S_GOFF, WOT))
        e("s_mul_i32 s%d, s%d, 60" % (S_CNT, S_T[2]))
        e("s_lshl_b32 s%d, s%d, 2" % (S_T[3], S_T[3]))
        e("s_add_u32 s%d, s%d, s%d" % (S_T[3], S_T[3], S_T[5]))
        e("s_add_u32 s%d, s%d, s%d" % (S_CNT, S_CNT, S_T[3]))
        e("s_lshl_b32 s%d, s%d, 18" % (S_BOFF, S_CNT))
        e("s_waitcnt lgkmcnt(0)")
        for r in (S_WO, S_WS):
            e("s_mov_b32 s%d, s70" % r)
            e("s_mov_b32 s%d, s71" % (r + 1))
            e("s_mov_b32 s%d, %d" % (r + 2, WOT + (8 << 20)))
            e("s_mov_b32 s%d, 0x00020000" % (r + 3))
        for op in self.dma_ops(0):
            op()
        for s in range(4):
            self.b_load(s)
        e("s_mov_b32 s%d, s68" % S_OUT)
        e("s_mov_b32 s%d, s69" % (S_OUT + 1))
        e("s_mov_b32 s%d, %d" % (S_OUT + 2, 1920 * 1024 * 2))
        e("s_mov_b32 s%d, 0x00020000" % (S_OUT + 3))
        e("s_lshl_b32 s%d, s%d, 5" % (S_T[3], S_T[3]))
        e("v_and_b32 v%d, 31, v%d" % (V_T1, L))
        e("v_add_u32 v%d, s%d, v%d" % (V_T1, S_T[3], V_T1))
        e("v_lshlrev_b32 v%d, 11, v%d" % (V_ST, V_T1))
        e("v_lshl_add_u32 v%d, v%d, 4, v%d" % (V_ST, HH, V_ST))
        e("s_lshl_b32 s%d, s%d, 10" % (S_T[2], S_T[2]))
        e("s_lshl_b32 s%d, s%d, 7" % (S_T[4], S_T[4]))
        e("s_add_u32 s%d, s%d, s%d" % (S_T[2], S_T[2], S_T[4]))
        e("v_add_u32 v%d, s%d, v%d" % (V_ST, S_T[2], V_ST))
        for op in self.dma_ops(1):
            op()
        for s in range(4, 8):
            self.b_load(s)
        r_, t2, t3 = V_TMP[2], V_TMP[3], V_TMP[4]
        e("v_bfe_u32 v%d, v%d, 2, 2" % (r_, L))
        e("v_lshl_add_u32 v%d, v%d, 3, v%d" % (t2, HH, r_))
        e("v_lshlrev_b32 v%d, 7, v%d" % (t2, t2))
        e("v_bfe_u32 v%d, v%d, 4, 1" % (t3, L))
        e("v_lshl_add_u32 v%d, v%d, 5, v%d" % (t2, t3, t2))
        e("v_and_b32 v%d, 1, v%d" % (t3, L))
        e("v_lshl_add_u32 v%d, v%d, 4, v%d" % (t2, t3, t2))
        e("v_bfe_u32 v%d, v%d, 1, 1" % (t3, L))
        e("v_lshl_add_u32 v%d, v%d, 3, v%d" % (t2, t3, t2))
        e("v_lshrrev_b32 v%d, 1, v%d" % (r_, r_))
        for nn in range(2):
            e("v_xor_b32 v%d, %d, v%d" % (t3, nn, r_))
            e("v_lshl_add_u32 v%d, v%d, 6, v%d" % (V_AA[nn], t3, t2))
        a.wait(vm=self.dma_tags(0))
        e("s_barrier")
        if 'st2' in EXP:
            e("s_memtime s[82:83]")
            e("s_waitcnt lgkmcnt(0)")
        for f in range(LA2):
            self.issue_frag(f)

    def epilogue(self):
        a = self.a
        e = a.emit
        if 'st2' in EXP:
            e("s_memtime s[84:85]")
            e("s_waitcnt lgkmcnt(0)")
        e("s_nop 15")
        e("s_nop 3")
        for nn in range(2):
            for i in range(0, 16, 2):
                e("v_cvt_pk_bf16_f32 v%d, v%d, v%d" % (V_OUT + nn * 8 + i // 2, V_ACC + nn * 16 + i, V_ACC + nn * 16 + i + 1))
            for G in range(2):
                e("buffer_store_dwordx4 %s, v%d, s[%d:%d], 0 offen offset:%d" %
                  (vr(V_OUT + nn * 8 + 4 * G, 4), V_ST, S_OUT, S_OUT + 3, nn * 64 + G * 32))

    def gen(self):
        a = self.a
        a.new_trace(0)
        self.prologue()
        self.body()
        a.trace = False
        a.reset_sites(0)
        self.prologue()
        self.body()
        self.epilogue()
        a.label("L2_end")
        if 'st2' in EXP:
            e = a.emit
            e("s_cmp_ge_u32 s2, 256")
            e("s_cbranch_scc1 L2_end2")
            e("s_waitcnt vmcnt(0)")
            e("s_memtime s[86:87]")
            e("s_waitcnt lgkmcnt(0)")
            e("s_sub_u32 s82, s82, s80")
            e("s_sub_u32 s84, s84, s80")
            e("s_sub_u32 s86, s86, s80")
            e("v_mov_b32 v20, s82")
            e("v_mov_b32 v21, s84")
            e("v_mov_b32 v22, s86")
            e("v_mov_b32 v23, 0")
            e("v_lshrrev_b32 v24, 6, v0")
            e("v_lshlrev_b32 v24, 4, v24")
            e("s_lshl_b32 s80, s2, 7")
            e("s_add_u32 s80, s80, %d" % (64 << 20))
            e("s_load_dwordx2 s[8:9], s[0:1], 96")
            e("s_mov_b32 s10, 0x10000000")
            e("s_mov_b32 s11, 0x00020000")
            e("s_waitcnt lgkmcnt(0)")
            e("buffer_store_dwordx4 v[20:23], v24, s[8:11], s80 offen")
            a.label("L2_end2")
        a.emit("s_endpgm")
```

```python
from asmlib import Asm
import math, struct, os
EXP = os.environ.get('EXP', '')

SLOT = 16384
NSLOT = 10
XSCR = 8 * SLOT
LA = int(os.environ.get('LA', '5'))
NFR = 7
THR = 256.0

V_T1 = 1
V_XOFF = 2
V_XW = [3, 4]
V_STOFF = 5
V_DW, V_DV, V_DK = 6, 7, 8
V_L = [9, 12]
V_RC = 10
V_NM = 13
V_TS = [14, 15]
V_ET = [16, 17, 18, 19]
V_VW = [20, 21, 22, 23]
V_KA = [24 + i for i in range(8)]
V_FR = 32
V_XR = [60, 61, 62, 63]
V_THR = 60
V_STMP = 61
V_EP = 62
V_QACC = 64
V_S = [64, 80]
V_P = [96, 104]
V_NEGM = 112
V_Q = 128
A_O = 0
A_XF = 64

S_X, S_W, S_K, S_V, S_WS = 4, 8, 12, 16, 20
S_KVB = [26, 28]
S_WCB = [27, 29]
S_T = [34, 35, 36, 37, 38, 39]
S_SCALE = 40
S_WV1K = 42
S_STB = [43, 44, 45, 46]
S_XSO = [52, 53, 54, 55]
S_CLS = 47
K2V = os.environ.get('K2V', 'v3')
S_TCH = 84
V_TCH = 62
TPOS = int(os.environ.get('TPOS', '12'))
S_WO = 56
S_WOS = 60 - 10
S_WOD = 51
WOT = 32 << 20
V_WOV = 152
STFLAG = os.environ.get('STFLAG', '')
SHIFT = int(os.environ.get('SHIFT', '8'))

def vr(b, n):
    return "v[%d:%d]" % (b, b + n - 1)
def ar(b, n):
    return "a[%d:%d]" % (b, b + n - 1)

class K1:
    def __init__(self, a, stamps=False):
        self.a = a
        self.stamps = stamps
        self.plan()

    def plan(self):
        steps = []
        for j in range(8):
            steps.append([('W', 0, j), ('W', 1, j)])
        for T in range(17):
            st = []
            if T < 16:
                st.append(('K', T // 8, T % 8))
            if T >= 1:
                st.append(('V', (T - 1) // 8, (T - 1) % 8))
            steps.append(st)
        self.steps = steps
        seq = [c for st in steps for c in st]
        self.seq = seq
        cons_step = {}
        for si, st in enumerate(steps):
            for c in st:
                cons_step[c] = si
        self.cons_step = cons_step
        free_at = {s: -1 for s in range(8)}
        free_at[8] = 8
        free_at[9] = 8
        self.slot = {}
        self.issue_step = {}
        for c in seq:
            s = min(free_at, key=lambda k: (free_at[k], k))
            self.slot[c] = s
            self.issue_step[c] = free_at[s]
            free_at[s] = cons_step[c] + 1
            assert self.issue_step[c] <= cons_step[c] - 2 or self.issue_step[c] == -1, (c, self.issue_step[c], cons_step[c])
        self.issue_at = {}
        for c in seq:
            self.issue_at.setdefault(self.issue_step[c], []).append(c)

    def stamp(self):
        if not self.stamps:
            return
        a = self.a
        a.emit("s_memtime s[60:61]")
        a.emit("s_waitcnt lgkmcnt(0)")
        a.emit("v_mov_b32 v%d, s60" % V_T1)
        a.emit("v_cmp_eq_u32 vcc, s62, v0")
        a.emit("s_nop 1")
        a.emit("v_cndmask_b32 v%d, v%d, v%d, vcc" % (V_STMP2, V_STMP2, V_T1))
        a.emit("s_add_u32 s62, s62, 1")

    def dma_ops(self, c):
        a = self.a
        kind, u, j = c
        ops = []
        for i in range(2):
            def op(i=i):
                if kind == 'W':
                    srd, base, goff, vo = S_W, S_WCB[u], j * 524288 + i * 262144, V_DW
                elif kind == 'K':
                    srd, base, goff, vo = S_K, S_KVB[u], j * 16384 + i * 8192, V_DK
                else:
                    srd, base, goff, vo = S_V, S_KVB[u], j * 16384 + i * 8192, V_DV
                a.emit("s_add_u32 m0, s%d, %d" % (S_WV1K, self.slot[c] * SLOT + i * 8192))
                a.emit("s_add_u32 s%d, s%d, %d" % (S_T[0], base, goff))
                fl = " nt" if (kind != 'W' or 'ntw' in EXP) else ""
                a.vmem("buffer_load_dwordx4 v%d, s[%d:%d], s%d offen%s lds" % (vo, srd, srd + 3, S_T[0], fl), ('dma', c, i))
            ops.append((op, 4))
        return ops

    def dma_tags(self, c):
        return [('dma', c, i) for i in range(2)]

    def addr_update(self, c):
        a = self.a
        kind = c[0]
        key = 'K' if kind == 'K' else 'VW'
        new = self.slot[c] * SLOT
        d = new - self.cur_base[key]
        self.cur_base[key] = new
        if d == 0:
            return
        for r in (V_KA if kind == 'K' else V_VW):
            a.emit("v_add_u32 v%d, 0x%x, v%d" % (r, d & 0xffffffff, r))

    def xraw_reg(self, j, i):
        return vr(V_Q + (j % 2) * 16 + i * 4, 4)

    def x_raw_load(self, j, i):
        a = self.a
        a.vmem("buffer_load_dwordx4 %s, v%d, s[%d:%d], s%d offen offset:%d" %
               (self.xraw_reg(j, i), V_XOFF, S_X, S_X + 3, S_XSO[i], j * 128) + (" nt" if 'ntx' in EXP else ""), ('xr', j, i))

    def x_write(self, j, i):
        a = self.a
        if 'noxvm' not in EXP:
            a.wait(vm=[('xr', j, i)])
        if 'noxw' in EXP:
            return
        a.ds("ds_write_b128 v%d, %s offset:%d" % (V_XW[i % 2], self.xraw_reg(j, i), i * 1024), ('xw', j, i))

    def x_read(self, j, ks):
        a = self.a
        if 'noxr' in EXP and j > 0:
            a.lgi[('xf', j, ks)] = a.lgi.get(('xf', 0, 0), 0)
            return
        a.ds("ds_read_b128 %s, v%d" % (ar(A_XF + (j % 2) * 16 + ks * 4, 4), V_XR[ks]), ('xf', j, ks))

    def build_frags(self):
        fr = []
        for j in range(8):
            for ks in range(4):
                for u in range(2):
                    for t in range(4):
                        fr.append(('W', u, j, ks, t))
        def ktile(g):
            for s in range(8):
                fr.append(('K', g, s))
        def vtile(g):
            for dt in range(4):
                for ks in range(2):
                    fr.append(('V', g, dt, ks))
        self.order = []
        ktile(0)
        ktile(1)
        for g in range(1, 31):
            if g == 16:
                vtile(15)
                ktile(17)
            else:
                ktile(g + 1)
                vtile(g - 1)
        vtile(30)
        vtile(31)
        return fr

    def frag_reg(self, f):
        return V_FR + (f % NFR) * 4

    def frag_chunk(self, f):
        d = self.frags[f]
        if d[0] == 'W':
            return ('W', d[1], d[2])
        g = d[1]
        return (d[0], g // 16, (g % 16) // 2)

    def issue_frag(self, f):
        a = self.a
        d = self.frags[f]
        r = self.frag_reg(f)
        c = self.frag_chunk(f)
        if d[0] == 'W':
            _, u, j, ks, t = d
            base = self.slot[c] * SLOT - self.cur_base['VW']
            off = base + (16 * ks) * 256
            if off < 0 or off + 1024 + 8 > 65535:
                self.addr_update(c)
                off = (16 * ks) * 256
            for e2 in range(2):
                a.ds("ds_read_b64_tr_b16 %s, v%d offset:%d" % (vr(r + 2 * e2, 2), V_VW[t], off + 1024 * e2), ('fr', f, e2))
        elif d[0] == 'V':
            _, g, dt, ks = d
            base = self.slot[c] * SLOT - self.cur_base['VW']
            off = base + (32 * (g & 1) + 16 * ks) * 256
            if off < 0 or off + 1024 + 8 > 65535:
                self.addr_update(c)
                off = (32 * (g & 1) + 16 * ks) * 256
            for e2 in range(2):
                a.ds("ds_read_b64_tr_b16 %s, v%d offset:%d" % (vr(r + 2 * e2, 2), V_VW[dt], off + 1024 * e2), ('fr', f, e2))
        else:
            _, g, s = d
            base = self.slot[c] * SLOT - self.cur_base['K']
            off = base + (g & 1) * 8192
            if off < 0 or off + 16 > 65535:
                self.addr_update(c)
                off = (g & 1) * 8192
            a.ds("ds_read_b128 %s, v%d offset:%d" % (vr(r, 4), V_KA[s], off), ('fr', f, 1))

    def softmax_ops(self, g):
        a = self.a
        cb = g & 1
        ops = []
        def E(p):
            ta, tb = V_ET[2 * (p & 1)], V_ET[2 * (p & 1) + 1]
            s0 = V_S[cb] + 2 * p
            ops.append((lambda: a.emit("v_exp_f32 v%d, v%d" % (ta, s0)), 8))
            ops.append((lambda: a.emit("v_exp_f32 v%d, v%d" % (tb, s0 + 1)), 8))
        def R(p):
            ta, tb = V_ET[2 * (p & 1)], V_ET[2 * (p & 1) + 1]
            if p == 0:
                ops.append((lambda: a.emit("v_mov_b32 v%d, v%d" % (V_TS[0], ta)), 4))
                ops.append((lambda: a.emit("v_mov_b32 v%d, v%d" % (V_TS[1], tb)), 4))
            else:
                ops.append((lambda: a.emit("v_add_f32 v%d, v%d, v%d" % (V_TS[0], V_TS[0], ta)), 4))
                ops.append((lambda: a.emit("v_add_f32 v%d, v%d, v%d" % (V_TS[1], V_TS[1], tb)), 4))
            pr = V_P[cb] + p
            ops.append((lambda: a.emit("v_cvt_pk_bf16_f32 v%d, v%d, v%d" % (pr, ta, tb)), 4))
        E(0)
        for p in range(1, 8):
            E(p)
            R(p - 1)
        ops.append((lambda: a.emit("s_nop 0"), 4))
        R(7)
        ops.append((lambda: a.emit("v_add_f32 v%d, v%d, v%d" % (V_TS[0], V_TS[0], V_TS[1])), 4))
        return ops

    def check_ops(self, g):
        a = self.a
        u = g // 16
        if g % 16 == 0:
            a.emit("v_mov_b32 v%d, v%d" % (V_L[u], V_TS[0]))
            return
        a.emit("v_cmp_nle_f32 vcc, v%d, v%d" % (V_TS[0], V_THR))
        a.emit("s_cbranch_vccnz L_slow%d" % g)
        a.label("L_back%d" % g)
        a.emit("v_add_f32 v%d, v%d, v%d" % (V_L[u], V_L[u], V_TS[0]))

    def rowmax_ops(self, s, T0, T1):
        a = self.a
        ops = []
        ops.append((lambda: a.emit("v_max3_f32 v%d, v%d, v%d, v%d" % (T0, s, s + 1, s + 2)), 4))
        for i in range(3, 15, 2):
            ops.append((lambda i=i: a.emit("v_max3_f32 v%d, v%d, v%d, v%d" % (T0, T0, s + i, s + i + 1)), 4))
        ops.append((lambda: a.emit("v_max_f32 v%d, v%d, v%d" % (T0, T0, s + 15)), 4))
        def sw():
            a.emit("v_mov_b32 v%d, v%d" % (T1, T0))
            a.emit("s_nop 1")
            a.emit("v_permlane32_swap_b32 v%d, v%d" % (T0, T1))
            a.emit("s_nop 1")
        ops.append((sw, 16))
        return ops

    def init_ops(self, g):
        a = self.a
        s = V_S[g & 1]
        T0, T1 = V_ET[0], V_ET[1]
        ops = self.rowmax_ops(s, T0, T1)
        ops.append((lambda: a.emit("v_max_f32 v%d, v%d, v%d" % (T0, T0, T1)), 4))
        ops.append((lambda: a.emit("v_sub_f32 v%d, 0, v%d" % (V_NM, T0)), 4))
        for i in range(16):
            ops.append((lambda i=i: a.emit("v_mov_b32 v%d, v%d" % (V_NEGM + i, V_NM)), 4))
        for i in range(16):
            ops.append((lambda i=i: a.emit("v_add_f32 v%d, v%d, v%d" % (s + i, s + i, V_NM)), 4))
        return ops

    def slow_path(self, g):
        a = self.a
        u = g // 16
        cb = g & 1
        nb = cb ^ 1
        a.label("L_slow%d" % g)
        a.emit("s_nop 15")
        a.emit("s_nop 15")
        T0, T1 = V_ET[0], V_ET[1]
        s = V_S[cb]
        for op, c in self.rowmax_ops(s, T0, T1):
            op()
        a.emit("v_max3_f32 v%d, v%d, v%d, 0" % (T0, T0, T1))
        a.emit("v_exp_f32 v%d, -v%d" % (T1, T0))
        if g % 16 != 15:
            a.emit("v_sub_f32 v%d, v%d, v%d" % (V_NM, V_NM, T0))
            for i in range(16):
                a.emit("v_mov_b32 v%d, v%d" % (V_NEGM + i, V_NM))
            for i in range(16):
                r = V_S[nb] + i
                a.emit("v_sub_f32 v%d, v%d, v%d" % (r, r, T0))
        a.emit("v_mul_f32 v%d, v%d, v%d" % (V_L[u], V_L[u], T1))
        for i in range(64):
            r = A_O + i
            a.emit("v_accvgpr_read_b32 v%d, a%d" % (V_ET[2], r))
            a.emit("v_mul_f32 v%d, v%d, v%d" % (V_ET[3], V_ET[2], T1))
            a.emit("v_accvgpr_write_b32 a%d, v%d" % (r, V_ET[3]))
        a.emit("v_mov_b32 v%d, 0" % V_TS[0])
        for p in range(8):
            a.emit("v_sub_f32 v%d, v%d, v%d" % (V_ET[2], s + 2 * p, T0))
            a.emit("v_sub_f32 v%d, v%d, v%d" % (V_ET[3], s + 2 * p + 1, T0))
            a.emit("v_exp_f32 v%d, v%d" % (V_ET[2], V_ET[2]))
            a.emit("v_exp_f32 v%d, v%d" % (V_ET[3], V_ET[3]))
            a.emit("s_nop 0")
            a.emit("v_add_f32 v%d, v%d, v%d" % (V_TS[0], V_TS[0], V_ET[2]))
            a.emit("v_add_f32 v%d, v%d, v%d" % (V_TS[0], V_TS[0], V_ET[3]))
            a.emit("v_cvt_pk_bf16_f32 v%d, v%d, v%d" % (V_P[cb] + p, V_ET[2], V_ET[3]))
        a.emit("s_nop 3")
        a.emit("s_branch L_back%d" % g)

    def touch(self, e):
        if 'touch' not in EXP:
            return
        a = self.a
        a.emit("s_add_u32 s%d, s%d, %d" % (S_T[0], S_KVB[e // 4], (e % 4) * 32768))
        a.vmem("buffer_load_dword v%d, v%d, s[%d:%d], s%d offen nt" % (V_T1, V_L[0] if e < 4 else V_TCH, S_TCH, S_TCH + 3, S_T[0]), None)

    def wo_ld(self, k):
        a = self.a
        if K2V == 'v3nowot':
            return
        if k == 0 and K2V == 'v3':
            a.emit("v_and_b32 v%d, 0xff, v%d" % (V_TS[0], V_DV))
            a.emit("v_lshrrev_b32 v%d, 8, v%d" % (V_TS[1], V_DV))
            a.emit("v_lshl_add_u32 v%d, v%d, 10, v%d" % (V_TS[0], V_TS[1], V_TS[0]))
            a.emit("v_lshlrev_b32 v%d, 4, v0" % V_TS[1])
        if k == 0 and K2V == 'v1':
            a.emit("v_lshrrev_b32 v%d, 3, v0" % V_TS[0])
            a.emit("v_lshlrev_b32 v%d, 10, v%d" % (V_TS[0], V_TS[0]))
            a.emit("v_bfe_u32 v%d, v0, 4, 1" % V_TS[1])
            a.emit("v_lshlrev_b32 v%d, 2, v%d" % (V_TS[1], V_TS[1]))
            a.emit("v_xor_b32 v%d, v0, v%d" % (V_TS[1], V_TS[1]))
            a.emit("v_and_b32 v%d, 7, v%d" % (V_TS[1], V_TS[1]))
            a.emit("v_lshl_add_u32 v%d, v%d, 4, v%d" % (V_TS[0], V_TS[1], V_TS[0]))
            a.emit("v_lshlrev_b32 v%d, 4, v0" % V_TS[1])
        a.emit("s_add_u32 s%d, s%d, %d" % (S_T[0], S_WOS, k * (65536 if K2V == 'v1' else 32768)))
        a.vmem("buffer_load_dwordx4 %s, v%d, s[%d:%d], s%d offen" % (vr(V_ET[0], 4), V_TS[0], S_WO, S_WO + 3, S_T[0]) + (" nt" if 'ntwo' in EXP else ""), ('wo', k))

    def wo_st(self, k):
        a = self.a
        if K2V == 'v3nowot':
            return
        a.wait(vm=[('wo', k)])
        a.emit("s_add_u32 s%d, s%d, %d" % (S_T[0], S_WOD, k * 8192))
        a.vmem("buffer_store_dwordx4 %s, v%d, s[%d:%d], s%d offen" % (vr(V_ET[0], 4), V_TS[1], S_WS, S_WS + 3, S_T[0]) + STFLAG, None)

    def epilogue_ops(self, u, tmp):
        a = self.a
        ops = []
        T0, T1 = V_RC, 63
        def pre():
            a.emit("v_mov_b32 v%d, v%d" % (T0, V_L[u]))
            a.emit("v_mov_b32 v%d, v%d" % (T1, V_L[u]))
            a.emit("s_nop 1")
            a.emit("v_permlane32_swap_b32 v%d, v%d" % (T0, T1))
            a.emit("s_nop 1")
            a.emit("v_add_f32 v%d, v%d, v%d" % (T0, T0, T1))
            a.emit("v_rcp_f32 v%d, v%d" % (T0, T0))
            a.emit("s_nop 0")
        ops.append((pre, 30))
        k = 0
        for dt in range(4):
            for G in range(2):
                base = tmp[k % len(tmp)]
                k += 1
                o = A_O + dt * 16 + 8 * G
                for i in range(8):
                    ops.append((lambda base=base, i=i, o=o: a.emit("v_accvgpr_read_b32 v%d, a%d" % (base + i, o + i)), 4))
                for i in range(8):
                    ops.append((lambda base=base, i=i: a.emit("v_mul_f32 v%d, v%d, v%d" % (base + i, base + i, T0)), 4))
                for i in range(0, 8, 2):
                    ops.append((lambda base=base, i=i: a.emit("v_cvt_pk_bf16_f32 v%d, v%d, v%d" % (base + 8 + i // 2, base + i, base + i + 1)), 4))
                kq = 2 * dt + G
                so = S_STB[u * 2 + (kq // 4)]
                ops.append((lambda base=base, so=so, kq=kq: a.vmem(
                    "buffer_store_dwordx4 %s, v%d, s[%d:%d], s%d offen offset:%d%s" %
                    (vr(base + 8, 4), V_STOFF, S_WS, S_WS + 3, so, (kq % 4) * 1024, STFLAG), None), 4))
        return ops

    def body(self):
        a = self.a
        frags = self.frags
        self.fpos = 0
        self.fiss = 0
        fillers = []
        timed = {}

        def time_ops(ops, span):
            n = len(ops)
            for cls in range(2):
                for k, (op, c) in enumerate(ops):
                    pos = self.fpos + cls * (span // 2) + 1 + (k * (span // 2 - 1)) // n
                    timed.setdefault(pos, []).append((cls, op))

        def pump(budget):
            while fillers and budget > 0:
                op, c = fillers.pop(0)
                op()
                budget -= c

        def flush():
            while fillers:
                op, c = fillers.pop(0)
                op()

        def issue_upto(n):
            while self.fiss < min(n, len(frags)):
                self.issue_frag(self.fiss)
                self.fiss += 1

        def step_start(si, front=False):
            need = []
            if si + 1 < len(self.steps):
                for c in self.steps[si + 1]:
                    need += self.dma_tags(c)
            if need:
                a.wait(vm=need)
            a.emit("s_barrier")
            if si in (0, 8, 9, 16, 17, 24) or 'allst' in EXP:
                self.stamp()
            ops = []
            for c in self.issue_at.get(si, []):
                ops.extend(self.dma_ops(c))
            return ops

        def consume(mf, extra_lg=(), per=14):
            f = self.fpos
            a.wait(lg=[('fr', f, 1)] + list(extra_lg))
            mf(self.frag_reg(f))
            issue_upto(f + 1 + LA)
            for cls, fn in timed.pop(f, []):
                if cls is None:
                    fn()
                else:
                    a.cond(cls, fn, S_CLS)
            pump(per)
            self.fpos += 1

        for i in range(4):
            self.x_write(0, i)
        for ks in range(4):
            self.x_read(0, ks)
        for j in range(8):
            dma = step_start(j)
            if j == 0:
                issue_upto(LA)
                dma = self.late_prologue + dma
            mi = 0
            sched = {}
            for cls in range(2):
                sh = cls * SHIFT
                if j + 2 < 8:
                    for i in range(4):
                        sched.setdefault(1 + 2 * i + sh, []).append((cls, lambda i=i: self.x_raw_load(j + 2, i)))
                for k, (op, c) in enumerate(dma):
                    sched.setdefault(min(9 + 2 * k + sh, 31), []).append((cls, op))
                if j + 1 < 8:
                    for i in range(4):
                        sched.setdefault(2 + 4 * i + sh, []).append((cls, lambda i=i: self.x_write(j + 1, i)))
                    for k in range(4):
                        sched.setdefault(17 + k + sh, []).append((cls, lambda k=k: self.x_read(j + 1, k)))
            for ks in range(4):
                for u in range(2):
                    for t in range(4):
                        def m(fr):
                            if u == 0:
                                acc = vr(V_QACC + t * 16, 16)
                            else:
                                acc = ar(A_O + t * 16, 16)
                            c = "0" if (j == 0 and ks == 0) else acc
                            a.emit("v_mfma_f32_32x32x16_bf16 %s, %s, %s, %s" %
                                   (acc, vr(fr, 4), ar(A_XF + (j % 2) * 16 + ks * 4, 4), c))
                        consume(m, [('xf', j, ks)] if (t == 0 and u == 0) else [])
                        for cls, fn in sched.get(mi, []):
                            a.cond(cls, fn, S_CLS)
                        if mi == TPOS and j % 2 == 1:
                            self.touch(j // 2)
                        if mi == 28 and j % 2 == 0 and j >= 2:
                            self.wo_st((j - 2) // 2)
                        if mi == 30 and j % 2 == 0:
                            self.wo_ld(j // 2)
                        mi += 1
            flush()

        self.wo_st(3)
        a.emit("s_nop 7")
        a.emit("s_nop 7")
        tb = struct.unpack("<I", struct.pack("<f", THR))[0]
        a.emit("v_mov_b32 v%d, 0x%08x" % (V_THR, tb))
        a.emit("v_mov_b32 v%d, v%d" % (V_TCH, V_L[0]))
        for t in range(4):
            acc = V_QACC + t * 16
            for i in range(0, 16, 2):
                a.emit("v_pk_mul_f32 %s, %s, s[%d:%d]" % (vr(acc + i, 2), vr(acc + i, 2), S_SCALE, S_SCALE + 1))
            for i in range(0, 16, 2):
                q = V_Q + (2 * t + i // 8) * 4 + (i % 8) // 2
                a.emit("v_cvt_pk_bf16_f32 v%d, v%d, v%d" % (q, acc + i, acc + i + 1))
        conv1 = []
        CT = [V_P[1], V_P[1] + 2, V_P[1] + 4, V_P[1] + 6]
        k = 0
        for t in range(4):
            for i in range(0, 16, 2):
                tt = CT[k % 4]
                k += 1
                o = A_O + t * 16 + i
                q = A_XF + (2 * t + i // 8) * 4 + (i % 8) // 2
                def cv(tt=tt, o=o, q=q):
                    a.emit("v_accvgpr_read_b32 v%d, a%d" % (tt, o))
                    a.emit("v_accvgpr_read_b32 v%d, a%d" % (tt + 1, o + 1))
                    a.emit("v_mul_f32 v%d, s%d, v%d" % (tt, S_SCALE, tt))
                    a.emit("v_mul_f32 v%d, s%d, v%d" % (tt + 1, S_SCALE, tt + 1))
                    a.emit("v_cvt_pk_bf16_f32 v%d, v%d, v%d" % (tt, tt, tt + 1))
                    a.emit("v_accvgpr_write_b32 a%d, v%d" % (q, tt))
                conv1.append((cv, 24))

        def A_mfmas(g, per=14):
            nb = g & 1
            u = g // 16
            for s in range(8):
                def m(fr):
                    sreg = V_S[nb]
                    if s == 0:
                        c = "0" if g % 16 == 0 else vr(V_NEGM, 16)
                    else:
                        c = vr(sreg, 16)
                    q = vr(V_Q + s * 4, 4) if u == 0 else ar(A_XF + s * 4, 4)
                    a.emit("v_mfma_f32_32x32x16_bf16 %s, %s, %s, %s" % (vr(sreg, 16), vr(fr, 4), q, c))
                consume(m, per=per)

        def C_mfmas(g, per=14):
            pb = g & 1
            for dt in range(4):
                for ks in range(2):
                    def m(fr):
                        o = A_O + dt * 16
                        c = "0" if (g % 16 == 0 and ks == 0) else ar(o, 16)
                        a.emit("v_mfma_f32_32x32x16_bf16 %s, %s, %s, %s" %
                               (ar(o, 16), vr(fr, 4), vr(V_P[pb] + ks * 4, 4), c))
                    consume(m, per=per)

        time_ops(step_start(8), 16)
        fillers.extend(conv1[:16])
        a.emit("s_nop 1")
        A_mfmas(0, per=24)
        flush()
        a.emit("s_nop 7")
        for op, c in self.init_ops(0):
            op()
        fillers.extend(self.softmax_ops(0))
        fillers.extend(conv1[16:])
        A_mfmas(1, per=40)
        flush()
        self.check_ops(0)
        for T in range(1, 16):
            time_ops(step_start(8 + T), 32)
            if T in (1, 3, 5, 7):
                timed.setdefault(self.fpos + 20, []).append((None, lambda T=T: self.touch(4 + (T - 1) // 2)))
            for g in (2 * T - 1, 2 * T):
                if g == 16:
                    a.emit("s_nop 1")
                    fillers.extend([(lambda: a.emit("s_nop 7"), 8)] + self.init_ops(16))
                    C_mfmas(15, per=30)
                    flush()
                    a.emit("s_nop 1")
                    ep = self.epilogue_ops(0, [V_Q, V_Q + 12])
                    fillers.extend(self.softmax_ops(16))
                    fillers.append((lambda: a.emit("s_nop 7"), 8))
                    fillers.extend(ep[:90])
                    self.ep_rest = ep[90:]
                    A_mfmas(17, per=40)
                    flush()
                    self.check_ops(16)
                    continue
                if g == 17:
                    fillers.extend(self.ep_rest)
                    fillers.extend(self.softmax_ops(g))
                    A_mfmas(g + 1, per=40)
                    while any(True for _ in ()):
                        pass
                    n_sm = len(self.softmax_ops(g))
                    while len(fillers) > n_sm:
                        op, c = fillers.pop(0)
                        op()
                    a.emit("s_nop 1")
                    C_mfmas(g - 1, per=24)
                    flush()
                    self.check_ops(g)
                    continue
                fillers.extend(self.softmax_ops(g))
                A_mfmas(g + 1)
                C_mfmas(g - 1)
                flush()
                self.check_ops(g)
        time_ops(step_start(24), 16)
        fillers.extend(self.softmax_ops(31))
        C_mfmas(30, per=30)
        flush()
        self.check_ops(31)
        a.emit("s_nop 1")
        C_mfmas(31)
        flush()
        self.stamp()
        a.emit("s_nop 15")
        for op, c in self.epilogue_ops(1, [64, 76, 88, 100]):
            op()

    def prologue(self):
        a = self.a
        e = a.emit
        self.cur_base = {'K': 0, 'VW': 0}
        e("s_cmp_ge_u32 s2, 256")
        e("s_cbranch_scc1 L_end")
        if self.stamps:
            e("s_memtime s[90:91]")
            e("s_memrealtime s[92:93]")
        e("s_and_b32 s%d, s2, 7" % S_T[0])
        e("s_lshr_b32 s%d, s2, 3" % S_T[1])
        e("s_and_b32 s%d, s%d, 1" % (S_T[2], S_T[0]))
        e("s_load_dwordx16 s[64:79], s[0:1], 0")
        e("s_load_dwordx8 s[80:87], s[0:1], 64")
        e("s_load_dwordx2 s[88:89], s[0:1], 96")
        e("s_lshr_b32 s%d, s%d, 1" % (S_T[3], S_T[0]))
        e("s_and_b32 s%d, s%d, 1" % (S_T[3], S_T[3]))
        e("s_lshl_b32 s%d, s%d, 2" % (S_T[3], S_T[3]))
        e("s_and_b32 s%d, s%d, 3" % (S_T[4], S_T[1]))
        e("s_add_u32 s%d, s%d, s%d" % (S_T[3], S_T[3], S_T[4]))
        e("s_lshr_b32 s%d, s%d, 2" % (S_T[4], S_T[0]))
        e("s_lshl_b32 s%d, s%d, 4" % (S_T[4], S_T[4]))
        e("s_lshr_b32 s%d, s%d, 2" % (S_T[5], S_T[1]))
        e("s_add_u32 s%d, s%d, s%d" % (S_T[4], S_T[4], S_T[5]))
        e("s_waitcnt lgkmcnt(0)")
        e("s_cmp_eq_u32 s%d, 0" % S_T[2])
        for (dst, pa, pb, sz) in ((S_X, 64, 74, 8 * 240 * 512 * 2), (S_K, 66, 76, 8 * 32 * 512 * 128 * 2),
                                  (S_V, 68, 78, 8 * 32 * 512 * 128 * 2), (S_W, 70, 80, 512 * 4096 * 2)):
            e("s_cselect_b32 s%d, s%d, s%d" % (dst, pa, pb))
            e("s_cselect_b32 s%d, s%d, s%d" % (dst + 1, pa + 1, pb + 1))
            e("s_mov_b32 s%d, %d" % (dst + 2, sz))
            e("s_mov_b32 s%d, 0x00020000" % (dst + 3))
        e("s_cselect_b32 s%d, s72, s82" % S_WO)
        e("s_cselect_b32 s%d, s73, s83" % (S_WO + 1))
        e("s_mov_b32 s%d, %d" % (S_WO + 2, 4096 * 512 * 2))
        e("s_mov_b32 s%d, 0x00020000" % (S_WO + 3))
        e("s_lshr_b32 s%d, s%d, 1" % (S_WOS, S_T[0]))
        e("s_lshl_b32 s%d, s%d, 5" % (S_WOS, S_WOS))
        e("s_add_u32 s%d, s%d, s%d" % (S_WOS, S_WOS, S_T[1]))
        if K2V == 'v1':
            e("s_lshl_b32 s%d, s%d, 22" % (S_WOD, S_T[2]))
            e("s_lshl_b32 s63, s%d, 15" % S_WOS)
            e("s_add_u32 s%d, s%d, s63" % (S_WOD, S_WOD))
            e("s_add_u32 s%d, s%d, %d" % (S_WOD, S_WOD, WOT))
            e("s_lshr_b32 s63, s%d, 4" % S_WOS)
            e("s_lshl_b32 s63, s63, 7")
            e("s_and_b32 s%d, s%d, 15" % (S_WOS, S_WOS))
            e("s_lshl_b32 s%d, s%d, 18" % (S_WOS, S_WOS))
            e("s_add_u32 s%d, s%d, s63" % (S_WOS, S_WOS))
        else:
            e("s_lshl_b32 s%d, s%d, 1" % (S_WOS, S_WOS))
            e("s_lshl_b32 s%d, s%d, 22" % (S_WOD, S_T[2]))
            e("s_lshl_b32 s63, s%d, 14" % S_WOS)
            e("s_add_u32 s%d, s%d, s63" % (S_WOD, S_WOD))
            e("s_add_u32 s%d, s%d, %d" % (S_WOD, S_WOD, WOT))
            e("s_lshr_b32 s63, s%d, 6" % S_WOS)
            e("s_lshl_b32 s63, s63, 8")
            e("s_and_b32 s%d, s%d, 63" % (S_WOS, S_WOS))
            e("s_lshl_b32 s%d, s%d, 16" % (S_WOS, S_WOS))
            e("s_add_u32 s%d, s%d, s63" % (S_WOS, S_WOS))
        e("s_mov_b32 s%d, s88" % S_WS)
        e("s_mov_b32 s%d, s89" % (S_WS + 1))
        e("s_mov_b32 s%d, %d" % (S_WS + 2, WOT + (8 << 20)))
        e("s_mov_b32 s%d, 0x00020000" % (S_WS + 3))
        e("s_lshl_b32 s%d, s%d, 5" % (S_T[5], S_T[3]))
        e("s_add_u32 s%d, s%d, s%d" % (S_T[5], S_T[5], S_T[4]))
        e("s_lshl_b32 s%d, s%d, 17" % (S_KVB[0], S_T[5]))
        e("s_lshl_b32 s%d, s%d, 8" % (S_WCB[0], S_T[4]))
        e("s_add_u32 s%d, s%d, %d" % (S_KVB[1], S_KVB[0], 8 * 131072))
        e("s_add_u32 s%d, s%d, %d" % (S_WCB[1], S_WCB[0], 8 * 256))
        e("s_mul_i32 s%d, s%d, %d" % (S_STB[0], S_T[2], 60 * 262144))
        e("s_lshl_b32 s%d, s%d, 13" % (S_T[5], S_T[4]))
        e("s_add_u32 s%d, s%d, s%d" % (S_STB[0], S_STB[0], S_T[5]))
        e("s_add_u32 s%d, s%d, 4096" % (S_STB[1], S_STB[0]))
        e("s_add_u32 s%d, s%d, %d" % (S_STB[2], S_STB[0], 65536))
        e("s_add_u32 s%d, s%d, %d" % (S_STB[3], S_STB[0], 65536 + 4096))
        c = math.log2(math.e) / math.sqrt(128.0)
        cb = struct.unpack("<I", struct.pack("<f", c))[0]
        e("s_mov_b32 s%d, 0x%08x" % (S_SCALE, cb))
        e("s_mov_b32 s%d, 0x%08x" % (S_SCALE + 1, cb))
        for i in range(4):
            e("s_mov_b32 s%d, %d" % (S_XSO[i], i * 8192))
        e("v_lshrrev_b32 v%d, 6, v0" % V_T1)
        e("s_nop 0")
        e("v_readfirstlane_b32 s%d, v%d" % (S_T[0], V_T1))
        e("s_lshl_b32 s%d, s%d, 10" % (S_WV1K, S_T[0]))
        e("s_lshl_b32 s62, s%d, 6" % S_T[0])
        e("s_lshr_b32 s%d, s%d, 2" % (S_CLS, S_T[0]))
        L = V_L[0]
        HH = V_L[1]
        e("v_and_b32 v%d, 63, v0" % L)
        e("v_lshrrev_b32 v%d, 5, v%d" % (HH, L))
        e("s_mul_i32 s%d, s%d, 240" % (S_T[1], S_T[3]))
        e("s_lshl_b32 s%d, s%d, 5" % (S_T[2], S_T[0]))
        e("s_add_u32 s%d, s%d, s%d" % (S_T[1], S_T[1], S_T[2]))
        RP, CH = V_ET[0], V_ET[1]
        e("v_lshrrev_b32 v%d, 4, v%d" % (V_ET[2], L))
        e("s_lshl_b32 s%d, s%d, 2" % (S_T[5], S_T[0]))
        e("v_add_u32 v%d, s%d, v%d" % (RP, S_T[5], V_ET[2]))
        e("v_and_b32 v%d, 15, v%d" % (CH, L))
        e("v_lshlrev_b32 v%d, 2, v%d" % (V_ET[3], V_ET[2]))
        e("v_xor_b32 v%d, v%d, v%d" % (V_ET[3], CH, V_ET[3]))
        e("v_lshlrev_b32 v%d, 4, v%d" % (V_ET[3], V_ET[3]))
        e("v_lshl_add_u32 v%d, v%d, 13, v%d" % (V_DW, RP, V_ET[3]))
        e("v_lshl_add_u32 v%d, v%d, 8, v%d" % (V_DV, RP, V_ET[3]))
        e("v_and_b32 v%d, 15, v%d" % (V_ET[3], RP))
        e("v_xor_b32 v%d, v%d, v%d" % (V_ET[3], CH, V_ET[3]))
        e("v_lshlrev_b32 v%d, 4, v%d" % (V_ET[3], V_ET[3]))
        e("v_lshl_add_u32 v%d, v%d, 8, v%d" % (V_DK, RP, V_ET[3]))
        e("v_lshrrev_b32 v%d, 3, v%d" % (V_ET[0], L))
        e("v_add_u32 v%d, s%d, v%d" % (V_ET[1], S_T[1], V_ET[0]))
        e("v_lshlrev_b32 v%d, 10, v%d" % (V_XOFF, V_ET[1]))
        e("v_and_b32 v%d, 7, v%d" % (V_ET[1], L))
        e("v_lshl_add_u32 v%d, v%d, 4, v%d" % (V_XOFF, V_ET[1], V_XOFF))
        first = self.issue_at[-1]
        for i in range(4):
            self.x_raw_load(0, i)
        for c in first[:2]:
            for op, cc in self.dma_ops(c):
                op()
        for i in range(4):
            self.x_raw_load(1, i)
        for c in first[2:4]:
            for op, cc in self.dma_ops(c):
                op()
        self.late_prologue = []
        for c in first[4:]:
            self.late_prologue.extend(self.dma_ops(c))
        e("v_lshrrev_b32 v%d, 4, v%d" % (V_ET[2], L))
        e("v_xor_b32 v%d, v%d, v%d" % (V_ET[2], V_ET[1], V_ET[2]))
        e("v_lshlrev_b32 v%d, 4, v%d" % (V_ET[2], V_ET[2]))
        e("v_lshl_add_u32 v%d, v%d, 7, v%d" % (V_ET[2], V_ET[0], V_ET[2]))
        e("s_lshl_b32 s%d, s%d, 2" % (S_T[5], S_WV1K))
        e("s_add_u32 s%d, s%d, %d" % (S_T[5], S_T[5], XSCR))
        e("v_add_u32 v%d, s%d, v%d" % (V_XW[0], S_T[5], V_ET[2]))
        e("v_xor_b32 v%d, 64, v%d" % (V_XW[1], V_XW[0]))
        e("v_and_b32 v%d, 31, v%d" % (V_ET[0], L))
        e("v_bfe_u32 v%d, v%d, 1, 3" % (V_ET[1], L))
        e("v_xor_b32 v%d, v%d, v%d" % (V_ET[1], V_ET[1], HH))
        for ks in range(4):
            e("v_xor_b32 v%d, %d, v%d" % (V_ET[2], 2 * ks, V_ET[1]))
            e("v_lshlrev_b32 v%d, 4, v%d" % (V_ET[2], V_ET[2]))
            e("v_lshl_add_u32 v%d, v%d, 7, v%d" % (V_ET[2], V_ET[0], V_ET[2]))
            e("v_add_u32 v%d, s%d, v%d" % (V_XR[ks], S_T[5], V_ET[2]))
        R = V_ET[0]
        e("v_and_b32 v%d, 31, v%d" % (V_ET[3], L))
        e("v_add_u32 v%d, s%d, v%d" % (R, S_T[1], V_ET[3]))
        e("v_lshrrev_b32 v%d, 5, v%d" % (V_ET[1], R))
        e("v_lshlrev_b32 v%d, 18, v%d" % (V_ET[1], V_ET[1]))
        e("v_and_b32 v%d, 31, v%d" % (V_ET[2], R))
        e("v_lshlrev_b32 v%d, 4, v%d" % (V_ET[2], V_ET[2]))
        e("v_lshl_add_u32 v%d, v%d, 9, v%d" % (V_ET[2], HH, V_ET[2]))
        e("v_add_u32 v%d, v%d, v%d" % (V_STOFF, V_ET[1], V_ET[2]))
        e("v_add_u32 v%d, s%d, v%d" % (V_ET[3], S_T[2], V_ET[3]))
        e("v_mov_b32 v%d, 0x7f000000" % V_ET[0])
        e("v_cmp_gt_u32 vcc, 240, v%d" % V_ET[3])
        e("s_nop 1")
        e("v_cndmask_b32 v%d, v%d, v%d, vcc" % (V_STOFF, V_ET[0], V_STOFF))
        r_, c4 = V_ET[0], V_ET[1]
        e("v_bfe_u32 v%d, v%d, 2, 2" % (r_, L))
        e("v_and_b32 v%d, 3, v%d" % (c4, L))
        e("v_lshl_add_u32 v%d, v%d, 3, v%d" % (V_ET[2], HH, r_))
        e("v_lshlrev_b32 v%d, 8, v%d" % (V_ET[2], V_ET[2]))
        e("v_bfe_u32 v%d, v%d, 4, 1" % (V_ET[3], L))
        e("v_lshl_add_u32 v%d, v%d, 5, v%d" % (V_ET[2], V_ET[3], V_ET[2]))
        e("v_and_b32 v%d, 1, v%d" % (V_ET[3], c4))
        e("v_lshl_add_u32 v%d, v%d, 4, v%d" % (V_ET[2], V_ET[3], V_ET[2]))
        e("v_lshrrev_b32 v%d, 1, v%d" % (V_ET[3], c4))
        e("v_lshl_add_u32 v%d, v%d, 3, v%d" % (V_ET[2], V_ET[3], V_ET[2]))
        for t in range(4):
            e("v_xor_b32 v%d, %d, v%d" % (V_ET[3], t, r_))
            e("v_lshl_add_u32 v%d, v%d, 6, v%d" % (V_VW[t], V_ET[3], V_ET[2]))
        key = V_ET[0]
        e("v_and_b32 v%d, 0x13, v%d" % (key, L))
        e("v_bfe_u32 v%d, v%d, 2, 1" % (V_ET[1], L))
        e("v_lshl_add_u32 v%d, v%d, 3, v%d" % (key, V_ET[1], key))
        e("v_bfe_u32 v%d, v%d, 3, 1" % (V_ET[1], L))
        e("v_lshl_add_u32 v%d, v%d, 2, v%d" % (key, V_ET[1], key))
        e("v_and_b32 v%d, 15, v%d" % (V_ET[1], key))
        e("v_xor_b32 v%d, v%d, v%d" % (V_ET[1], V_ET[1], HH))
        for s in range(8):
            e("v_xor_b32 v%d, %d, v%d" % (V_ET[2], 2 * s, V_ET[1]))
            e("v_lshlrev_b32 v%d, 4, v%d" % (V_ET[2], V_ET[2]))
            e("v_lshl_add_u32 v%d, v%d, 8, v%d" % (V_KA[s], key, V_ET[2]))
        e("v_and_b32 v%d, 0xff, v0" % V_L[0])
        e("v_lshlrev_b32 v%d, 7, v%d" % (V_L[0], V_L[0]))
        e("s_cmp_eq_u32 s%d, 0" % S_CLS)
        e("s_cselect_b32 s%d, s%d, s%d" % (S_TCH, S_K, S_V))
        e("s_cselect_b32 s%d, s%d, s%d" % (S_TCH + 1, S_K + 1, S_V + 1))
        e("s_mov_b32 s%d, s%d" % (S_TCH + 2, S_K + 2))
        e("s_mov_b32 s%d, 0x00020000" % (S_TCH + 3))
        need = []
        for c in self.steps[0]:
            need += self.dma_tags(c)
        a.wait(vm=need)
        a.emit("s_barrier")
        self.stamp()

    def gen(self):
        a = self.a
        self.frags = self.build_frags()
        for cls in (0, 1):
            a.new_trace(cls)
            self.prologue()
            self.body()
        a.trace = False
        a.reset_sites(0)
        self.prologue()
        self.body()
        if self.stamps:
            self.stamp()
            a.emit("v_subrev_u32 v%d, s90, v%d" % (V_STMP2, V_STMP2))
            a.emit("s_memrealtime s[60:61]")
            a.emit("s_waitcnt lgkmcnt(0)")
            a.emit("s_sub_u32 s60, s60, s92")
            a.emit("v_mov_b32 v%d, s60" % V_T1)
            a.emit("v_cmp_eq_u32 vcc, s62, v0")
            a.emit("s_nop 1")
            a.emit("v_cndmask_b32 v%d, v%d, v%d, vcc" % (V_STMP2, V_STMP2, V_T1))
            a.emit("s_add_u32 s62, s62, 1")
            a.emit("v_mov_b32 v%d, s92" % V_T1)
            a.emit("v_cmp_eq_u32 vcc, s62, v0")
            a.emit("s_nop 1")
            a.emit("v_cndmask_b32 v%d, v%d, v%d, vcc" % (V_STMP2, V_STMP2, V_T1))
            a.emit("v_lshlrev_b32 v%d, 2, v0" % V_T1)
            a.emit("s_lshl_b32 s60, s2, 11")
            a.emit("s_add_u32 s60, s60, %d" % (64 << 20))
            a.emit("s_mov_b32 s%d, 0x10000000" % (S_WS + 2))
            a.emit("buffer_store_dword v%d, v%d, s[%d:%d], s60 offen" % (V_STMP2, V_T1, S_WS, S_WS + 3))
        a.label("L_end")
        a.emit("s_endpgm")
        for g in range(32):
            if g % 16 != 0:
                self.slow_path(g)

V_STMP2 = 11
```

```python
from asmlib import Asm
import os
EXP = os.environ.get('EXP', '')

NSH = 5
SLOT2 = 16384
RINGH = NSH * SLOT2
LA2 = 5
NFR2 = 8
NB = int(os.environ.get('NB', '16'))
PART = 96 << 20
WOT = 32 << 20
NOWOT = os.environ.get('K2V', 'v3') == 'v3nowot'

V_T1 = 1
V_BOFF = 2
V_DMA = 3
V_AA = [4, 5, 6, 7]
V_ST = 8
V_RED = 9
V_TMP = [10, 11, 240, 241, 242]
V_FR = 12
V_ACC = 44
V_B = 108
V_OUT = 236 - 64

S_WO, S_WS, S_OUT, S_WSB, S_DBG = 4, 8, 12, 32, 36
S_T = [16, 17, 18, 19, 20, 21]
S_PSL, S_PSW, S_WVL = 22, 23, 24
S_GOFF = 25
S_BOFF = 26
S_CNT = 27
S_CSL = 28
S_DELTA = 29
S_HB = 30
S_HALF = 31
S_TILE = 40
S_KH = 41
S_PB = 42

def vr(b, n):
    return "v[%d:%d]" % (b, b + n - 1)

class K2:
    def __init__(self, a):
        self.a = a

    def dma_ops(self, ci):
        a = self.a
        ops = []
        for i in range(4):
            def op(i=i):
                a.emit("s_add_u32 m0, s%d, %d" % (S_PSW, i * 4096))
                a.emit("s_add_u32 s%d, s%d, %d" % (S_T[0], S_GOFF, i * (16384 if NOWOT else 4096)))
                if 'nodma' in EXP:
                    a.vmem("s_nop 0", ('dma', ci, i))
                else:
                  a.vmem("buffer_load_dwordx4 v%d, s[%d:%d], s%d offen%s lds" % (V_DMA, S_WO, S_WO + 3, S_T[0], " nt" if 'ntd' in EXP else ""), ('dma', ci, i))
                if i == 3:
                    a.emit("s_add_u32 s%d, s%d, %d" % (S_GOFF, S_GOFF, 65536 if NOWOT else 16384))
                    a.emit("s_add_u32 s%d, s%d, %d" % (S_PSL, S_PSL, SLOT2))
                    a.emit("s_cmp_eq_u32 s%d, %d" % (S_PSL, RINGH))
                    a.emit("s_cselect_b32 s%d, 0, s%d" % (S_PSL, S_PSL))
                    a.emit("s_add_u32 s%d, s%d, s%d" % (S_PSW, S_PSL, S_WVL))
            ops.append(op)
        return ops

    def dma_tags(self, ci):
        return [('dma', ci, i) for i in range(4)]

    def b_load(self, s_abs, pre=False):
        a = self.a
        loc = s_abs % NB
        grp = loc // 4
        a.emit("s_add_u32 s%d, s%d, %d" % (S_T[1], S_BOFF, (grp * 4096 - (NB * 1024 if pre else 0)) & 0xffffffff))
        if 'nob' in EXP:
            a.vmem("s_nop 0", ('b', s_abs))
            return
        a.vmem("buffer_load_dwordx4 %s, v%d, s[%d:%d], s%d offen offset:%d" %
               (vr(V_B + loc * 4, 4), V_BOFF, S_WSB, S_WSB + 3, S_T[1], (loc % 4) * 1024) + (" nt" if 'ntb' in EXP else ""), ('b', s_abs))

    def issue_frag(self, f):
        a = self.a
        s = f // 4
        t = f % 4
        ks = s % 4
        r = V_FR + (f % NFR2) * 4
        for e2 in range(2):
            a.ds("ds_read_b64_tr_b16 %s, v%d offset:%d" % (vr(r + 2 * e2, 2), V_AA[t], (16 * ks + 4 * e2) * 256), ('fr', f, e2))

    def slot_adv(self):
        a = self.a
        a.emit("s_mov_b32 s%d, s%d" % (S_DELTA, S_CSL))
        a.emit("s_add_u32 s%d, s%d, %d" % (S_CSL, S_CSL, SLOT2))
        a.emit("s_cmp_eq_u32 s%d, %d" % (S_CSL, RINGH))
        a.emit("s_cselect_b32 s%d, 0, s%d" % (S_CSL, S_CSL))
        a.emit("s_sub_u32 s%d, s%d, s%d" % (S_DELTA, S_CSL, S_DELTA))
        for t in range(4):
            a.emit("v_add_u32 v%d, s%d, v%d" % (V_AA[t], S_DELTA, V_AA[t]))

    def body_all(self):
        a = self.a
        extra = []
        for s2 in range(8, NB):
            extra.append(lambda s2=s2: self.b_load2(s2))
            if s2 == 11:
                extra.extend(self.dma_ops(2))
            if s2 == 15:
                extra.extend(self.dma_ops(3))
        pend = []
        for ci in range(16):
            if ci + 1 < 16:
                a.wait(vm=self.dma_tags(ci + 1))
            a.emit("s_barrier")
            if ci + NSH - 1 < 16 and ci >= 0:
                pend.extend(self.dma_ops(ci + NSH - 1))
            for ks in range(4):
                s = ci * 4 + ks
                for t in range(4):
                    f = 4 * s + t
                    a.wait(vm=[('b', s)] if t == 0 else [], lg=[('fr', f, 1)])
                    acc = V_ACC + t * 16
                    a.emit("v_mfma_f32_32x32x16_bf16 %s, %s, %s, %s" %
                           (vr(acc, 16), vr(V_FR + (f % NFR2) * 4, 4), vr(V_B + (s % NB) * 4, 4), vr(acc, 16)))
                    nf = f + LA2
                    if nf < 256:
                        if nf % 16 == 0:
                            self.slot_adv()
                        self.issue_frag(nf)
                    if extra:
                        extra.pop(0)()
                    elif pend and t in (1, 3):
                        pend.pop(0)()
                if s + NB < 64:
                    self.b_load2(s + NB)

    def b_load2(self, s_abs):
        a = self.a
        loc = s_abs % NB
        if 'nob' in EXP:
            a.vmem("s_nop 0", ('b', s_abs))
            return
        a.emit("s_add_u32 s%d, s%d, %d" % (S_T[1], S_BOFF, (s_abs // 4) * 4096))
        a.vmem("buffer_load_dwordx4 %s, v%d, s[%d:%d], s%d offen offset:%d" %
               (vr(V_B + loc * 4, 4), V_BOFF, S_WSB, S_WSB + 3, S_T[1], (s_abs % 4) * 1024), ('b', s_abs))

    def prologue(self):
        a = self.a
        e = a.emit
        e("s_cmp_ge_u32 s2, 256")
        e("s_cbranch_scc1 L2_end")
        if 'st2' in EXP:
            e("s_memtime s[80:81]")
        e("s_load_dwordx2 s[64:65], s[0:1], 32")
        e("s_load_dwordx2 s[66:67], s[0:1], 72")
        e("s_load_dwordx4 s[68:71], s[0:1], 80")
        e("s_load_dwordx2 s[72:73], s[0:1], 96")
        e("s_and_b32 s%d, s2, 7" % S_T[0])
        e("s_lshr_b32 s%d, s2, 3" % S_T[1])
        e("s_lshr_b32 s%d, s%d, 2" % (S_T[2], S_T[0]))
        e("s_and_b32 s%d, s%d, 3" % (S_T[3], S_T[0]))
        e("s_lshl_b32 s%d, s%d, 2" % (S_T[3], S_T[3]))
        e("s_lshr_b32 s%d, s%d, 3" % (S_T[4], S_T[1]))
        e("s_add_u32 s%d, s%d, s%d" % (S_T[3], S_T[3], S_T[4]))
        e("s_bfe_u32 s%d, s%d, 0x20001" % (S_T[4], S_T[1]))
        e("s_and_b32 s%d, s%d, 1" % (S_KH, S_T[1]))
        e("s_cmp_ge_u32 s%d, 15" % S_T[3])
        e("s_cbranch_scc1 L2_end")
        e("s_waitcnt lgkmcnt(0)")
        e("s_cmp_eq_u32 s%d, 0" % S_T[2])
        if NOWOT:
            e("s_cselect_b32 s%d, s64, s66" % S_WO)
            e("s_cselect_b32 s%d, s65, s67" % (S_WO + 1))
            e("s_mov_b32 s%d, %d" % (S_WO + 2, 4096 * 512 * 2))
        else:
            e("s_mov_b32 s%d, s72" % S_WO)
            e("s_mov_b32 s%d, s73" % (S_WO + 1))
            e("s_mov_b32 s%d, %d" % (S_WO + 2, WOT + (8 << 20)))
        e("s_mov_b32 s%d, 0x00020000" % (S_WO + 3))
        for r in (S_WS, S_WSB):
            e("s_mov_b32 s%d, s72" % r)
            e("s_mov_b32 s%d, s73" % (r + 1))
            e("s_mov_b32 s%d, %d" % (r + 2, (2 * 60 * 262144) if r == S_WSB else (PART + 120 * 131072)))
            e("s_mov_b32 s%d, 0x00020000" % (r + 3))
        e("s_mov_b32 s%d, s68" % S_OUT)
        e("s_mov_b32 s%d, s69" % (S_OUT + 1))
        e("s_mov_b32 s%d, %d" % (S_OUT + 2, 1920 * 1024 * 2))
        e("s_mov_b32 s%d, 0x00020000" % (S_OUT + 3))
        e("s_mov_b32 s%d, s70" % S_DBG)
        e("s_mov_b32 s%d, s71" % (S_DBG + 1))
        e("s_mov_b32 s%d, 256" % (S_DBG + 2))
        e("s_mov_b32 s%d, 0x00020000" % (S_DBG + 3))
        e("s_mul_i32 s%d, s%d, 15" % (S_TILE, S_T[2]))
        e("s_add_u32 s%d, s%d, s%d" % (S_TILE, S_TILE, S_T[3]))
        e("s_lshl_b32 s%d, s%d, 2" % (S_TILE, S_TILE))
        e("s_add_u32 s%d, s%d, s%d" % (S_TILE, S_TILE, S_T[4]))
        e("v_lshrrev_b32 v%d, 6, v0" % V_T1)
        e("s_nop 0")
        e("v_readfirstlane_b32 s%d, v%d" % (S_T[5], V_T1))
        e("s_lshr_b32 s%d, s%d, 2" % (S_HALF, S_T[5]))
        e("s_and_b32 s%d, s%d, 3" % (S_T[5], S_T[5]))
        e("s_mul_i32 s%d, s%d, %d" % (S_HB, S_HALF, RINGH))
        e("s_lshl_b32 s%d, s%d, 10" % (S_WVL, S_T[5]))
        e("s_add_u32 s%d, s%d, s%d" % (S_WVL, S_WVL, S_HB))
        e("s_mov_b32 s%d, s%d" % (S_PSW, S_WVL))
        e("s_mov_b32 s%d, 0" % S_PSL)
        e("s_mov_b32 s%d, 0" % S_CSL)
        L = V_TMP[0]
        HH = V_TMP[1]
        e("v_and_b32 v%d, 63, v0" % L)
        e("v_lshrrev_b32 v%d, 5, v%d" % (HH, L))
        e("s_lshl_b32 s%d, s%d, 1" % (S_CNT, S_KH))
        e("s_add_u32 s%d, s%d, s%d" % (S_CNT, S_CNT, S_HALF))
        if NOWOT:
            e("s_lshl_b32 s%d, s%d, 20" % (S_GOFF, S_CNT))
            e("s_lshl_b32 s%d, s%d, 8" % (S_T[0], S_T[4]))
            e("s_add_u32 s%d, s%d, s%d" % (S_GOFF, S_GOFF, S_T[0]))
        else:
            e("s_lshl_b32 s%d, s%d, 18" % (S_GOFF, S_CNT))
            e("s_lshl_b32 s%d, s%d, 20" % (S_T[0], S_T[4]))
            e("s_add_u32 s%d, s%d, s%d" % (S_GOFF, S_GOFF, S_T[0]))
            e("s_lshl_b32 s%d, s%d, 22" % (S_T[0], S_T[2]))
            e("s_add_u32 s%d, s%d, s%d" % (S_GOFF, S_GOFF, S_T[0]))
            e("s_add_u32 s%d, s%d, %d" % (S_GOFF, S_GOFF, WOT))
        e("s_lshl_b32 s%d, s%d, 16" % (S_BOFF, S_CNT))
        e("s_mul_i32 s%d, s%d, 60" % (S_CNT, S_T[2]))
        e("s_lshl_b32 s%d, s%d, 2" % (S_T[0], S_T[3]))
        e("s_add_u32 s%d, s%d, s%d" % (S_T[0], S_T[0], S_T[5]))
        e("s_add_u32 s%d, s%d, s%d" % (S_CNT, S_CNT, S_T[0]))
        e("s_lshl_b32 s%d, s%d, 18" % (S_CNT, S_CNT))
        e("s_add_u32 s%d, s%d, s%d" % (S_BOFF, S_BOFF, S_CNT))
        e("v_lshlrev_b32 v%d, 4, v%d" % (V_BOFF, L))
        e("s_lshl_b32 s%d, s%d, 5" % (S_T[0], S_T[0]))
        e("v_and_b32 v%d, 31, v%d" % (V_T1, L))
        e("v_add_u32 v%d, s%d, v%d" % (V_T1, S_T[0], V_T1))
        e("v_lshlrev_b32 v%d, 11, v%d" % (V_ST, V_T1))
        e("v_lshl_add_u32 v%d, v%d, 4, v%d" % (V_ST, HH, V_ST))
        e("s_lshl_b32 s%d, s%d, 10" % (S_T[0], S_T[2]))
        e("s_lshl_b32 s%d, s%d, 8" % (S_T[1], S_T[4]))
        e("s_add_u32 s%d, s%d, s%d" % (S_T[0], S_T[0], S_T[1]))
        e("v_add_u32 v%d, s%d, v%d" % (V_ST, S_T[0], V_ST))
        e("v_lshrrev_b32 v%d, 4, v%d" % (V_TMP[2], L))
        e("v_lshlrev_b32 v%d, 2, v%d" % (V_TMP[3], V_TMP[2]))
        e("v_and_b32 v%d, 15, v%d" % (V_TMP[4], L))
        e("v_xor_b32 v%d, v%d, v%d" % (V_TMP[3], V_TMP[3], V_TMP[4]))
        e("v_lshlrev_b32 v%d, 4, v%d" % (V_TMP[3], V_TMP[3]))
        e("s_lshl_b32 s%d, s%d, 2" % (S_T[0], S_T[5]))
        e("v_add_u32 v%d, s%d, v%d" % (V_TMP[2], S_T[0], V_TMP[2]))
        if NOWOT:
            e("v_lshl_add_u32 v%d, v%d, 10, v%d" % (V_DMA, V_TMP[2], V_TMP[3]))
        else:
            e("v_lshlrev_b32 v%d, 4, v%d" % (V_DMA, L))
            e("s_lshl_b32 s%d, s%d, 10" % (S_T[0], S_T[5]))
            e("v_add_u32 v%d, s%d, v%d" % (V_DMA, S_T[0], V_DMA))
        e("s_lshl_b32 s%d, s%d, 17" % (S_PB, S_TILE))
        e("s_add_u32 s%d, s%d, %d" % (S_PB, S_PB, PART))
        e("s_lshl_b32 s%d, s%d, 14" % (S_T[0], S_T[5]))
        e("v_lshlrev_b32 v%d, 4, v%d" % (V_RED, L))
        e("v_add_u32 v%d, s%d, v%d" % (V_RED, S_T[0], V_RED))
        for op in self.dma_ops(0):
            op()
        for s in range(4):
            self.b_load2(s)
        for op in self.dma_ops(1):
            op()
        r_, t2, t3 = V_TMP[2], V_TMP[3], V_TMP[4]
        e("v_bfe_u32 v%d, v%d, 2, 2" % (r_, L))
        e("v_lshl_add_u32 v%d, v%d, 3, v%d" % (t2, HH, r_))
        e("v_lshlrev_b32 v%d, 8, v%d" % (t2, t2))
        e("v_bfe_u32 v%d, v%d, 4, 1" % (t3, L))
        e("v_lshl_add_u32 v%d, v%d, 5, v%d" % (t2, t3, t2))
        e("v_and_b32 v%d, 1, v%d" % (t3, L))
        e("v_lshl_add_u32 v%d, v%d, 4, v%d" % (t2, t3, t2))
        e("v_bfe_u32 v%d, v%d, 1, 1" % (t3, L))
        e("v_lshl_add_u32 v%d, v%d, 3, v%d" % (t2, t3, t2))
        e("v_add_u32 v%d, s%d, v%d" % (t2, S_HB, t2))
        for t in range(4):
            e("v_xor_b32 v%d, %d, v%d" % (t3, t, r_))
            e("v_lshl_add_u32 v%d, v%d, 6, v%d" % (V_AA[t], t3, t2))
        for i in range(64):
            e("v_mov_b32 v%d, 0" % (V_ACC + i))
        for s in range(4, 8):
            self.b_load2(s)
        a.wait(vm=self.dma_tags(0))
        e("s_barrier")
        if 'st2' in EXP:
            e("s_memtime s[82:83]")
            e("s_waitcnt lgkmcnt(0)")
        for f in range(LA2):
            self.issue_frag(f)
        e("s_mov_b32 s%d, 0" % S_CNT)

    def epilogue(self):
        a = self.a
        e = a.emit
        e("s_nop 15")
        e("s_nop 3")
        e("s_waitcnt vmcnt(0) lgkmcnt(0)")
        e("s_barrier")
        if 'st2' in EXP:
            e("s_memtime s[84:85]")
            e("s_waitcnt lgkmcnt(0)")
        e("s_cmp_eq_u32 s%d, 0" % S_HALF)
        e("s_cbranch_scc1 L2_h0")
        for i in range(8):
            e("ds_write_b128 v%d, %s offset:%d" % (V_RED, vr(V_ACC + 4 * i, 4), 8192 + i * 1024))
        e("s_waitcnt lgkmcnt(0)")
        e("s_barrier")
        for i in range(8):
            e("ds_read_b128 %s, v%d offset:%d" % (vr(V_B + 4 * i, 4), V_RED, i * 1024))
        e("s_waitcnt lgkmcnt(0)")
        for i in range(32):
            e("v_add_f32 v%d, v%d, v%d" % (V_ACC + i, V_ACC + 32 + i, V_B + i))
        e("s_branch L2_j")
        a.label("L2_h0")
        for i in range(8):
            e("ds_write_b128 v%d, %s offset:%d" % (V_RED, vr(V_ACC + 32 + 4 * i, 4), i * 1024))
        e("s_waitcnt lgkmcnt(0)")
        e("s_barrier")
        for i in range(8):
            e("ds_read_b128 %s, v%d offset:%d" % (vr(V_B + 4 * i, 4), V_RED, 8192 + i * 1024))
        e("s_waitcnt lgkmcnt(0)")
        for i in range(32):
            e("v_add_f32 v%d, v%d, v%d" % (V_ACC + i, V_ACC + i, V_B + i))
        a.label("L2_j")
        e("s_lshl_b32 s%d, s%d, 13" % (S_T[2], S_HALF))
        e("s_add_u32 s%d, s%d, s%d" % (S_PB, S_PB, S_T[2]))
        e("s_lshl_b32 s%d, s%d, 16" % (S_T[0], S_KH))
        e("s_add_u32 s%d, s%d, s%d" % (S_T[0], S_T[0], S_PB))
        for g in range(2):
            e("s_add_u32 s%d, s%d, %d" % (S_T[1], S_T[0], g * 4096))
            for i in range(4):
                e("buffer_store_dwordx4 %s, v%d, s[%d:%d], s%d offen offset:%d sc1" %
                  (vr(V_ACC + 16 * g + 4 * i, 4), V_RED, S_WS, S_WS + 3, S_T[1], i * 1024))
        e("s_waitcnt vmcnt(0)")
        e("s_barrier")
        e("s_cmp_eq_u32 s%d, 0" % S_WVL)
        e("s_cbranch_scc0 L2_noat")
        e("s_lshr_b32 s%d, s%d, 1" % (S_T[0], S_TILE))
        e("s_lshl_b32 s%d, s%d, 2" % (S_T[0], S_T[0]))
        e("s_and_b32 s%d, s%d, 1" % (S_T[1], S_TILE))
        e("s_lshl_b32 s%d, s%d, 4" % (S_T[1], S_T[1]))
        e("s_lshl_b32 s%d, 1, s%d" % (S_T[2], S_T[1]))
        e("v_mov_b32 v%d, s%d" % (V_TMP[2], S_T[2]))
        e("v_mov_b32 v%d, s%d" % (V_TMP[3], S_T[0]))
        e("s_mov_b64 s[44:45], exec")
        e("s_mov_b64 exec, 1")
        e("buffer_atomic_add v%d, v%d, s[%d:%d], 0 offen sc0 sc1" % (V_TMP[2], V_TMP[3], S_DBG, S_DBG + 3))
        e("s_waitcnt vmcnt(0)")
        e("v_lshrrev_b32 v%d, s%d, v%d" % (V_TMP[2], S_T[1], V_TMP[2]))
        e("v_and_b32 v%d, 0xffff, v%d" % (V_TMP[2], V_TMP[2]))
        e("v_mov_b32 v%d, 65536" % V_TMP[3])
        e("ds_write_b32 v%d, v%d" % (V_TMP[3], V_TMP[2]))
        e("s_waitcnt lgkmcnt(0)")
        e("s_mov_b64 exec, s[44:45]")
        a.label("L2_noat")
        e("s_barrier")
        e("v_mov_b32 v%d, 65536" % V_TMP[3])
        e("ds_read_b32 v%d, v%d" % (V_TMP[2], V_TMP[3]))
        e("s_waitcnt lgkmcnt(0)")
        e("v_readfirstlane_b32 s%d, v%d" % (S_T[0], V_TMP[2]))
        e("s_and_b32 s%d, s%d, 1" % (S_T[0], S_T[0]))
        e("s_cmp_eq_u32 s%d, 0" % S_T[0])
        e("s_cbranch_scc1 L2_end")
        e("s_xor_b32 s%d, s%d, 1" % (S_T[0], S_KH))
        e("s_lshl_b32 s%d, s%d, 16" % (S_T[0], S_T[0]))
        e("s_add_u32 s%d, s%d, s%d" % (S_T[0], S_T[0], S_PB))
        for g in range(2):
            e("s_add_u32 s%d, s%d, %d" % (S_T[1], S_T[0], g * 4096))
            for i in range(4):
                e("buffer_load_dwordx4 %s, v%d, s[%d:%d], s%d offen offset:%d sc1" %
                  (vr(V_B + 16 * g + 4 * i, 4), V_RED, S_WS, S_WS + 3, S_T[1], i * 1024))
        e("s_lshl_b32 s%d, s%d, 7" % (S_T[2], S_HALF))
        for t in range(2):
            e("s_waitcnt vmcnt(%d)" % (4 - 4 * t + 2 * t))
            for i in range(16):
                e("v_add_f32 v%d, v%d, v%d" % (V_ACC + 16 * t + i, V_ACC + 16 * t + i, V_B + 16 * t + i))
            for i in range(0, 16, 2):
                e("v_cvt_pk_bf16_f32 v%d, v%d, v%d" % (V_OUT + t * 8 + i // 2, V_ACC + t * 16 + i, V_ACC + t * 16 + i + 1))
            for G in range(2):
                e("buffer_store_dwordx4 %s, v%d, s[%d:%d], s%d offen offset:%d" %
                  (vr(V_OUT + t * 8 + 4 * G, 4), V_ST, S_OUT, S_OUT + 3, S_T[2], t * 64 + G * 32) + (" nt" if 'nto' in EXP else ""))

    def gen(self):
        a = self.a
        a.new_trace(0)
        self.prologue()
        self.body_all()
        a.trace = False
        a.reset_sites(0)
        self.prologue()
        self.body_all()
        self.epilogue()
        a.label("L2_end")
        if 'st2' in EXP:
            e = a.emit
            e("s_cmp_ge_u32 s2, 256")
            e("s_cbranch_scc1 L2_end2")
            e("s_waitcnt vmcnt(0)")
            e("s_memtime s[86:87]")
            e("s_waitcnt lgkmcnt(0)")
            e("s_sub_u32 s82, s82, s80")
            e("s_sub_u32 s84, s84, s80")
            e("s_sub_u32 s86, s86, s80")
            e("v_mov_b32 v20, s82")
            e("v_mov_b32 v21, s84")
            e("v_mov_b32 v22, s86")
            e("v_mov_b32 v23, 0")
            e("v_lshrrev_b32 v24, 6, v0")
            e("v_lshlrev_b32 v24, 4, v24")
            e("s_lshl_b32 s80, s2, 7")
            e("s_add_u32 s80, s80, %d" % (64 << 20))
            e("s_load_dwordx2 s[8:9], s[0:1], 96")
            e("s_mov_b32 s10, 0x10000000")
            e("s_mov_b32 s11, 0x00020000")
            e("s_waitcnt lgkmcnt(0)")
            e("buffer_store_dwordx4 v[20:23], v24, s[8:11], s80 offen")
            a.label("L2_end2")
        a.emit("s_endpgm")
```

```python
import sys
from asmlib import Asm
from k1 import K1
import os
K2V = os.environ.get('K2V', 'v3nowot')
if K2V == 'v1':
    from k2_v1p import K2
else:
    from k2_v3b import K2
NAME = "concat_heads__mha_block_cached__gqa_block_cached__near_ridge"
hdr = open("cdna_kernels/%s.s.ref" % NAME).read().split("; Override launch")[0]
out = [hdr]
out.append("; @launch kernel=attn1_kernel grid=(256,1,1) block=(512,1,1) lds=163840\n")
out.append("; @launch kernel=oproj_kernel grid=(256,1,1) block=(%d,1,1) lds=163840\n" % (256 if K2V == 'v1' else 512))
out.append('.amdgcn_target "amdgcn-amd-amdhsa--gfx950"\n.text\n')
a1 = Asm(); K1(a1, stamps=(len(sys.argv) > 2 and sys.argv[2] == "stamps")).gen()
out.append(".globl attn1_kernel\n.p2align 8\n.type attn1_kernel,@function\nattn1_kernel:\n")
out.append(a1.text())
a2 = Asm(); K2(a2).gen()
out.append(".globl oproj_kernel\n.p2align 8\n.type oproj_kernel,@function\noproj_kernel:\n")
out.append(a2.text())
out.append('''.section .rodata,"a"
.p2align 6
.amdhsa_kernel attn1_kernel
  .amdhsa_next_free_vgpr 256
  .amdhsa_next_free_sgpr 96
  .amdhsa_accum_offset 160
  .amdhsa_group_segment_fixed_size 0
  .amdhsa_kernarg_size 104
  .amdhsa_user_sgpr_count 2
  .amdhsa_user_sgpr_kernarg_segment_ptr 1
  .amdhsa_system_sgpr_workgroup_id_x 1
.end_amdhsa_kernel
.p2align 6
.amdhsa_kernel oproj_kernel
  .amdhsa_next_free_vgpr 256
  .amdhsa_next_free_sgpr 96
  .amdhsa_accum_offset 256
  .amdhsa_group_segment_fixed_size 0
  .amdhsa_kernarg_size 104
  .amdhsa_user_sgpr_count 2
  .amdhsa_user_sgpr_kernarg_segment_ptr 1
  .amdhsa_system_sgpr_workgroup_id_x 1
.end_amdhsa_kernel
''')
dst = sys.argv[1] if len(sys.argv) > 1 else "cdna_kernels/%s.s" % NAME
open(dst, "w").write("".join(out))
print("wrote", dst, sum(len(x) for x in out))
```

```python
from asmlib import Asm
import math, struct, os
EXP = os.environ.get('EXP', '')

SLOT = 16384
NSLOT = 10
XSCR = 8 * SLOT
LA = int(os.environ.get('LA', '5'))
NFR = 7
THR = 256.0

V_T1 = 1
V_XOFF = 2
V_XW = [3, 4]
V_STOFF = 5
V_DW, V_DV, V_DK = 6, 7, 8
V_L = [9, 12]
V_RC = 10
V_NM = 13
V_TS = [14, 15]
V_ET = [16, 17, 18, 19]
V_VW = [20, 21, 22, 23]
V_KA = [24 + i for i in range(8)]
V_FR = 32
V_XR = [60, 61, 62, 63]
V_THR = 60
V_STMP = 61
V_EP = 62
V_QACC = 64
V_S = [64, 80]
V_P = [96, 104]
V_NEGM = 112
V_Q = 128
A_O = 0
A_XF = 64

S_X, S_W, S_K, S_V, S_WS = 4, 8, 12, 16, 20
S_KVB = [26, 28]
S_WCB = [27, 29]
S_T = [34, 35, 36, 37, 38, 39]
S_SCALE = 40
S_WV1K = 42
S_STB = [43, 44, 45, 46]
S_XSO = [52, 53, 54, 55]
S_CLS = 47
K2V = os.environ.get('K2V', 'v3nowot')
S_TCH = 84
V_TCH = 62
TPOS = int(os.environ.get('TPOS', '12'))
S_WO = 56
S_WOS = 60 - 10
S_WOD = 51
WOT = 32 << 20
V_WOV = 152
STFLAG = os.environ.get('STFLAG', '')
SHIFT = int(os.environ.get('SHIFT', '8'))

def vr(b, n):
    return "v[%d:%d]" % (b, b + n - 1)
def ar(b, n):
    return "a[%d:%d]" % (b, b + n - 1)

class K1:
    def __init__(self, a, stamps=False):
        self.a = a
        self.stamps = stamps
        self.plan()

    def plan(self):
        steps = []
        for j in range(8):
            steps.append([('W', 0, j), ('W', 1, j)])
        for T in range(17):
            st = []
            if T < 16:
                st.append(('K', T // 8, T % 8))
            if T >= 1:
                st.append(('V', (T - 1) // 8, (T - 1) % 8))
            steps.append(st)
        self.steps = steps
        seq = [c for st in steps for c in st]
        self.seq = seq
        cons_step = {}
        for si, st in enumerate(steps):
            for c in st:
                cons_step[c] = si
        self.cons_step = cons_step
        free_at = {s: -1 for s in range(8)}
        free_at[8] = 8
        free_at[9] = 8
        self.slot = {}
        self.issue_step = {}
        for c in seq:
            s = min(free_at, key=lambda k: (free_at[k], k))
            self.slot[c] = s
            self.issue_step[c] = free_at[s]
            free_at[s] = cons_step[c] + 1
            assert self.issue_step[c] <= cons_step[c] - 2 or self.issue_step[c] == -1, (c, self.issue_step[c], cons_step[c])
        self.issue_at = {}
        for c in seq:
            self.issue_at.setdefault(self.issue_step[c], []).append(c)

    def stamp(self):
        if not self.stamps:
            return
        a = self.a
        a.emit("s_memtime s[60:61]")
        a.emit("s_waitcnt lgkmcnt(0)")
        a.emit("v_mov_b32 v%d, s60" % V_T1)
        a.emit("v_cmp_eq_u32 vcc, s62, v0")
        a.emit("s_nop 1")
        a.emit("v_cndmask_b32 v%d, v%d, v%d, vcc" % (V_STMP2, V_STMP2, V_T1))
        a.emit("s_add_u32 s62, s62, 1")

    def dma_ops(self, c):
        a = self.a
        kind, u, j = c
        ops = []
        for i in range(2):
            def op(i=i):
                if kind == 'W':
                    srd, base, goff, vo = S_W, S_WCB[u], j * 524288 + i * 262144, V_DW
                elif kind == 'K':
                    srd, base, goff, vo = S_K, S_KVB[u], j * 16384 + i * 8192, V_DK
                else:
                    srd, base, goff, vo = S_V, S_KVB[u], j * 16384 + i * 8192, V_DV
                a.emit("s_add_u32 m0, s%d, %d" % (S_WV1K, self.slot[c] * SLOT + i * 8192))
                a.emit("s_add_u32 s%d, s%d, %d" % (S_T[0], base, goff))
                fl = " nt" if (kind != 'W' or 'ntw' in EXP) else ""
                a.vmem("buffer_load_dwordx4 v%d, s[%d:%d], s%d offen%s lds" % (vo, srd, srd + 3, S_T[0], fl), ('dma', c, i))
            ops.append((op, 4))
        return ops

    def dma_tags(self, c):
        return [('dma', c, i) for i in range(2)]

    def addr_update(self, c):
        a = self.a
        kind = c[0]
        key = 'K' if kind == 'K' else 'VW'
        new = self.slot[c] * SLOT
        d = new - self.cur_base[key]
        self.cur_base[key] = new
        if d == 0:
            return
        for r in (V_KA if kind == 'K' else V_VW):
            a.emit("v_add_u32 v%d, 0x%x, v%d" % (r, d & 0xffffffff, r))

    def xraw_reg(self, j, i):
        return vr(V_Q + (j % 2) * 16 + i * 4, 4)

    def x_raw_load(self, j, i):
        a = self.a
        a.vmem("buffer_load_dwordx4 %s, v%d, s[%d:%d], s%d offen offset:%d" %
               (self.xraw_reg(j, i), V_XOFF, S_X, S_X + 3, S_XSO[i], j * 128) + (" nt" if 'ntx' in EXP else ""), ('xr', j, i))

    def x_write(self, j, i):
        a = self.a
        if 'noxvm' not in EXP:
            a.wait(vm=[('xr', j, i)])
        if 'noxw' in EXP:
            return
        a.ds("ds_write_b128 v%d, %s offset:%d" % (V_XW[i % 2], self.xraw_reg(j, i), i * 1024), ('xw', j, i))

    def x_read(self, j, ks):
        a = self.a
        if 'noxr' in EXP and j > 0:
            a.lgi[('xf', j, ks)] = a.lgi.get(('xf', 0, 0), 0)
            return
        a.ds("ds_read_b128 %s, v%d" % (ar(A_XF + (j % 2) * 16 + ks * 4, 4), V_XR[ks]), ('xf', j, ks))

    def build_frags(self):
        fr = []
        for j in range(8):
            for ks in range(4):
                for u in range(2):
                    for t in range(4):
                        fr.append(('W', u, j, ks, t))
        def ktile(g):
            for s in range(8):
                fr.append(('K', g, s))
        def vtile(g):
            for dt in range(4):
                for ks in range(2):
                    fr.append(('V', g, dt, ks))
        self.order = []
        ktile(0)
        ktile(1)
        for g in range(1, 31):
            if g == 16:
                vtile(15)
                ktile(17)
            else:
                ktile(g + 1)
                vtile(g - 1)
        vtile(30)
        vtile(31)
        return fr

    def frag_reg(self, f):
        return V_FR + (f % NFR) * 4

    def frag_chunk(self, f):
        d = self.frags[f]
        if d[0] == 'W':
            return ('W', d[1], d[2])
        g = d[1]
        return (d[0], g // 16, (g % 16) // 2)

    def issue_frag(self, f):
        a = self.a
        d = self.frags[f]
        r = self.frag_reg(f)
        c = self.frag_chunk(f)
        if d[0] == 'W':
            _, u, j, ks, t = d
            base = self.slot[c] * SLOT - self.cur_base['VW']
            off = base + (16 * ks) * 256
            if off < 0 or off + 1024 + 8 > 65535:
                self.addr_update(c)
                off = (16 * ks) * 256
            for e2 in range(2):
                a.ds("ds_read_b64_tr_b16 %s, v%d offset:%d" % (vr(r + 2 * e2, 2), V_VW[t], off + 1024 * e2), ('fr', f, e2))
        elif d[0] == 'V':
            _, g, dt, ks = d
            base = self.slot[c] * SLOT - self.cur_base['VW']
            off = base + (32 * (g & 1) + 16 * ks) * 256
            if off < 0 or off + 1024 + 8 > 65535:
                self.addr_update(c)
                off = (32 * (g & 1) + 16 * ks) * 256
            for e2 in range(2):
                a.ds("ds_read_b64_tr_b16 %s, v%d offset:%d" % (vr(r + 2 * e2, 2), V_VW[dt], off + 1024 * e2), ('fr', f, e2))
        else:
            _, g, s = d
            base = self.slot[c] * SLOT - self.cur_base['K']
            off = base + (g & 1) * 8192
            if off < 0 or off + 16 > 65535:
                self.addr_update(c)
                off = (g & 1) * 8192
            a.ds("ds_read_b128 %s, v%d offset:%d" % (vr(r, 4), V_KA[s], off), ('fr', f, 1))

    def softmax_ops(self, g):
        a = self.a
        cb = g & 1
        ops = []
        def E(p):
            ta, tb = V_ET[2 * (p & 1)], V_ET[2 * (p & 1) + 1]
            s0 = V_S[cb] + 2 * p
            ops.append((lambda: a.emit("v_exp_f32 v%d, v%d" % (ta, s0)), 8))
            ops.append((lambda: a.emit("v_exp_f32 v%d, v%d" % (tb, s0 + 1)), 8))
        def R(p):
            ta, tb = V_ET[2 * (p & 1)], V_ET[2 * (p & 1) + 1]
            if p == 0:
                ops.append((lambda: a.emit("v_mov_b32 v%d, v%d" % (V_TS[0], ta)), 4))
                ops.append((lambda: a.emit("v_mov_b32 v%d, v%d" % (V_TS[1], tb)), 4))
            else:
                ops.append((lambda: a.emit("v_add_f32 v%d, v%d, v%d" % (V_TS[0], V_TS[0], ta)), 4))
                ops.append((lambda: a.emit("v_add_f32 v%d, v%d, v%d" % (V_TS[1], V_TS[1], tb)), 4))
            pr = V_P[cb] + p
            ops.append((lambda: a.emit("v_cvt_pk_bf16_f32 v%d, v%d, v%d" % (pr, ta, tb)), 4))
        E(0)
        for p in range(1, 8):
            E(p)
            R(p - 1)
        ops.append((lambda: a.emit("s_nop 0"), 4))
        R(7)
        ops.append((lambda: a.emit("v_add_f32 v%d, v%d, v%d" % (V_TS[0], V_TS[0], V_TS[1])), 4))
        return ops

    def check_ops(self, g):
        a = self.a
        u = g // 16
        if g % 16 == 0:
            a.emit("v_mov_b32 v%d, v%d" % (V_L[u], V_TS[0]))
            return
        a.emit("v_cmp_nle_f32 vcc, v%d, v%d" % (V_TS[0], V_THR))
        a.emit("s_cbranch_vccnz L_slow%d" % g)
        a.label("L_back%d" % g)
        a.emit("v_add_f32 v%d, v%d, v%d" % (V_L[u], V_L[u], V_TS[0]))

    def rowmax_ops(self, s, T0, T1):
        a = self.a
        ops = []
        ops.append((lambda: a.emit("v_max3_f32 v%d, v%d, v%d, v%d" % (T0, s, s + 1, s + 2)), 4))
        for i in range(3, 15, 2):
            ops.append((lambda i=i: a.emit("v_max3_f32 v%d, v%d, v%d, v%d" % (T0, T0, s + i, s + i + 1)), 4))
        ops.append((lambda: a.emit("v_max_f32 v%d, v%d, v%d" % (T0, T0, s + 15)), 4))
        def sw():
            a.emit("v_mov_b32 v%d, v%d" % (T1, T0))
            a.emit("s_nop 1")
            a.emit("v_permlane32_swap_b32 v%d, v%d" % (T0, T1))
            a.emit("s_nop 1")
        ops.append((sw, 16))
        return ops

    def init_ops(self, g):
        a = self.a
        s = V_S[g & 1]
        T0, T1 = V_ET[0], V_ET[1]
        ops = self.rowmax_ops(s, T0, T1)
        ops.append((lambda: a.emit("v_max_f32 v%d, v%d, v%d" % (T0, T0, T1)), 4))
        ops.append((lambda: a.emit("v_sub_f32 v%d, 0, v%d" % (V_NM, T0)), 4))
        for i in range(16):
            ops.append((lambda i=i: a.emit("v_mov_b32 v%d, v%d" % (V_NEGM + i, V_NM)), 4))
        for i in range(16):
            ops.append((lambda i=i: a.emit("v_add_f32 v%d, v%d, v%d" % (s + i, s + i, V_NM)), 4))
        return ops

    def slow_path(self, g):
        a = self.a
        u = g // 16
        cb = g & 1
        nb = cb ^ 1
        a.label("L_slow%d" % g)
        a.emit("s_nop 15")
        a.emit("s_nop 15")
        T0, T1 = V_ET[0], V_ET[1]
        s = V_S[cb]
        for op, c in self.rowmax_ops(s, T0, T1):
            op()
        a.emit("v_max3_f32 v%d, v%d, v%d, 0" % (T0, T0, T1))
        a.emit("v_exp_f32 v%d, -v%d" % (T1, T0))
        if g % 16 != 15:
            a.emit("v_sub_f32 v%d, v%d, v%d" % (V_NM, V_NM, T0))
            for i in range(16):
                a.emit("v_mov_b32 v%d, v%d" % (V_NEGM + i, V_NM))
            for i in range(16):
                r = V_S[nb] + i
                a.emit("v_sub_f32 v%d, v%d, v%d" % (r, r, T0))
        a.emit("v_mul_f32 v%d, v%d, v%d" % (V_L[u], V_L[u], T1))
        for i in range(64):
            r = A_O + i
            a.emit("v_accvgpr_read_b32 v%d, a%d" % (V_ET[2], r))
            a.emit("v_mul_f32 v%d, v%d, v%d" % (V_ET[3], V_ET[2], T1))
            a.emit("v_accvgpr_write_b32 a%d, v%d" % (r, V_ET[3]))
        a.emit("v_mov_b32 v%d, 0" % V_TS[0])
        for p in range(8):
            a.emit("v_sub_f32 v%d, v%d, v%d" % (V_ET[2], s + 2 * p, T0))
            a.emit("v_sub_f32 v%d, v%d, v%d" % (V_ET[3], s + 2 * p + 1, T0))
            a.emit("v_exp_f32 v%d, v%d" % (V_ET[2], V_ET[2]))
            a.emit("v_exp_f32 v%d, v%d" % (V_ET[3], V_ET[3]))
            a.emit("s_nop 0")
            a.emit("v_add_f32 v%d, v%d, v%d" % (V_TS[0], V_TS[0], V_ET[2]))
            a.emit("v_add_f32 v%d, v%d, v%d" % (V_TS[0], V_TS[0], V_ET[3]))
            a.emit("v_cvt_pk_bf16_f32 v%d, v%d, v%d" % (V_P[cb] + p, V_ET[2], V_ET[3]))
        a.emit("s_nop 3")
        a.emit("s_branch L_back%d" % g)

    def touch(self, e):
        if 'touch' not in EXP:
            return
        a = self.a
        a.emit("s_add_u32 s%d, s%d, %d" % (S_T[0], S_KVB[e // 4], (e % 4) * 32768))
        a.vmem("buffer_load_dword v%d, v%d, s[%d:%d], s%d offen nt" % (V_T1, V_L[0] if e < 4 else V_TCH, S_TCH, S_TCH + 3, S_T[0]), None)

    def wo_ld(self, k):
        a = self.a
        if K2V == 'v3nowot':
            return
        if k == 0 and K2V == 'v3':
            a.emit("v_and_b32 v%d, 0xff, v%d" % (V_TS[0], V_DV))
            a.emit("v_lshrrev_b32 v%d, 8, v%d" % (V_TS[1], V_DV))
            a.emit("v_lshl_add_u32 v%d, v%d, 10, v%d" % (V_TS[0], V_TS[1], V_TS[0]))
            a.emit("v_lshlrev_b32 v%d, 4, v0" % V_TS[1])
        if k == 0 and K2V == 'v1':
            a.emit("v_lshrrev_b32 v%d, 3, v0" % V_TS[0])
            a.emit("v_lshlrev_b32 v%d, 10, v%d" % (V_TS[0], V_TS[0]))
            a.emit("v_bfe_u32 v%d, v0, 4, 1" % V_TS[1])
            a.emit("v_lshlrev_b32 v%d, 2, v%d" % (V_TS[1], V_TS[1]))
            a.emit("v_xor_b32 v%d, v0, v%d" % (V_TS[1], V_TS[1]))
            a.emit("v_and_b32 v%d, 7, v%d" % (V_TS[1], V_TS[1]))
            a.emit("v_lshl_add_u32 v%d, v%d, 4, v%d" % (V_TS[0], V_TS[1], V_TS[0]))
            a.emit("v_lshlrev_b32 v%d, 4, v0" % V_TS[1])
        a.emit("s_add_u32 s%d, s%d, %d" % (S_T[0], S_WOS, k * (65536 if K2V == 'v1' else 32768)))
        a.vmem("buffer_load_dwordx4 %s, v%d, s[%d:%d], s%d offen" % (vr(V_ET[0], 4), V_TS[0], S_WO, S_WO + 3, S_T[0]) + (" nt" if 'ntwo' in EXP else ""), ('wo', k))

    def wo_st(self, k):
        a = self.a
        if K2V == 'v3nowot':
            return
        a.wait(vm=[('wo', k)])
        a.emit("s_add_u32 s%d, s%d, %d" % (S_T[0], S_WOD, k * 8192))
        a.vmem("buffer_store_dwordx4 %s, v%d, s[%d:%d], s%d offen" % (vr(V_ET[0], 4), V_TS[1], S_WS, S_WS + 3, S_T[0]) + STFLAG, None)

    def epilogue_ops(self, u, tmp):
        a = self.a
        ops = []
        T0, T1 = V_RC, 63
        def pre():
            a.emit("v_mov_b32 v%d, v%d" % (T0, V_L[u]))
            a.emit("v_mov_b32 v%d, v%d" % (T1, V_L[u]))
            a.emit("s_nop 1")
            a.emit("v_permlane32_swap_b32 v%d, v%d" % (T0, T1))
            a.emit("s_nop 1")
            a.emit("v_add_f32 v%d, v%d, v%d" % (T0, T0, T1))
            a.emit("v_rcp_f32 v%d, v%d" % (T0, T0))
            a.emit("s_nop 0")
        ops.append((pre, 30))
        if tmp is None:
            t0, t1 = 61, 62
            self.deferred_stores = []
            for dt in range(4):
                for G in range(2):
                    kq = 2 * dt + G
                    o = A_O + dt * 16 + 8 * G
                    for i in range(0, 8, 2):
                        def pk(o=o, i=i, kq=kq):
                            a.emit("v_accvgpr_read_b32 v%d, a%d" % (t0, o + i))
                            a.emit("v_accvgpr_read_b32 v%d, a%d" % (t1, o + i + 1))
                            a.emit("v_mul_f32 v%d, v%d, v%d" % (t0, t0, T0))
                            a.emit("v_mul_f32 v%d, v%d, v%d" % (t1, t1, T0))
                            a.emit("v_cvt_pk_bf16_f32 v%d, v%d, v%d" % (V_Q + 4 * kq + i // 2, t0, t1))
                        ops.append((pk, 20))
                    so = S_STB[u * 2 + (kq // 4)]
                    self.deferred_stores.append(lambda so=so, kq=kq: a.vmem(
                        "buffer_store_dwordx4 %s, v%d, s[%d:%d], s%d offen offset:%d%s" %
                        (vr(V_Q + 4 * kq, 4), V_STOFF, S_WS, S_WS + 3, so, (kq % 4) * 1024, STFLAG), None))
            return ops
        k = 0
        for dt in range(4):
            for G in range(2):
                base = tmp[k % len(tmp)]
                k += 1
                o = A_O + dt * 16 + 8 * G
                for i in range(8):
                    ops.append((lambda base=base, i=i, o=o: a.emit("v_accvgpr_read_b32 v%d, a%d" % (base + i, o + i)), 4))
                for i in range(8):
                    ops.append((lambda base=base, i=i: a.emit("v_mul_f32 v%d, v%d, v%d" % (base + i, base + i, T0)), 4))
                for i in range(0, 8, 2):
                    ops.append((lambda base=base, i=i: a.emit("v_cvt_pk_bf16_f32 v%d, v%d, v%d" % (base + 8 + i // 2, base + i, base + i + 1)), 4))
                kq = 2 * dt + G
                so = S_STB[u * 2 + (kq // 4)]
                ops.append((lambda base=base, so=so, kq=kq: a.vmem(
                    "buffer_store_dwordx4 %s, v%d, s[%d:%d], s%d offen offset:%d%s" %
                    (vr(base + 8, 4), V_STOFF, S_WS, S_WS + 3, so, (kq % 4) * 1024, STFLAG), None), 4))
        return ops

    def body(self):
        a = self.a
        frags = self.frags
        self.fpos = 0
        self.fiss = 0
        fillers = []
        timed = {}

        def time_ops(ops, span):
            n = len(ops)
            for cls in range(2):
                for k, (op, c) in enumerate(ops):
                    pos = self.fpos + cls * (span // 2) + 1 + (k * (span // 2 - 1)) // n
                    timed.setdefault(pos, []).append((cls, op))

        def pump(budget):
            while fillers and budget > 0:
                op, c = fillers.pop(0)
                op()
                budget -= c

        def flush():
            while fillers:
                op, c = fillers.pop(0)
                op()

        def issue_upto(n):
            while self.fiss < min(n, len(frags)):
                self.issue_frag(self.fiss)
                self.fiss += 1

        def step_start(si, front=False):
            need = []
            if si + 1 < len(self.steps):
                for c in self.steps[si + 1]:
                    need += self.dma_tags(c)
            if need:
                a.wait(vm=need)
            a.emit("s_barrier")
            if si in (0, 8, 9, 16, 17, 24) or 'allst' in EXP:
                self.stamp()
            ops = []
            for c in self.issue_at.get(si, []):
                ops.extend(self.dma_ops(c))
            return ops

        def consume(mf, extra_lg=(), per=14):
            f = self.fpos
            a.wait(lg=[('fr', f, 1)] + list(extra_lg))
            mf(self.frag_reg(f))
            issue_upto(f + 1 + LA)
            for cls, fn in timed.pop(f, []):
                if cls is None:
                    fn()
                else:
                    a.cond(cls, fn, S_CLS)
            pump(per)
            self.fpos += 1

        for i in range(4):
            self.x_write(0, i)
        for ks in range(4):
            self.x_read(0, ks)
        for j in range(8):
            dma = step_start(j)
            if j == 0:
                issue_upto(LA)
                dma = self.late_prologue + dma
            mi = 0
            sched = {}
            for cls in range(2):
                sh = cls * SHIFT
                if j + 2 < 8:
                    for i in range(4):
                        sched.setdefault(1 + 2 * i + sh, []).append((cls, lambda i=i: self.x_raw_load(j + 2, i)))
                for k, (op, c) in enumerate(dma):
                    sched.setdefault(min(9 + 2 * k + sh, 31), []).append((cls, op))
                if j + 1 < 8:
                    for i in range(4):
                        sched.setdefault(2 + 4 * i + sh, []).append((cls, lambda i=i: self.x_write(j + 1, i)))
                    for k in range(4):
                        sched.setdefault(17 + k + sh, []).append((cls, lambda k=k: self.x_read(j + 1, k)))
            for ks in range(4):
                for u in range(2):
                    for t in range(4):
                        def m(fr):
                            if u == 0:
                                acc = vr(V_QACC + t * 16, 16)
                            else:
                                acc = ar(A_O + t * 16, 16)
                            c = "0" if (j == 0 and ks == 0) else acc
                            a.emit("v_mfma_f32_32x32x16_bf16 %s, %s, %s, %s" %
                                   (acc, vr(fr, 4), ar(A_XF + (j % 2) * 16 + ks * 4, 4), c))
                        consume(m, [('xf', j, ks)] if (t == 0 and u == 0) else [])
                        for cls, fn in sched.get(mi, []):
                            a.cond(cls, fn, S_CLS)
                        if mi == TPOS and j % 2 == 1:
                            self.touch(j // 2)
                        if mi == 28 and j % 2 == 0 and j >= 2:
                            self.wo_st((j - 2) // 2)
                        if mi == 30 and j % 2 == 0:
                            self.wo_ld(j // 2)
                        mi += 1
            flush()

        self.wo_st(3)
        a.emit("s_nop 7")
        a.emit("s_nop 7")
        tb = struct.unpack("<I", struct.pack("<f", THR))[0]
        a.emit("v_mov_b32 v%d, 0x%08x" % (V_THR, tb))
        for t in range(4):
            acc = V_QACC + t * 16
            for i in range(0, 16, 2):
                a.emit("v_pk_mul_f32 %s, %s, s[%d:%d]" % (vr(acc + i, 2), vr(acc + i, 2), S_SCALE, S_SCALE + 1))
            for i in range(0, 16, 2):
                q = V_Q + (2 * t + i // 8) * 4 + (i % 8) // 2
                a.emit("v_cvt_pk_bf16_f32 v%d, v%d, v%d" % (q, acc + i, acc + i + 1))
        conv1 = []
        CT = [V_P[1], V_P[1] + 2, V_P[1] + 4, V_P[1] + 6]
        k = 0
        for t in range(4):
            for i in range(0, 16, 2):
                tt = CT[k % 4]
                k += 1
                o = A_O + t * 16 + i
                q = A_XF + (2 * t + i // 8) * 4 + (i % 8) // 2
                def cv(tt=tt, o=o, q=q):
                    a.emit("v_accvgpr_read_b32 v%d, a%d" % (tt, o))
                    a.emit("v_accvgpr_read_b32 v%d, a%d" % (tt + 1, o + 1))
                    a.emit("v_mul_f32 v%d, s%d, v%d" % (tt, S_SCALE, tt))
                    a.emit("v_mul_f32 v%d, s%d, v%d" % (tt + 1, S_SCALE, tt + 1))
                    a.emit("v_cvt_pk_bf16_f32 v%d, v%d, v%d" % (tt, tt, tt + 1))
                    a.emit("v_accvgpr_write_b32 a%d, v%d" % (q, tt))
                conv1.append((cv, 24))

        def A_mfmas(g, per=14):
            nb = g & 1
            u = g // 16
            for s in range(8):
                def m(fr):
                    sreg = V_S[nb]
                    if s == 0:
                        c = "0" if g % 16 == 0 else vr(V_NEGM, 16)
                    else:
                        c = vr(sreg, 16)
                    q = vr(V_Q + s * 4, 4) if u == 0 else ar(A_XF + s * 4, 4)
                    a.emit("v_mfma_f32_32x32x16_bf16 %s, %s, %s, %s" % (vr(sreg, 16), vr(fr, 4), q, c))
                consume(m, per=per)

        def C_mfmas(g, per=14):
            pb = g & 1
            for dt in range(4):
                for ks in range(2):
                    def m(fr):
                        o = A_O + dt * 16
                        c = "0" if (g % 16 == 0 and ks == 0) else ar(o, 16)
                        a.emit("v_mfma_f32_32x32x16_bf16 %s, %s, %s, %s" %
                               (ar(o, 16), vr(fr, 4), vr(V_P[pb] + ks * 4, 4), c))
                    consume(m, per=per)

        time_ops(step_start(8), 16)
        fillers.extend(conv1[:16])
        a.emit("s_nop 1")
        A_mfmas(0, per=24)
        flush()
        a.emit("s_nop 7")
        for op, c in self.init_ops(0):
            op()
        fillers.extend(self.softmax_ops(0))
        fillers.extend(conv1[16:])
        A_mfmas(1, per=40)
        flush()
        self.check_ops(0)
        for T in range(1, 16):
            time_ops(step_start(8 + T), 32)
            if T == 13:
                assert max(self.issue_at) <= 20
                def warm():
                    a.emit("v_lshlrev_b32 v%d, 6, v0" % V_T1)
                    a.vmem("buffer_load_dword v%d, v%d, s[%d:%d], s%d offen" % (V_T1, V_T1, S_WO, S_WO + 3, S_WOS), None)
                if K2V == 'v3nowot':
                    timed.setdefault(self.fpos + 1, []).append((None, warm))
                if 'nodefer' not in EXP:
                    for k, st in enumerate(self.deferred_stores):
                        timed.setdefault(self.fpos + 4 + 3 * k, []).append((None, st))
            if T in (1, 3, 5, 7):
                timed.setdefault(self.fpos + 20, []).append((None, lambda T=T: self.touch(4 + (T - 1) // 2)))
            for g in (2 * T - 1, 2 * T):
                if g == 16:
                    a.emit("s_nop 1")
                    fillers.extend([(lambda: a.emit("s_nop 7"), 8)] + self.init_ops(16))
                    C_mfmas(15, per=30)
                    flush()
                    a.emit("s_nop 1")
                    if 'nodefer' in EXP:
                        ep = self.epilogue_ops(0, [V_Q, V_Q + 12])
                        nsp = 90
                    else:
                        ep = self.epilogue_ops(0, None)
                        nsp = 17
                    fillers.extend(self.softmax_ops(16))
                    fillers.append((lambda: a.emit("s_nop 7"), 8))
                    fillers.extend(ep[:nsp])
                    self.ep_rest = ep[nsp:]
                    A_mfmas(17, per=40)
                    flush()
                    self.check_ops(16)
                    continue
                if g == 17:
                    fillers.extend(self.ep_rest)
                    fillers.extend(self.softmax_ops(g))
                    A_mfmas(g + 1, per=40)
                    while any(True for _ in ()):
                        pass
                    n_sm = len(self.softmax_ops(g))
                    while len(fillers) > n_sm:
                        op, c = fillers.pop(0)
                        op()
                    a.emit("s_nop 1")
                    C_mfmas(g - 1, per=24)
                    flush()
                    self.check_ops(g)
                    continue
                fillers.extend(self.softmax_ops(g))
                A_mfmas(g + 1)
                C_mfmas(g - 1)
                flush()
                self.check_ops(g)
        time_ops(step_start(24), 16)
        fillers.extend(self.softmax_ops(31))
        C_mfmas(30, per=30)
        flush()
        self.check_ops(31)
        a.emit("s_nop 1")
        C_mfmas(31)
        flush()
        self.stamp()
        a.emit("s_nop 15")
        for op, c in self.epilogue_ops(1, [64, 76, 88, 100]):
            op()

    def prologue(self):
        a = self.a
        e = a.emit
        self.cur_base = {'K': 0, 'VW': 0}
        e("s_cmp_ge_u32 s2, 256")
        e("s_cbranch_scc1 L_end")
        if self.stamps:
            e("s_memtime s[90:91]")
            e("s_memrealtime s[92:93]")
        e("s_and_b32 s%d, s2, 7" % S_T[0])
        e("s_lshr_b32 s%d, s2, 3" % S_T[1])
        e("s_and_b32 s%d, s%d, 1" % (S_T[2], S_T[0]))
        e("s_load_dwordx16 s[64:79], s[0:1], 0")
        e("s_load_dwordx8 s[80:87], s[0:1], 64")
        e("s_load_dwordx2 s[88:89], s[0:1], 96")
        e("s_lshr_b32 s%d, s%d, 1" % (S_T[3], S_T[0]))
        e("s_and_b32 s%d, s%d, 1" % (S_T[3], S_T[3]))
        e("s_lshl_b32 s%d, s%d, 2" % (S_T[3], S_T[3]))
        e("s_and_b32 s%d, s%d, 3" % (S_T[4], S_T[1]))
        e("s_add_u32 s%d, s%d, s%d" % (S_T[3], S_T[3], S_T[4]))
        e("s_lshr_b32 s%d, s%d, 2" % (S_T[4], S_T[0]))
        e("s_lshl_b32 s%d, s%d, 4" % (S_T[4], S_T[4]))
        e("s_lshr_b32 s%d, s%d, 2" % (S_T[5], S_T[1]))
        e("s_add_u32 s%d, s%d, s%d" % (S_T[4], S_T[4], S_T[5]))
        e("s_waitcnt lgkmcnt(0)")
        e("s_cmp_eq_u32 s%d, 0" % S_T[2])
        for (dst, pa, pb, sz) in ((S_X, 64, 74, 8 * 240 * 512 * 2), (S_K, 66, 76, 8 * 32 * 512 * 128 * 2),
                                  (S_V, 68, 78, 8 * 32 * 512 * 128 * 2), (S_W, 70, 80, 512 * 4096 * 2)):
            e("s_cselect_b32 s%d, s%d, s%d" % (dst, pa, pb))
            e("s_cselect_b32 s%d, s%d, s%d" % (dst + 1, pa + 1, pb + 1))
            e("s_mov_b32 s%d, %d" % (dst + 2, sz))
            e("s_mov_b32 s%d, 0x00020000" % (dst + 3))
        e("s_cselect_b32 s%d, s72, s82" % S_WO)
        e("s_cselect_b32 s%d, s73, s83" % (S_WO + 1))
        e("s_mov_b32 s%d, %d" % (S_WO + 2, 4096 * 512 * 2))
        e("s_mov_b32 s%d, 0x00020000" % (S_WO + 3))
        e("s_lshr_b32 s%d, s%d, 1" % (S_WOS, S_T[0]))
        e("s_lshl_b32 s%d, s%d, 5" % (S_WOS, S_WOS))
        e("s_add_u32 s%d, s%d, s%d" % (S_WOS, S_WOS, S_T[1]))
        if K2V == 'v3nowot':
            e("s_lshl_b32 s%d, s%d, 15" % (S_WOS, S_WOS))
        elif K2V == 'v1':
            e("s_lshl_b32 s%d, s%d, 22" % (S_WOD, S_T[2]))
            e("s_lshl_b32 s63, s%d, 15" % S_WOS)
            e("s_add_u32 s%d, s%d, s63" % (S_WOD, S_WOD))
            e("s_add_u32 s%d, s%d, %d" % (S_WOD, S_WOD, WOT))
            e("s_lshr_b32 s63, s%d, 4" % S_WOS)
            e("s_lshl_b32 s63, s63, 7")
            e("s_and_b32 s%d, s%d, 15" % (S_WOS, S_WOS))
            e("s_lshl_b32 s%d, s%d, 18" % (S_WOS, S_WOS))
            e("s_add_u32 s%d, s%d, s63" % (S_WOS, S_WOS))
        else:
            e("s_lshl_b32 s%d, s%d, 1" % (S_WOS, S_WOS))
            e("s_lshl_b32 s%d, s%d, 22" % (S_WOD, S_T[2]))
            e("s_lshl_b32 s63, s%d, 14" % S_WOS)
            e("s_add_u32 s%d, s%d, s63" % (S_WOD, S_WOD))
            e("s_add_u32 s%d, s%d, %d" % (S_WOD, S_WOD, WOT))
            e("s_lshr_b32 s63, s%d, 6" % S_WOS)
            e("s_lshl_b32 s63, s63, 8")
            e("s_and_b32 s%d, s%d, 63" % (S_WOS, S_WOS))
            e("s_lshl_b32 s%d, s%d, 16" % (S_WOS, S_WOS))
            e("s_add_u32 s%d, s%d, s63" % (S_WOS, S_WOS))
        e("s_mov_b32 s%d, s88" % S_WS)
        e("s_mov_b32 s%d, s89" % (S_WS + 1))
        e("s_mov_b32 s%d, %d" % (S_WS + 2, WOT + (8 << 20)))
        e("s_mov_b32 s%d, 0x00020000" % (S_WS + 3))
        e("s_lshl_b32 s%d, s%d, 5" % (S_T[5], S_T[3]))
        e("s_add_u32 s%d, s%d, s%d" % (S_T[5], S_T[5], S_T[4]))
        e("s_lshl_b32 s%d, s%d, 17" % (S_KVB[0], S_T[5]))
        e("s_lshl_b32 s%d, s%d, 8" % (S_WCB[0], S_T[4]))
        e("s_add_u32 s%d, s%d, %d" % (S_KVB[1], S_KVB[0], 8 * 131072))
        e("s_add_u32 s%d, s%d, %d" % (S_WCB[1], S_WCB[0], 8 * 256))
        e("s_mul_i32 s%d, s%d, %d" % (S_STB[0], S_T[2], 60 * 262144))
        e("s_lshl_b32 s%d, s%d, 13" % (S_T[5], S_T[4]))
        e("s_add_u32 s%d, s%d, s%d" % (S_STB[0], S_STB[0], S_T[5]))
        e("s_add_u32 s%d, s%d, 4096" % (S_STB[1], S_STB[0]))
        e("s_add_u32 s%d, s%d, %d" % (S_STB[2], S_STB[0], 65536))
        e("s_add_u32 s%d, s%d, %d" % (S_STB[3], S_STB[0], 65536 + 4096))
        c = math.log2(math.e) / math.sqrt(128.0)
        cb = struct.unpack("<I", struct.pack("<f", c))[0]
        e("s_mov_b32 s%d, 0x%08x" % (S_SCALE, cb))
        e("s_mov_b32 s%d, 0x%08x" % (S_SCALE + 1, cb))
        for i in range(4):
            e("s_mov_b32 s%d, %d" % (S_XSO[i], i * 8192))
        e("v_lshrrev_b32 v%d, 6, v0" % V_T1)
        e("s_nop 0")
        e("v_readfirstlane_b32 s%d, v%d" % (S_T[0], V_T1))
        e("s_lshl_b32 s%d, s%d, 10" % (S_WV1K, S_T[0]))
        e("s_lshl_b32 s62, s%d, 6" % S_T[0])
        e("s_lshr_b32 s%d, s%d, 2" % (S_CLS, S_T[0]))
        L = V_L[0]
        HH = V_L[1]
        e("v_and_b32 v%d, 63, v0" % L)
        e("v_lshrrev_b32 v%d, 5, v%d" % (HH, L))
        e("s_mul_i32 s%d, s%d, 240" % (S_T[1], S_T[3]))
        e("s_lshl_b32 s%d, s%d, 5" % (S_T[2], S_T[0]))
        e("s_add_u32 s%d, s%d, s%d" % (S_T[1], S_T[1], S_T[2]))
        RP, CH = V_ET[0], V_ET[1]
        e("v_lshrrev_b32 v%d, 4, v%d" % (V_ET[2], L))
        e("s_lshl_b32 s%d, s%d, 2" % (S_T[5], S_T[0]))
        e("v_add_u32 v%d, s%d, v%d" % (RP, S_T[5], V_ET[2]))
        e("v_and_b32 v%d, 15, v%d" % (CH, L))
        e("v_lshlrev_b32 v%d, 2, v%d" % (V_ET[3], V_ET[2]))
        e("v_xor_b32 v%d, v%d, v%d" % (V_ET[3], CH, V_ET[3]))
        e("v_lshlrev_b32 v%d, 4, v%d" % (V_ET[3], V_ET[3]))
        e("v_lshl_add_u32 v%d, v%d, 13, v%d" % (V_DW, RP, V_ET[3]))
        e("v_lshl_add_u32 v%d, v%d, 8, v%d" % (V_DV, RP, V_ET[3]))
        e("v_and_b32 v%d, 15, v%d" % (V_ET[3], RP))
        e("v_xor_b32 v%d, v%d, v%d" % (V_ET[3], CH, V_ET[3]))
        e("v_lshlrev_b32 v%d, 4, v%d" % (V_ET[3], V_ET[3]))
        e("v_lshl_add_u32 v%d, v%d, 8, v%d" % (V_DK, RP, V_ET[3]))
        e("v_lshrrev_b32 v%d, 3, v%d" % (V_ET[0], L))
        e("v_add_u32 v%d, s%d, v%d" % (V_ET[1], S_T[1], V_ET[0]))
        e("v_lshlrev_b32 v%d, 10, v%d" % (V_XOFF, V_ET[1]))
        e("v_and_b32 v%d, 7, v%d" % (V_ET[1], L))
        e("v_lshl_add_u32 v%d, v%d, 4, v%d" % (V_XOFF, V_ET[1], V_XOFF))
        first = self.issue_at[-1]
        for i in range(4):
            self.x_raw_load(0, i)
        for c in first[:2]:
            for op, cc in self.dma_ops(c):
                op()
        for i in range(4):
            self.x_raw_load(1, i)
        for c in first[2:4]:
            for op, cc in self.dma_ops(c):
                op()
        self.late_prologue = []
        for c in first[4:]:
            self.late_prologue.extend(self.dma_ops(c))
        e("v_lshrrev_b32 v%d, 4, v%d" % (V_ET[2], L))
        e("v_xor_b32 v%d, v%d, v%d" % (V_ET[2], V_ET[1], V_ET[2]))
        e("v_lshlrev_b32 v%d, 4, v%d" % (V_ET[2], V_ET[2]))
        e("v_lshl_add_u32 v%d, v%d, 7, v%d" % (V_ET[2], V_ET[0], V_ET[2]))
        e("s_lshl_b32 s%d, s%d, 2" % (S_T[5], S_WV1K))
        e("s_add_u32 s%d, s%d, %d" % (S_T[5], S_T[5], XSCR))
        e("v_add_u32 v%d, s%d, v%d" % (V_XW[0], S_T[5], V_ET[2]))
        e("v_xor_b32 v%d, 64, v%d" % (V_XW[1], V_XW[0]))
        e("v_and_b32 v%d, 31, v%d" % (V_ET[0], L))
        e("v_bfe_u32 v%d, v%d, 1, 3" % (V_ET[1], L))
        e("v_xor_b32 v%d, v%d, v%d" % (V_ET[1], V_ET[1], HH))
        for ks in range(4):
            e("v_xor_b32 v%d, %d, v%d" % (V_ET[2], 2 * ks, V_ET[1]))
            e("v_lshlrev_b32 v%d, 4, v%d" % (V_ET[2], V_ET[2]))
            e("v_lshl_add_u32 v%d, v%d, 7, v%d" % (V_ET[2], V_ET[0], V_ET[2]))
            e("v_add_u32 v%d, s%d, v%d" % (V_XR[ks], S_T[5], V_ET[2]))
        R = V_ET[0]
        e("v_and_b32 v%d, 31, v%d" % (V_ET[3], L))
        e("v_add_u32 v%d, s%d, v%d" % (R, S_T[1], V_ET[3]))
        e("v_lshrrev_b32 v%d, 5, v%d" % (V_ET[1], R))
        e("v_lshlrev_b32 v%d, 18, v%d" % (V_ET[1], V_ET[1]))
        e("v_and_b32 v%d, 31, v%d" % (V_ET[2], R))
        e("v_lshlrev_b32 v%d, 4, v%d" % (V_ET[2], V_ET[2]))
        e("v_lshl_add_u32 v%d, v%d, 9, v%d" % (V_ET[2], HH, V_ET[2]))
        e("v_add_u32 v%d, v%d, v%d" % (V_STOFF, V_ET[1], V_ET[2]))
        e("v_add_u32 v%d, s%d, v%d" % (V_ET[3], S_T[2], V_ET[3]))
        e("v_mov_b32 v%d, 0x7f000000" % V_ET[0])
        e("v_cmp_gt_u32 vcc, 240, v%d" % V_ET[3])
        e("s_nop 1")
        e("v_cndmask_b32 v%d, v%d, v%d, vcc" % (V_STOFF, V_ET[0], V_STOFF))
        r_, c4 = V_ET[0], V_ET[1]
        e("v_bfe_u32 v%d, v%d, 2, 2" % (r_, L))
        e("v_and_b32 v%d, 3, v%d" % (c4, L))
        e("v_lshl_add_u32 v%d, v%d, 3, v%d" % (V_ET[2], HH, r_))
        e("v_lshlrev_b32 v%d, 8, v%d" % (V_ET[2], V_ET[2]))
        e("v_bfe_u32 v%d, v%d, 4, 1" % (V_ET[3], L))
        e("v_lshl_add_u32 v%d, v%d, 5, v%d" % (V_ET[2], V_ET[3], V_ET[2]))
        e("v_and_b32 v%d, 1, v%d" % (V_ET[3], c4))
        e("v_lshl_add_u32 v%d, v%d, 4, v%d" % (V_ET[2], V_ET[3], V_ET[2]))
        e("v_lshrrev_b32 v%d, 1, v%d" % (V_ET[3], c4))
        e("v_lshl_add_u32 v%d, v%d, 3, v%d" % (V_ET[2], V_ET[3], V_ET[2]))
        for t in range(4):
            e("v_xor_b32 v%d, %d, v%d" % (V_ET[3], t, r_))
            e("v_lshl_add_u32 v%d, v%d, 6, v%d" % (V_VW[t], V_ET[3], V_ET[2]))
        key = V_ET[0]
        e("v_and_b32 v%d, 0x13, v%d" % (key, L))
        e("v_bfe_u32 v%d, v%d, 2, 1" % (V_ET[1], L))
        e("v_lshl_add_u32 v%d, v%d, 3, v%d" % (key, V_ET[1], key))
        e("v_bfe_u32 v%d, v%d, 3, 1" % (V_ET[1], L))
        e("v_lshl_add_u32 v%d, v%d, 2, v%d" % (key, V_ET[1], key))
        e("v_and_b32 v%d, 15, v%d" % (V_ET[1], key))
        e("v_xor_b32 v%d, v%d, v%d" % (V_ET[1], V_ET[1], HH))
        for s in range(8):
            e("v_xor_b32 v%d, %d, v%d" % (V_ET[2], 2 * s, V_ET[1]))
            e("v_lshlrev_b32 v%d, 4, v%d" % (V_ET[2], V_ET[2]))
            e("v_lshl_add_u32 v%d, v%d, 8, v%d" % (V_KA[s], key, V_ET[2]))
        e("v_and_b32 v%d, 0xff, v0" % V_L[0])
        e("v_lshlrev_b32 v%d, 7, v%d" % (V_L[0], V_L[0]))
        e("s_cmp_eq_u32 s%d, 0" % S_CLS)
        e("s_cselect_b32 s%d, s%d, s%d" % (S_TCH, S_K, S_V))
        e("s_cselect_b32 s%d, s%d, s%d" % (S_TCH + 1, S_K + 1, S_V + 1))
        e("s_mov_b32 s%d, s%d" % (S_TCH + 2, S_K + 2))
        e("s_mov_b32 s%d, 0x00020000" % (S_TCH + 3))
        need = []
        for c in self.steps[0]:
            need += self.dma_tags(c)
        a.wait(vm=need)
        a.emit("s_barrier")
        self.stamp()

    def gen(self):
        a = self.a
        self.frags = self.build_frags()
        for cls in (0, 1):
            a.new_trace(cls)
            self.prologue()
            self.body()
        a.trace = False
        a.reset_sites(0)
        self.prologue()
        self.body()
        if self.stamps:
            self.stamp()
            a.emit("v_subrev_u32 v%d, s90, v%d" % (V_STMP2, V_STMP2))
            a.emit("s_memrealtime s[60:61]")
            a.emit("s_waitcnt lgkmcnt(0)")
            a.emit("s_sub_u32 s60, s60, s92")
            a.emit("v_mov_b32 v%d, s60" % V_T1)
            a.emit("v_cmp_eq_u32 vcc, s62, v0")
            a.emit("s_nop 1")
            a.emit("v_cndmask_b32 v%d, v%d, v%d, vcc" % (V_STMP2, V_STMP2, V_T1))
            a.emit("s_add_u32 s62, s62, 1")
            a.emit("v_mov_b32 v%d, s92" % V_T1)
            a.emit("v_cmp_eq_u32 vcc, s62, v0")
            a.emit("s_nop 1")
            a.emit("v_cndmask_b32 v%d, v%d, v%d, vcc" % (V_STMP2, V_STMP2, V_T1))
            a.emit("v_lshlrev_b32 v%d, 2, v0" % V_T1)
            a.emit("s_lshl_b32 s60, s2, 11")
            a.emit("s_add_u32 s60, s60, %d" % (64 << 20))
            a.emit("s_mov_b32 s%d, 0x10000000" % (S_WS + 2))
            a.emit("buffer_store_dword v%d, v%d, s[%d:%d], s60 offen" % (V_STMP2, V_T1, S_WS, S_WS + 3))
        a.label("L_end")
        a.emit("s_endpgm")
        for g in range(32):
            if g % 16 != 0:
                self.slow_path(g)

V_STMP2 = 11
```

```python
from asmlib import Asm
import os
EXP = os.environ.get('EXP', '')

NSH = 5
SLOT2 = 16384
RINGH = NSH * SLOT2
LA2 = 5
NFR2 = 8
NB = int(os.environ.get('NB', '16'))
PART = 96 << 20
WOT = 32 << 20
NOWOT = os.environ.get('K2V', 'v3nowot') == 'v3nowot'

V_T1 = 1
V_BOFF = 2
V_DMA = 3
V_AA = [4, 5, 6, 7]
V_ST = 8
V_RED = 9
V_TMP = [10, 11, 240, 241, 242]
V_FR = 12
V_ACC = 44
V_B = 108
V_OUT = 236 - 64

S_WO, S_WS, S_OUT, S_WSB, S_DBG = 4, 8, 12, 32, 36
S_T = [16, 17, 18, 19, 20, 21]
S_PSL, S_PSW, S_WVL = 22, 23, 24
S_GOFF = 25
S_BOFF = 26
S_CNT = 27
S_CSL = 28
S_DELTA = 29
S_HB = 30
S_HALF = 31
S_TILE = 40
S_KH = 41
S_PB = 42

def vr(b, n):
    return "v[%d:%d]" % (b, b + n - 1)

class K2:
    def __init__(self, a):
        self.a = a

    def dma_ops(self, ci):
        a = self.a
        ops = []
        for i in range(4):
            def op(i=i):
                a.emit("s_add_u32 m0, s%d, %d" % (S_PSW, i * 4096))
                a.emit("s_add_u32 s%d, s%d, %d" % (S_T[0], S_GOFF, i * (16384 if NOWOT else 4096)))
                if 'nodma' in EXP:
                    a.vmem("s_nop 0", ('dma', ci, i))
                else:
                  a.vmem("buffer_load_dwordx4 v%d, s[%d:%d], s%d offen%s lds" % (V_DMA, S_WO, S_WO + 3, S_T[0], " nt" if 'ntd' in EXP else ""), ('dma', ci, i))
                if i == 3:
                    a.emit("s_add_u32 s%d, s%d, %d" % (S_GOFF, S_GOFF, 65536 if NOWOT else 16384))
                    a.emit("s_add_u32 s%d, s%d, %d" % (S_PSL, S_PSL, SLOT2))
                    a.emit("s_cmp_eq_u32 s%d, %d" % (S_PSL, RINGH))
                    a.emit("s_cselect_b32 s%d, 0, s%d" % (S_PSL, S_PSL))
                    a.emit("s_add_u32 s%d, s%d, s%d" % (S_PSW, S_PSL, S_WVL))
            ops.append(op)
        return ops

    def dma_tags(self, ci):
        return [('dma', ci, i) for i in range(4)]

    def b_load(self, s_abs, pre=False):
        a = self.a
        loc = s_abs % NB
        grp = loc // 4
        a.emit("s_add_u32 s%d, s%d, %d" % (S_T[1], S_BOFF, (grp * 4096 - (NB * 1024 if pre else 0)) & 0xffffffff))
        if 'nob' in EXP:
            a.vmem("s_nop 0", ('b', s_abs))
            return
        a.vmem("buffer_load_dwordx4 %s, v%d, s[%d:%d], s%d offen offset:%d" %
               (vr(V_B + loc * 4, 4), V_BOFF, S_WSB, S_WSB + 3, S_T[1], (loc % 4) * 1024) + (" nt" if 'ntb' in EXP else ""), ('b', s_abs))

    def issue_frag(self, f):
        a = self.a
        s = f // 4
        t = f % 4
        ks = s % 4
        r = V_FR + (f % NFR2) * 4
        for e2 in range(2):
            a.ds("ds_read_b64_tr_b16 %s, v%d offset:%d" % (vr(r + 2 * e2, 2), V_AA[t], (16 * ks + 4 * e2) * 256), ('fr', f, e2))

    def slot_adv(self):
        a = self.a
        a.emit("s_mov_b32 s%d, s%d" % (S_DELTA, S_CSL))
        a.emit("s_add_u32 s%d, s%d, %d" % (S_CSL, S_CSL, SLOT2))
        a.emit("s_cmp_eq_u32 s%d, %d" % (S_CSL, RINGH))
        a.emit("s_cselect_b32 s%d, 0, s%d" % (S_CSL, S_CSL))
        a.emit("s_sub_u32 s%d, s%d, s%d" % (S_DELTA, S_CSL, S_DELTA))
        for t in range(4):
            a.emit("v_add_u32 v%d, s%d, v%d" % (V_AA[t], S_DELTA, V_AA[t]))

    def body_all(self):
        a = self.a
        extra = []
        for s2 in range(8, NB):
            extra.append(lambda s2=s2: self.b_load2(s2))
            if s2 == 11:
                extra.extend(self.dma_ops(2))
            if s2 == 15:
                extra.extend(self.dma_ops(3))
        pend = []
        for ci in range(16):
            if ci + 1 < 16:
                a.wait(vm=self.dma_tags(ci + 1))
            a.emit("s_barrier")
            if ci + NSH - 1 < 16 and ci >= 0:
                pend.extend(self.dma_ops(ci + NSH - 1))
            for ks in range(4):
                s = ci * 4 + ks
                for t in range(4):
                    f = 4 * s + t
                    a.wait(vm=[('b', s)] if t == 0 else [], lg=[('fr', f, 1)])
                    acc = V_ACC + t * 16
                    a.emit("v_mfma_f32_32x32x16_bf16 %s, %s, %s, %s" %
                           (vr(acc, 16), vr(V_FR + (f % NFR2) * 4, 4), vr(V_B + (s % NB) * 4, 4), vr(acc, 16)))
                    nf = f + LA2
                    if nf < 256:
                        if nf % 16 == 0:
                            self.slot_adv()
                        self.issue_frag(nf)
                    if extra:
                        extra.pop(0)()
                    elif pend and t in (1, 3):
                        pend.pop(0)()
                if s + NB < 64:
                    self.b_load2(s + NB)

    def b_load2(self, s_abs):
        a = self.a
        loc = s_abs % NB
        if 'nob' in EXP:
            a.vmem("s_nop 0", ('b', s_abs))
            return
        a.emit("s_add_u32 s%d, s%d, %d" % (S_T[1], S_BOFF, (s_abs // 4) * 4096))
        a.vmem("buffer_load_dwordx4 %s, v%d, s[%d:%d], s%d offen offset:%d" %
               (vr(V_B + loc * 4, 4), V_BOFF, S_WSB, S_WSB + 3, S_T[1], (s_abs % 4) * 1024), ('b', s_abs))

    def prologue(self):
        a = self.a
        e = a.emit
        e("s_cmp_ge_u32 s2, 256")
        e("s_cbranch_scc1 L2_end")
        if 'st2' in EXP:
            e("s_memtime s[80:81]")
        e("s_load_dwordx2 s[64:65], s[0:1], 32")
        e("s_load_dwordx2 s[66:67], s[0:1], 72")
        e("s_load_dwordx4 s[68:71], s[0:1], 80")
        e("s_load_dwordx2 s[72:73], s[0:1], 96")
        e("s_and_b32 s%d, s2, 7" % S_T[0])
        e("s_lshr_b32 s%d, s2, 3" % S_T[1])
        e("s_lshr_b32 s%d, s%d, 2" % (S_T[2], S_T[0]))
        if 'oldmap' in EXP:
            e("s_and_b32 s%d, s%d, 3" % (S_T[3], S_T[0]))
            e("s_lshl_b32 s%d, s%d, 2" % (S_T[3], S_T[3]))
            e("s_lshr_b32 s%d, s%d, 3" % (S_T[4], S_T[1]))
            e("s_add_u32 s%d, s%d, s%d" % (S_T[3], S_T[3], S_T[4]))
            e("s_bfe_u32 s%d, s%d, 0x20001" % (S_T[4], S_T[1]))
            e("s_and_b32 s%d, s%d, 1" % (S_KH, S_T[1]))
        else:
            e("s_and_b32 s%d, s%d, 1" % (S_T[3], S_T[0]))
            e("s_lshl_b32 s%d, s%d, 3" % (S_T[3], S_T[3]))
            e("s_lshr_b32 s%d, s%d, 2" % (S_T[4], S_T[1]))
            e("s_add_u32 s%d, s%d, s%d" % (S_T[3], S_T[3], S_T[4]))
            e("s_and_b32 s%d, s%d, 3" % (S_T[4], S_T[1]))
            e("s_bfe_u32 s%d, s%d, 0x10001" % (S_KH, S_T[0]))
        e("s_cmp_ge_u32 s%d, 15" % S_T[3])
        e("s_cbranch_scc1 L2_end")
        e("s_waitcnt lgkmcnt(0)")
        e("s_cmp_eq_u32 s%d, 0" % S_T[2])
        if NOWOT:
            e("s_cselect_b32 s%d, s64, s66" % S_WO)
            e("s_cselect_b32 s%d, s65, s67" % (S_WO + 1))
            e("s_mov_b32 s%d, %d" % (S_WO + 2, 4096 * 512 * 2))
        else:
            e("s_mov_b32 s%d, s72" % S_WO)
            e("s_mov_b32 s%d, s73" % (S_WO + 1))
            e("s_mov_b32 s%d, %d" % (S_WO + 2, WOT + (8 << 20)))
        e("s_mov_b32 s%d, 0x00020000" % (S_WO + 3))
        for r in (S_WS, S_WSB):
            e("s_mov_b32 s%d, s72" % r)
            e("s_mov_b32 s%d, s73" % (r + 1))
            e("s_mov_b32 s%d, %d" % (r + 2, (2 * 60 * 262144) if r == S_WSB else (PART + 120 * 131072)))
            e("s_mov_b32 s%d, 0x00020000" % (r + 3))
        e("s_mov_b32 s%d, s68" % S_OUT)
        e("s_mov_b32 s%d, s69" % (S_OUT + 1))
        e("s_mov_b32 s%d, %d" % (S_OUT + 2, 1920 * 1024 * 2))
        e("s_mov_b32 s%d, 0x00020000" % (S_OUT + 3))
        e("s_mov_b32 s%d, s70" % S_DBG)
        e("s_mov_b32 s%d, s71" % (S_DBG + 1))
        e("s_mov_b32 s%d, 256" % (S_DBG + 2))
        e("s_mov_b32 s%d, 0x00020000" % (S_DBG + 3))
        e("s_mul_i32 s%d, s%d, 15" % (S_TILE, S_T[2]))
        e("s_add_u32 s%d, s%d, s%d" % (S_TILE, S_TILE, S_T[3]))
        e("s_lshl_b32 s%d, s%d, 2" % (S_TILE, S_TILE))
        e("s_add_u32 s%d, s%d, s%d" % (S_TILE, S_TILE, S_T[4]))
        e("v_lshrrev_b32 v%d, 6, v0" % V_T1)
        e("s_nop 0")
        e("v_readfirstlane_b32 s%d, v%d" % (S_T[5], V_T1))
        e("s_lshr_b32 s%d, s%d, 2" % (S_HALF, S_T[5]))
        e("s_and_b32 s%d, s%d, 3" % (S_T[5], S_T[5]))
        e("s_mul_i32 s%d, s%d, %d" % (S_HB, S_HALF, RINGH))
        e("s_lshl_b32 s%d, s%d, 10" % (S_WVL, S_T[5]))
        e("s_add_u32 s%d, s%d, s%d" % (S_WVL, S_WVL, S_HB))
        e("s_mov_b32 s%d, s%d" % (S_PSW, S_WVL))
        e("s_mov_b32 s%d, 0" % S_PSL)
        e("s_mov_b32 s%d, 0" % S_CSL)
        L = V_TMP[0]
        HH = V_TMP[1]
        e("v_and_b32 v%d, 63, v0" % L)
        e("v_lshrrev_b32 v%d, 5, v%d" % (HH, L))
        e("s_lshl_b32 s%d, s%d, 1" % (S_CNT, S_KH))
        e("s_add_u32 s%d, s%d, s%d" % (S_CNT, S_CNT, S_HALF))
        if NOWOT:
            e("s_lshl_b32 s%d, s%d, 20" % (S_GOFF, S_CNT))
            e("s_lshl_b32 s%d, s%d, 8" % (S_T[0], S_T[4]))
            e("s_add_u32 s%d, s%d, s%d" % (S_GOFF, S_GOFF, S_T[0]))
        else:
            e("s_lshl_b32 s%d, s%d, 18" % (S_GOFF, S_CNT))
            e("s_lshl_b32 s%d, s%d, 20" % (S_T[0], S_T[4]))
            e("s_add_u32 s%d, s%d, s%d" % (S_GOFF, S_GOFF, S_T[0]))
            e("s_lshl_b32 s%d, s%d, 22" % (S_T[0], S_T[2]))
            e("s_add_u32 s%d, s%d, s%d" % (S_GOFF, S_GOFF, S_T[0]))
            e("s_add_u32 s%d, s%d, %d" % (S_GOFF, S_GOFF, WOT))
        e("s_lshl_b32 s%d, s%d, 16" % (S_BOFF, S_CNT))
        e("s_mul_i32 s%d, s%d, 60" % (S_CNT, S_T[2]))
        e("s_lshl_b32 s%d, s%d, 2" % (S_T[0], S_T[3]))
        e("s_add_u32 s%d, s%d, s%d" % (S_T[0], S_T[0], S_T[5]))
        e("s_add_u32 s%d, s%d, s%d" % (S_CNT, S_CNT, S_T[0]))
        e("s_lshl_b32 s%d, s%d, 18" % (S_CNT, S_CNT))
        e("s_add_u32 s%d, s%d, s%d" % (S_BOFF, S_BOFF, S_CNT))
        e("v_lshlrev_b32 v%d, 4, v%d" % (V_BOFF, L))
        e("s_lshl_b32 s%d, s%d, 5" % (S_T[0], S_T[0]))
        e("v_and_b32 v%d, 31, v%d" % (V_T1, L))
        e("v_add_u32 v%d, s%d, v%d" % (V_T1, S_T[0], V_T1))
        e("v_lshlrev_b32 v%d, 11, v%d" % (V_ST, V_T1))
        e("v_lshl_add_u32 v%d, v%d, 4, v%d" % (V_ST, HH, V_ST))
        e("s_lshl_b32 s%d, s%d, 10" % (S_T[0], S_T[2]))
        e("s_lshl_b32 s%d, s%d, 8" % (S_T[1], S_T[4]))
        e("s_add_u32 s%d, s%d, s%d" % (S_T[0], S_T[0], S_T[1]))
        e("v_add_u32 v%d, s%d, v%d" % (V_ST, S_T[0], V_ST))
        e("v_lshrrev_b32 v%d, 4, v%d" % (V_TMP[2], L))
        e("v_lshlrev_b32 v%d, 2, v%d" % (V_TMP[3], V_TMP[2]))
        e("v_and_b32 v%d, 15, v%d" % (V_TMP[4], L))
        e("v_xor_b32 v%d, v%d, v%d" % (V_TMP[3], V_TMP[3], V_TMP[4]))
        e("v_lshlrev_b32 v%d, 4, v%d" % (V_TMP[3], V_TMP[3]))
        e("s_lshl_b32 s%d, s%d, 2" % (S_T[0], S_T[5]))
        e("v_add_u32 v%d, s%d, v%d" % (V_TMP[2], S_T[0], V_TMP[2]))
        if NOWOT:
            e("v_lshl_add_u32 v%d, v%d, 10, v%d" % (V_DMA, V_TMP[2], V_TMP[3]))
        else:
            e("v_lshlrev_b32 v%d, 4, v%d" % (V_DMA, L))
            e("s_lshl_b32 s%d, s%d, 10" % (S_T[0], S_T[5]))
            e("v_add_u32 v%d, s%d, v%d" % (V_DMA, S_T[0], V_DMA))
        e("s_lshl_b32 s%d, s%d, 17" % (S_PB, S_TILE))
        e("s_add_u32 s%d, s%d, %d" % (S_PB, S_PB, PART))
        e("s_lshl_b32 s%d, s%d, 14" % (S_T[0], S_T[5]))
        e("v_lshlrev_b32 v%d, 4, v%d" % (V_RED, L))
        e("v_add_u32 v%d, s%d, v%d" % (V_RED, S_T[0], V_RED))
        for op in self.dma_ops(0):
            op()
        for s in range(4):
            self.b_load2(s)
        for op in self.dma_ops(1):
            op()
        r_, t2, t3 = V_TMP[2], V_TMP[3], V_TMP[4]
        e("v_bfe_u32 v%d, v%d, 2, 2" % (r_, L))
        e("v_lshl_add_u32 v%d, v%d, 3, v%d" % (t2, HH, r_))
        e("v_lshlrev_b32 v%d, 8, v%d" % (t2, t2))
        e("v_bfe_u32 v%d, v%d, 4, 1" % (t3, L))
        e("v_lshl_add_u32 v%d, v%d, 5, v%d" % (t2, t3, t2))
        e("v_and_b32 v%d, 1, v%d" % (t3, L))
        e("v_lshl_add_u32 v%d, v%d, 4, v%d" % (t2, t3, t2))
        e("v_bfe_u32 v%d, v%d, 1, 1" % (t3, L))
        e("v_lshl_add_u32 v%d, v%d, 3, v%d" % (t2, t3, t2))
        e("v_add_u32 v%d, s%d, v%d" % (t2, S_HB, t2))
        for t in range(4):
            e("v_xor_b32 v%d, %d, v%d" % (t3, t, r_))
            e("v_lshl_add_u32 v%d, v%d, 6, v%d" % (V_AA[t], t3, t2))
        for i in range(64):
            e("v_mov_b32 v%d, 0" % (V_ACC + i))
        for s in range(4, 8):
            self.b_load2(s)
        a.wait(vm=self.dma_tags(0))
        e("s_barrier")
        if 'st2' in EXP:
            e("s_memtime s[82:83]")
            e("s_waitcnt lgkmcnt(0)")
        for f in range(LA2):
            self.issue_frag(f)
        e("s_mov_b32 s%d, 0" % S_CNT)

    def epilogue(self):
        a = self.a
        e = a.emit
        e("s_nop 15")
        e("s_nop 3")
        e("s_waitcnt vmcnt(0) lgkmcnt(0)")
        e("s_barrier")
        if 'st2' in EXP:
            e("s_memtime s[84:85]")
            e("s_waitcnt lgkmcnt(0)")
        e("s_cmp_eq_u32 s%d, 0" % S_HALF)
        e("s_cbranch_scc1 L2_h0")
        for i in range(8):
            e("ds_write_b128 v%d, %s offset:%d" % (V_RED, vr(V_ACC + 4 * i, 4), 8192 + i * 1024))
        e("s_waitcnt lgkmcnt(0)")
        e("s_barrier")
        for i in range(8):
            e("ds_read_b128 %s, v%d offset:%d" % (vr(V_B + 4 * i, 4), V_RED, i * 1024))
        e("s_waitcnt lgkmcnt(0)")
        for i in range(32):
            e("v_add_f32 v%d, v%d, v%d" % (V_ACC + i, V_ACC + 32 + i, V_B + i))
        e("s_branch L2_j")
        a.label("L2_h0")
        for i in range(8):
            e("ds_write_b128 v%d, %s offset:%d" % (V_RED, vr(V_ACC + 32 + 4 * i, 4), i * 1024))
        e("s_waitcnt lgkmcnt(0)")
        e("s_barrier")
        for i in range(8):
            e("ds_read_b128 %s, v%d offset:%d" % (vr(V_B + 4 * i, 4), V_RED, 8192 + i * 1024))
        e("s_waitcnt lgkmcnt(0)")
        for i in range(32):
            e("v_add_f32 v%d, v%d, v%d" % (V_ACC + i, V_ACC + i, V_B + i))
        a.label("L2_j")
        e("s_lshl_b32 s%d, s%d, 13" % (S_T[2], S_HALF))
        e("s_add_u32 s%d, s%d, s%d" % (S_PB, S_PB, S_T[2]))
        e("s_lshl_b32 s%d, s%d, 16" % (S_T[0], S_KH))
        e("s_add_u32 s%d, s%d, s%d" % (S_T[0], S_T[0], S_PB))
        for g in range(2):
            e("s_add_u32 s%d, s%d, %d" % (S_T[1], S_T[0], g * 4096))
            for i in range(4):
                e("buffer_store_dwordx4 %s, v%d, s[%d:%d], s%d offen offset:%d sc1" %
                  (vr(V_ACC + 16 * g + 4 * i, 4), V_RED, S_WS, S_WS + 3, S_T[1], i * 1024))
        e("s_waitcnt vmcnt(0)")
        e("s_barrier")
        e("s_cmp_eq_u32 s%d, 0" % S_WVL)
        e("s_cbranch_scc0 L2_noat")
        e("s_lshr_b32 s%d, s%d, 1" % (S_T[0], S_TILE))
        e("s_lshl_b32 s%d, s%d, 2" % (S_T[0], S_T[0]))
        e("s_and_b32 s%d, s%d, 1" % (S_T[1], S_TILE))
        e("s_lshl_b32 s%d, s%d, 4" % (S_T[1], S_T[1]))
        e("s_lshl_b32 s%d, 1, s%d" % (S_T[2], S_T[1]))
        e("v_mov_b32 v%d, s%d" % (V_TMP[2], S_T[2]))
        e("v_mov_b32 v%d, s%d" % (V_TMP[3], S_T[0]))
        e("s_mov_b64 s[44:45], exec")
        e("s_mov_b64 exec, 1")
        e("buffer_atomic_add v%d, v%d, s[%d:%d], 0 offen sc0 sc1" % (V_TMP[2], V_TMP[3], S_DBG, S_DBG + 3))
        e("s_waitcnt vmcnt(0)")
        e("v_lshrrev_b32 v%d, s%d, v%d" % (V_TMP[2], S_T[1], V_TMP[2]))
        e("v_and_b32 v%d, 0xffff, v%d" % (V_TMP[2], V_TMP[2]))
        e("v_mov_b32 v%d, 65536" % V_TMP[3])
        e("ds_write_b32 v%d, v%d" % (V_TMP[3], V_TMP[2]))
        e("s_waitcnt lgkmcnt(0)")
        e("s_mov_b64 exec, s[44:45]")
        a.label("L2_noat")
        e("s_barrier")
        e("v_mov_b32 v%d, 65536" % V_TMP[3])
        e("ds_read_b32 v%d, v%d" % (V_TMP[2], V_TMP[3]))
        e("s_waitcnt lgkmcnt(0)")
        e("v_readfirstlane_b32 s%d, v%d" % (S_T[0], V_TMP[2]))
        e("s_and_b32 s%d, s%d, 1" % (S_T[0], S_T[0]))
        e("s_cmp_eq_u32 s%d, 0" % S_T[0])
        e("s_cbranch_scc1 L2_end")
        e("s_xor_b32 s%d, s%d, 1" % (S_T[0], S_KH))
        e("s_lshl_b32 s%d, s%d, 16" % (S_T[0], S_T[0]))
        e("s_add_u32 s%d, s%d, s%d" % (S_T[0], S_T[0], S_PB))
        for g in range(2):
            e("s_add_u32 s%d, s%d, %d" % (S_T[1], S_T[0], g * 4096))
            for i in range(4):
                e("buffer_load_dwordx4 %s, v%d, s[%d:%d], s%d offen offset:%d sc1" %
                  (vr(V_B + 16 * g + 4 * i, 4), V_RED, S_WS, S_WS + 3, S_T[1], i * 1024))
        e("s_lshl_b32 s%d, s%d, 7" % (S_T[2], S_HALF))
        for t in range(2):
            e("s_waitcnt vmcnt(%d)" % (4 - 4 * t + 2 * t))
            for i in range(16):
                e("v_add_f32 v%d, v%d, v%d" % (V_ACC + 16 * t + i, V_ACC + 16 * t + i, V_B + 16 * t + i))
            for i in range(0, 16, 2):
                e("v_cvt_pk_bf16_f32 v%d, v%d, v%d" % (V_OUT + t * 8 + i // 2, V_ACC + t * 16 + i, V_ACC + t * 16 + i + 1))
            for G in range(2):
                e("buffer_store_dwordx4 %s, v%d, s[%d:%d], s%d offen offset:%d" %
                  (vr(V_OUT + t * 8 + 4 * G, 4), V_ST, S_OUT, S_OUT + 3, S_T[2], t * 64 + G * 32) + (" nt" if 'nto' in EXP else ""))

    def gen(self):
        a = self.a
        a.new_trace(0)
        self.prologue()
        self.body_all()
        a.trace = False
        a.reset_sites(0)
        self.prologue()
        self.body_all()
        self.epilogue()
        a.label("L2_end")
        if 'st2' in EXP:
            e = a.emit
            e("s_cmp_ge_u32 s2, 256")
            e("s_cbranch_scc1 L2_end2")
            e("s_waitcnt vmcnt(0)")
            e("s_memtime s[86:87]")
            e("s_waitcnt lgkmcnt(0)")
            e("s_sub_u32 s82, s82, s80")
            e("s_sub_u32 s84, s84, s80")
            e("s_sub_u32 s86, s86, s80")
            e("v_mov_b32 v20, s82")
            e("v_mov_b32 v21, s84")
            e("v_mov_b32 v22, s86")
            e("v_mov_b32 v23, 0")
            e("v_lshrrev_b32 v24, 6, v0")
            e("v_lshlrev_b32 v24, 4, v24")
            e("s_lshl_b32 s80, s2, 7")
            e("s_add_u32 s80, s80, %d" % (64 << 20))
            e("s_load_dwordx2 s[8:9], s[0:1], 96")
            e("s_mov_b32 s10, 0x10000000")
            e("s_mov_b32 s11, 0x00020000")
            e("s_waitcnt lgkmcnt(0)")
            e("buffer_store_dwordx4 v[20:23], v24, s[8:11], s80 offen")
            a.label("L2_end2")
        a.emit("s_endpgm")
```

```python
from asmlib import Asm
import math, struct, os
EXP = os.environ.get('EXP', '')

SLOT = 16384
NSLOT = 10
XSCR = 8 * SLOT
LA = int(os.environ.get('LA', '5'))
NFR = 7
THR = float(os.environ.get('THR', '256.0'))

V_T1 = 1
V_XOFF = 2
V_XW = [3, 4]
V_STOFF = 5
V_DW, V_DV, V_DK = 6, 7, 8
V_L = [9, 12]
V_RC = 10
V_NM = 13
V_TS = [14, 15]
V_ET = [16, 17, 18, 19]
V_VW = [20, 21, 22, 23]
V_KA = [24 + i for i in range(8)]
V_FR = 32
V_XR = [60, 61, 62, 63]
V_THR = 60
V_STMP = 61
V_EP = 62
V_QACC = 64
V_S = [64, 80]
V_P = [96, 104]
V_NEGM = 112
V_Q = 128
A_O = 0
A_XF = 64

S_X, S_W, S_K, S_V, S_WS = 4, 8, 12, 16, 20
S_KVB = [26, 28]
S_WCB = [27, 29]
S_T = [34, 35, 36, 37, 38, 39]
S_SCALE = 40
S_WV1K = 42
S_STB = [43, 44, 45, 46]
S_XSO = [52, 53, 54, 55]
S_CLS = 47
K2V = os.environ.get('K2V', 'v3nowot')
S_TCH = 84
V_TCH = 62
TPOS = int(os.environ.get('TPOS', '12'))
S_WO = 56
S_WOS = 60 - 10
S_WOD = 51
WOT = 32 << 20
V_WOV = 152
STFLAG = os.environ.get('STFLAG', '')
SHIFT = int(os.environ.get('SHIFT', '8'))

def vr(b, n):
    return "v[%d:%d]" % (b, b + n - 1)
def ar(b, n):
    return "a[%d:%d]" % (b, b + n - 1)

class K1:
    def __init__(self, a, stamps=False):
        self.a = a
        self.stamps = stamps
        self.plan()

    def plan(self):
        steps = []
        for j in range(8):
            steps.append([('W', 0, j), ('W', 1, j)])
        for T in range(17):
            st = []
            if T < 16:
                st.append(('K', T // 8, T % 8))
            if T >= 1:
                st.append(('V', (T - 1) // 8, (T - 1) % 8))
            steps.append(st)
        self.steps = steps
        seq = [c for st in steps for c in st]
        self.seq = seq
        cons_step = {}
        for si, st in enumerate(steps):
            for c in st:
                cons_step[c] = si
        self.cons_step = cons_step
        free_at = {s: -1 for s in range(8)}
        free_at[8] = 8
        free_at[9] = 8
        self.slot = {}
        self.issue_step = {}
        for c in seq:
            s = min(free_at, key=lambda k: (free_at[k], k))
            self.slot[c] = s
            self.issue_step[c] = free_at[s]
            free_at[s] = cons_step[c] + 1
            assert self.issue_step[c] <= cons_step[c] - 2 or self.issue_step[c] == -1, (c, self.issue_step[c], cons_step[c])
        self.issue_at = {}
        for c in seq:
            self.issue_at.setdefault(self.issue_step[c], []).append(c)

    def stamp(self):
        if not self.stamps:
            return
        a = self.a
        a.emit("s_memtime s[60:61]")
        a.emit("s_waitcnt lgkmcnt(0)")
        a.emit("v_mov_b32 v%d, s60" % V_T1)
        a.emit("v_cmp_eq_u32 vcc, s62, v0")
        a.emit("s_nop 1")
        a.emit("v_cndmask_b32 v%d, v%d, v%d, vcc" % (V_STMP2, V_STMP2, V_T1))
        a.emit("s_add_u32 s62, s62, 1")

    def dma_ops(self, c):
        a = self.a
        kind, u, j = c
        ops = []
        for i in range(2):
            def op(i=i):
                if kind == 'W':
                    srd, base, goff, vo = S_W, S_WCB[u], j * 524288 + i * 262144, V_DW
                elif kind == 'K':
                    srd, base, goff, vo = S_K, S_KVB[u], j * 16384 + i * 8192, V_DK
                else:
                    srd, base, goff, vo = S_V, S_KVB[u], j * 16384 + i * 8192, V_DV
                a.emit("s_add_u32 m0, s%d, %d" % (S_WV1K, self.slot[c] * SLOT + i * 8192))
                a.emit("s_add_u32 s%d, s%d, %d" % (S_T[0], base, goff))
                fl = " nt" if (kind != 'W' or 'ntw' in EXP) else ""
                a.vmem("buffer_load_dwordx4 v%d, s[%d:%d], s%d offen%s lds" % (vo, srd, srd + 3, S_T[0], fl), ('dma', c, i))
            ops.append((op, 4))
        return ops

    def dma_tags(self, c):
        return [('dma', c, i) for i in range(2)]

    def addr_update(self, c):
        a = self.a
        kind = c[0]
        key = 'K' if kind == 'K' else 'VW'
        new = self.slot[c] * SLOT
        d = new - self.cur_base[key]
        self.cur_base[key] = new
        if d == 0:
            return
        for r in (V_KA if kind == 'K' else V_VW):
            a.emit("v_add_u32 v%d, 0x%x, v%d" % (r, d & 0xffffffff, r))

    def xraw_reg(self, j, i):
        return vr(V_Q + (j % 2) * 16 + i * 4, 4)

    def x_raw_load(self, j, i):
        a = self.a
        a.vmem("buffer_load_dwordx4 %s, v%d, s[%d:%d], s%d offen offset:%d" %
               (self.xraw_reg(j, i), V_XOFF, S_X, S_X + 3, S_XSO[i], j * 128) + (" nt" if 'ntx' in EXP else ""), ('xr', j, i))

    def x_write(self, j, i):
        a = self.a
        if 'noxvm' not in EXP:
            a.wait(vm=[('xr', j, i)])
        if 'noxw' in EXP:
            return
        a.ds("ds_write_b128 v%d, %s offset:%d" % (V_XW[i % 2], self.xraw_reg(j, i), i * 1024), ('xw', j, i))

    def x_read(self, j, ks):
        a = self.a
        if 'noxr' in EXP and j > 0:
            a.lgi[('xf', j, ks)] = a.lgi.get(('xf', 0, 0), 0)
            return
        a.ds("ds_read_b128 %s, v%d" % (ar(A_XF + (j % 2) * 16 + ks * 4, 4), V_XR[ks]), ('xf', j, ks))

    def build_frags(self):
        fr = []
        for j in range(8):
            for ks in range(4):
                for u in range(2):
                    for t in range(4):
                        fr.append(('W', u, j, ks, t))
        def ktile(g):
            for s in range(8):
                fr.append(('K', g, s))
        def vtile(g):
            for dt in range(4):
                for ks in range(2):
                    fr.append(('V', g, dt, ks))
        self.order = []
        ktile(0)
        ktile(1)
        for g in range(1, 31):
            if g == 16:
                vtile(15)
                ktile(17)
            else:
                ktile(g + 1)
                vtile(g - 1)
        vtile(30)
        vtile(31)
        return fr

    def frag_reg(self, f):
        return V_FR + (f % NFR) * 4

    def frag_chunk(self, f):
        d = self.frags[f]
        if d[0] == 'W':
            return ('W', d[1], d[2])
        g = d[1]
        return (d[0], g // 16, (g % 16) // 2)

    def issue_frag(self, f):
        a = self.a
        d = self.frags[f]
        r = self.frag_reg(f)
        c = self.frag_chunk(f)
        if d[0] == 'W':
            _, u, j, ks, t = d
            base = self.slot[c] * SLOT - self.cur_base['VW']
            off = base + (16 * ks) * 256
            if off < 0 or off + 1024 + 8 > 65535:
                self.addr_update(c)
                off = (16 * ks) * 256
            for e2 in range(2):
                a.ds("ds_read_b64_tr_b16 %s, v%d offset:%d" % (vr(r + 2 * e2, 2), V_VW[t], off + 1024 * e2), ('fr', f, e2))
        elif d[0] == 'V':
            _, g, dt, ks = d
            base = self.slot[c] * SLOT - self.cur_base['VW']
            off = base + (32 * (g & 1) + 16 * ks) * 256
            if off < 0 or off + 1024 + 8 > 65535:
                self.addr_update(c)
                off = (32 * (g & 1) + 16 * ks) * 256
            for e2 in range(2):
                a.ds("ds_read_b64_tr_b16 %s, v%d offset:%d" % (vr(r + 2 * e2, 2), V_VW[dt], off + 1024 * e2), ('fr', f, e2))
        else:
            _, g, s = d
            base = self.slot[c] * SLOT - self.cur_base['K']
            off = base + (g & 1) * 8192
            if off < 0 or off + 16 > 65535:
                self.addr_update(c)
                off = (g & 1) * 8192
            a.ds("ds_read_b128 %s, v%d offset:%d" % (vr(r, 4), V_KA[s], off), ('fr', f, 1))

    def softmax_ops(self, g):
        a = self.a
        cb = g & 1
        ops = []
        def E(p):
            ta, tb = V_ET[2 * (p & 1)], V_ET[2 * (p & 1) + 1]
            s0 = V_S[cb] + 2 * p
            ops.append((lambda: a.emit("v_exp_f32 v%d, v%d" % (ta, s0)), 8))
            ops.append((lambda: a.emit("v_exp_f32 v%d, v%d" % (tb, s0 + 1)), 8))
        def R(p):
            ta, tb = V_ET[2 * (p & 1)], V_ET[2 * (p & 1) + 1]
            if p == 0:
                ops.append((lambda: a.emit("v_mov_b32 v%d, v%d" % (V_TS[0], ta)), 4))
                ops.append((lambda: a.emit("v_mov_b32 v%d, v%d" % (V_TS[1], tb)), 4))
            else:
                ops.append((lambda: a.emit("v_add_f32 v%d, v%d, v%d" % (V_TS[0], V_TS[0], ta)), 4))
                ops.append((lambda: a.emit("v_add_f32 v%d, v%d, v%d" % (V_TS[1], V_TS[1], tb)), 4))
            pr = V_P[cb] + p
            ops.append((lambda: a.emit("v_cvt_pk_bf16_f32 v%d, v%d, v%d" % (pr, ta, tb)), 4))
        E(0)
        for p in range(1, 8):
            E(p)
            R(p - 1)
        ops.append((lambda: a.emit("s_nop 0"), 4))
        R(7)
        ops.append((lambda: a.emit("v_add_f32 v%d, v%d, v%d" % (V_TS[0], V_TS[0], V_TS[1])), 4))
        return ops

    def check_ops(self, g):
        a = self.a
        u = g // 16
        if g % 16 == 0:
            a.emit("v_mov_b32 v%d, v%d" % (V_L[u], V_TS[0]))
            return
        a.emit("v_cmp_nle_f32 vcc, v%d, v%d" % (V_TS[0], V_THR))
        a.emit("s_cbranch_vccnz L_slow%d" % g)
        a.label("L_back%d" % g)
        a.emit("v_add_f32 v%d, v%d, v%d" % (V_L[u], V_L[u], V_TS[0]))

    def rowmax_ops(self, s, T0, T1):
        a = self.a
        ops = []
        ops.append((lambda: a.emit("v_max3_f32 v%d, v%d, v%d, v%d" % (T0, s, s + 1, s + 2)), 4))
        for i in range(3, 15, 2):
            ops.append((lambda i=i: a.emit("v_max3_f32 v%d, v%d, v%d, v%d" % (T0, T0, s + i, s + i + 1)), 4))
        ops.append((lambda: a.emit("v_max_f32 v%d, v%d, v%d" % (T0, T0, s + 15)), 4))
        def sw():
            a.emit("v_mov_b32 v%d, v%d" % (T1, T0))
            a.emit("s_nop 1")
            a.emit("v_permlane32_swap_b32 v%d, v%d" % (T0, T1))
            a.emit("s_nop 1")
        ops.append((sw, 16))
        return ops

    def init_ops(self, g):
        a = self.a
        s = V_S[g & 1]
        T0, T1 = V_ET[0], V_ET[1]
        ops = self.rowmax_ops(s, T0, T1)
        ops.append((lambda: a.emit("v_max_f32 v%d, v%d, v%d" % (T0, T0, T1)), 4))
        ops.append((lambda: a.emit("v_sub_f32 v%d, 0, v%d" % (V_NM, T0)), 4))
        for i in range(16):
            ops.append((lambda i=i: a.emit("v_mov_b32 v%d, v%d" % (V_NEGM + i, V_NM)), 4))
        for i in range(16):
            ops.append((lambda i=i: a.emit("v_add_f32 v%d, v%d, v%d" % (s + i, s + i, V_NM)), 4))
        return ops

    def slow_path(self, g):
        a = self.a
        u = g // 16
        cb = g & 1
        nb = cb ^ 1
        a.label("L_slow%d" % g)
        a.emit("s_nop 15")
        a.emit("s_nop 15")
        T0, T1 = V_ET[0], V_ET[1]
        s = V_S[cb]
        for op, c in self.rowmax_ops(s, T0, T1):
            op()
        a.emit("v_max3_f32 v%d, v%d, v%d, 0" % (T0, T0, T1))
        a.emit("v_exp_f32 v%d, -v%d" % (T1, T0))
        a.emit("s_nop 1")
        if g % 16 != 15:
            a.emit("v_sub_f32 v%d, v%d, v%d" % (V_NM, V_NM, T0))
            for i in range(16):
                a.emit("v_mov_b32 v%d, v%d" % (V_NEGM + i, V_NM))
            for i in range(16):
                r = V_S[nb] + i
                a.emit("v_sub_f32 v%d, v%d, v%d" % (r, r, T0))
        a.emit("v_mul_f32 v%d, v%d, v%d" % (V_L[u], V_L[u], T1))
        for i in range(64):
            r = A_O + i
            a.emit("v_accvgpr_read_b32 v%d, a%d" % (V_ET[2], r))
            a.emit("v_mul_f32 v%d, v%d, v%d" % (V_ET[3], V_ET[2], T1))
            a.emit("v_accvgpr_write_b32 a%d, v%d" % (r, V_ET[3]))
        a.emit("v_mov_b32 v%d, 0" % V_TS[0])
        for p in range(8):
            a.emit("v_sub_f32 v%d, v%d, v%d" % (V_ET[2], s + 2 * p, T0))
            a.emit("v_sub_f32 v%d, v%d, v%d" % (V_ET[3], s + 2 * p + 1, T0))
            a.emit("v_exp_f32 v%d, v%d" % (V_ET[2], V_ET[2]))
            a.emit("v_exp_f32 v%d, v%d" % (V_ET[3], V_ET[3]))
            a.emit("s_nop 0")
            a.emit("v_add_f32 v%d, v%d, v%d" % (V_TS[0], V_TS[0], V_ET[2]))
            a.emit("v_add_f32 v%d, v%d, v%d" % (V_TS[0], V_TS[0], V_ET[3]))
            a.emit("v_cvt_pk_bf16_f32 v%d, v%d, v%d" % (V_P[cb] + p, V_ET[2], V_ET[3]))
        a.emit("s_nop 3")
        a.emit("s_branch L_back%d" % g)

    def touch(self, e):
        if 'touch' not in EXP:
            return
        a = self.a
        a.emit("s_add_u32 s%d, s%d, %d" % (S_T[0], S_KVB[e // 4], (e % 4) * 32768))
        a.vmem("buffer_load_dword v%d, v%d, s[%d:%d], s%d offen nt" % (V_T1, V_L[0] if e < 4 else V_TCH, S_TCH, S_TCH + 3, S_T[0]), None)

    def wo_ld(self, k):
        a = self.a
        if K2V == 'v3nowot':
            return
        if k == 0 and K2V == 'v3':
            a.emit("v_and_b32 v%d, 0xff, v%d" % (V_TS[0], V_DV))
            a.emit("v_lshrrev_b32 v%d, 8, v%d" % (V_TS[1], V_DV))
            a.emit("v_lshl_add_u32 v%d, v%d, 10, v%d" % (V_TS[0], V_TS[1], V_TS[0]))
            a.emit("v_lshlrev_b32 v%d, 4, v0" % V_TS[1])
        if k == 0 and K2V == 'v1':
            a.emit("v_lshrrev_b32 v%d, 3, v0" % V_TS[0])
            a.emit("v_lshlrev_b32 v%d, 10, v%d" % (V_TS[0], V_TS[0]))
            a.emit("v_bfe_u32 v%d, v0, 4, 1" % V_TS[1])
            a.emit("v_lshlrev_b32 v%d, 2, v%d" % (V_TS[1], V_TS[1]))
            a.emit("v_xor_b32 v%d, v0, v%d" % (V_TS[1], V_TS[1]))
            a.emit("v_and_b32 v%d, 7, v%d" % (V_TS[1], V_TS[1]))
            a.emit("v_lshl_add_u32 v%d, v%d, 4, v%d" % (V_TS[0], V_TS[1], V_TS[0]))
            a.emit("v_lshlrev_b32 v%d, 4, v0" % V_TS[1])
        a.emit("s_add_u32 s%d, s%d, %d" % (S_T[0], S_WOS, k * (65536 if K2V == 'v1' else 32768)))
        a.vmem("buffer_load_dwordx4 %s, v%d, s[%d:%d], s%d offen" % (vr(V_ET[0], 4), V_TS[0], S_WO, S_WO + 3, S_T[0]) + (" nt" if 'ntwo' in EXP else ""), ('wo', k))

    def wo_st(self, k):
        a = self.a
        if K2V == 'v3nowot':
            return
        a.wait(vm=[('wo', k)])
        a.emit("s_add_u32 s%d, s%d, %d" % (S_T[0], S_WOD, k * 8192))
        a.vmem("buffer_store_dwordx4 %s, v%d, s[%d:%d], s%d offen" % (vr(V_ET[0], 4), V_TS[1], S_WS, S_WS + 3, S_T[0]) + STFLAG, None)

    def epilogue_ops(self, u, tmp):
        a = self.a
        ops = []
        T0, T1 = V_RC, 63
        def pre():
            a.emit("v_mov_b32 v%d, v%d" % (T0, V_L[u]))
            a.emit("v_mov_b32 v%d, v%d" % (T1, V_L[u]))
            a.emit("s_nop 1")
            a.emit("v_permlane32_swap_b32 v%d, v%d" % (T0, T1))
            a.emit("s_nop 1")
            a.emit("v_add_f32 v%d, v%d, v%d" % (T0, T0, T1))
            a.emit("v_rcp_f32 v%d, v%d" % (T0, T0))
            a.emit("s_nop 0")
        ops.append((pre, 30))
        if tmp is None:
            t0, t1 = 61, 62
            self.deferred_stores = []
            for dt in range(4):
                for G in range(2):
                    kq = 2 * dt + G
                    o = A_O + dt * 16 + 8 * G
                    for i in range(0, 8, 2):
                        def pk(o=o, i=i, kq=kq):
                            a.emit("v_accvgpr_read_b32 v%d, a%d" % (t0, o + i))
                            a.emit("v_accvgpr_read_b32 v%d, a%d" % (t1, o + i + 1))
                            a.emit("v_mul_f32 v%d, v%d, v%d" % (t0, t0, T0))
                            a.emit("v_mul_f32 v%d, v%d, v%d" % (t1, t1, T0))
                            a.emit("v_cvt_pk_bf16_f32 v%d, v%d, v%d" % (V_Q + 4 * kq + i // 2, t0, t1))
                        ops.append((pk, 20))
                    so = S_STB[u * 2 + (kq // 4)]
                    self.deferred_stores.append(lambda so=so, kq=kq: a.vmem(
                        "buffer_store_dwordx4 %s, v%d, s[%d:%d], s%d offen offset:%d%s" %
                        (vr(V_Q + 4 * kq, 4), V_STOFF, S_WS, S_WS + 3, so, (kq % 4) * 1024, STFLAG), None))
            return ops
        k = 0
        for dt in range(4):
            for G in range(2):
                base = tmp[k % len(tmp)]
                k += 1
                o = A_O + dt * 16 + 8 * G
                for i in range(8):
                    ops.append((lambda base=base, i=i, o=o: a.emit("v_accvgpr_read_b32 v%d, a%d" % (base + i, o + i)), 4))
                for i in range(8):
                    ops.append((lambda base=base, i=i: a.emit("v_mul_f32 v%d, v%d, v%d" % (base + i, base + i, T0)), 4))
                for i in range(0, 8, 2):
                    ops.append((lambda base=base, i=i: a.emit("v_cvt_pk_bf16_f32 v%d, v%d, v%d" % (base + 8 + i // 2, base + i, base + i + 1)), 4))
                kq = 2 * dt + G
                so = S_STB[u * 2 + (kq // 4)]
                ops.append((lambda base=base, so=so, kq=kq: a.vmem(
                    "buffer_store_dwordx4 %s, v%d, s[%d:%d], s%d offen offset:%d%s" %
                    (vr(base + 8, 4), V_STOFF, S_WS, S_WS + 3, so, (kq % 4) * 1024, STFLAG), None), 4))
        return ops

    def body(self):
        a = self.a
        frags = self.frags
        self.fpos = 0
        self.fiss = 0
        fillers = []
        timed = {}

        def time_ops(ops, span):
            n = len(ops)
            for cls in range(2):
                for k, (op, c) in enumerate(ops):
                    pos = self.fpos + cls * (span // 2) + 1 + (k * (span // 2 - 1)) // n
                    timed.setdefault(pos, []).append((cls, op))

        def pump(budget):
            while fillers and budget > 0:
                op, c = fillers.pop(0)
                op()
                budget -= c

        def flush():
            while fillers:
                op, c = fillers.pop(0)
                op()

        def issue_upto(n):
            while self.fiss < min(n, len(frags)):
                self.issue_frag(self.fiss)
                self.fiss += 1

        def step_start(si, front=False):
            need = []
            if si + 1 < len(self.steps):
                for c in self.steps[si + 1]:
                    need += self.dma_tags(c)
            if si == 0:
                self.need0 = need
            else:
                if need:
                    a.wait(vm=need)
                a.emit("s_barrier")
            if si in (0, 8, 9, 16, 17, 24) or 'allst' in EXP:
                self.stamp()
            ops = []
            for c in self.issue_at.get(si, []):
                ops.extend(self.dma_ops(c))
            return ops

        def consume(mf, extra_lg=(), per=14):
            f = self.fpos
            a.wait(lg=[('fr', f, 1)] + list(extra_lg))
            mf(self.frag_reg(f))
            issue_upto(f + 1 + LA)
            for cls, fn in timed.pop(f, []):
                if cls is None:
                    fn()
                else:
                    a.cond(cls, fn, S_CLS)
            pump(per)
            self.fpos += 1

        for i in range(4):
            self.x_write(0, i)
        for ks in range(4):
            self.x_read(0, ks)
        for j in range(8):
            dma = step_start(j)
            if j == 0:
                issue_upto(LA)
                dma = self.late_prologue + dma
            mi = 0
            sched = {}
            for cls in range(2):
                sh = cls * SHIFT
                if j + 2 < 8:
                    for i in range(4):
                        sched.setdefault(1 + 2 * i + sh, []).append((cls, lambda i=i: self.x_raw_load(j + 2, i)))
                for k, (op, c) in enumerate(dma):
                    sched.setdefault(min(9 + 2 * k + sh, 31), []).append((cls, op))
                if j + 1 < 8:
                    for i in range(4):
                        sched.setdefault(2 + 4 * i + sh, []).append((cls, lambda i=i: self.x_write(j + 1, i)))
                    for k in range(4):
                        sched.setdefault(17 + k + sh, []).append((cls, lambda k=k: self.x_read(j + 1, k)))
            for ks in range(4):
                for u in range(2):
                    for t in range(4):
                        def m(fr):
                            if u == 0:
                                acc = vr(V_QACC + t * 16, 16)
                            else:
                                acc = ar(A_O + t * 16, 16)
                            c = "0" if (j == 0 and ks == 0) else acc
                            a.emit("v_mfma_f32_32x32x16_bf16 %s, %s, %s, %s" %
                                   (acc, vr(fr, 4), ar(A_XF + (j % 2) * 16 + ks * 4, 4), c))
                        consume(m, [('xf', j, ks)] if (t == 0 and u == 0) else [])
                        for cls, fn in sched.get(mi, []):
                            a.cond(cls, fn, S_CLS)
                        if j == 0 and mi == 22:
                            a.wait(vm=self.need0)
                            a.emit("s_barrier")
                        if mi == TPOS and j % 2 == 1:
                            self.touch(j // 2)
                        if mi == 28 and j % 2 == 0 and j >= 2:
                            self.wo_st((j - 2) // 2)
                        if mi == 30 and j % 2 == 0:
                            self.wo_ld(j // 2)
                        mi += 1
            flush()

        self.wo_st(3)
        a.emit("s_nop 7")
        a.emit("s_nop 7")
        tb = struct.unpack("<I", struct.pack("<f", THR))[0]
        a.emit("v_mov_b32 v%d, 0x%08x" % (V_THR, tb))
        for t in range(4):
            acc = V_QACC + t * 16
            for i in range(0, 16, 2):
                a.emit("v_pk_mul_f32 %s, %s, s[%d:%d]" % (vr(acc + i, 2), vr(acc + i, 2), S_SCALE, S_SCALE + 1))
            for i in range(0, 16, 2):
                q = V_Q + (2 * t + i // 8) * 4 + (i % 8) // 2
                a.emit("v_cvt_pk_bf16_f32 v%d, v%d, v%d" % (q, acc + i, acc + i + 1))
        conv1 = []
        CT = [V_P[1], V_P[1] + 2, V_P[1] + 4, V_P[1] + 6]
        k = 0
        for t in range(4):
            for i in range(0, 16, 2):
                tt = CT[k % 4]
                k += 1
                o = A_O + t * 16 + i
                q = A_XF + (2 * t + i // 8) * 4 + (i % 8) // 2
                def cv(tt=tt, o=o, q=q):
                    a.emit("v_accvgpr_read_b32 v%d, a%d" % (tt, o))
                    a.emit("v_accvgpr_read_b32 v%d, a%d" % (tt + 1, o + 1))
                    a.emit("v_mul_f32 v%d, s%d, v%d" % (tt, S_SCALE, tt))
                    a.emit("v_mul_f32 v%d, s%d, v%d" % (tt + 1, S_SCALE, tt + 1))
                    a.emit("v_cvt_pk_bf16_f32 v%d, v%d, v%d" % (tt, tt, tt + 1))
                    a.emit("v_accvgpr_write_b32 a%d, v%d" % (q, tt))
                conv1.append((cv, 24))

        def A_mfmas(g, per=14):
            nb = g & 1
            u = g // 16
            for s in range(8):
                def m(fr):
                    sreg = V_S[nb]
                    if s == 0:
                        c = "0" if g % 16 == 0 else vr(V_NEGM, 16)
                    else:
                        c = vr(sreg, 16)
                    q = vr(V_Q + s * 4, 4) if u == 0 else ar(A_XF + s * 4, 4)
                    a.emit("v_mfma_f32_32x32x16_bf16 %s, %s, %s, %s" % (vr(sreg, 16), vr(fr, 4), q, c))
                consume(m, per=per)

        def C_mfmas(g, per=14):
            pb = g & 1
            for dt in range(4):
                for ks in range(2):
                    def m(fr):
                        o = A_O + dt * 16
                        c = "0" if (g % 16 == 0 and ks == 0) else ar(o, 16)
                        a.emit("v_mfma_f32_32x32x16_bf16 %s, %s, %s, %s" %
                               (ar(o, 16), vr(fr, 4), vr(V_P[pb] + ks * 4, 4), c))
                    consume(m, per=per)

        time_ops(step_start(8), 16)
        fillers.extend(conv1[:16])
        a.emit("s_nop 1")
        A_mfmas(0, per=24)
        flush()
        a.emit("s_nop 7")
        for op, c in self.init_ops(0):
            op()
        fillers.extend(self.softmax_ops(0))
        fillers.extend(conv1[16:])
        A_mfmas(1, per=40)
        flush()
        self.check_ops(0)
        a.emit("s_nop 7")
        for T in range(1, 16):
            time_ops(step_start(8 + T), 32)
            if T == 13:
                assert max(self.issue_at) <= 20
                def warm():
                    a.emit("v_lshlrev_b32 v%d, 6, v0" % V_T1)
                    a.vmem("buffer_load_dword v%d, v%d, s[%d:%d], s%d offen" % (V_T1, V_T1, S_WO, S_WO + 3, S_WOS), None)
                if K2V == 'v3nowot':
                    timed.setdefault(self.fpos + 1, []).append((None, warm))
                if 'nodefer' not in EXP:
                    for k, st in enumerate(self.deferred_stores):
                        timed.setdefault(self.fpos + 4 + 3 * k, []).append((None, st))
            if T in (1, 3, 5, 7):
                timed.setdefault(self.fpos + 20, []).append((None, lambda T=T: self.touch(4 + (T - 1) // 2)))
            for g in (2 * T - 1, 2 * T):
                if g == 16:
                    a.emit("s_nop 1")
                    fillers.extend([(lambda: a.emit("s_nop 7"), 8)] + self.init_ops(16))
                    C_mfmas(15, per=30)
                    flush()
                    a.emit("s_nop 1")
                    if 'nodefer' in EXP:
                        ep = self.epilogue_ops(0, [V_Q, V_Q + 12])
                        nsp = 90
                    else:
                        ep = self.epilogue_ops(0, None)
                        nsp = 17
                    fillers.extend(self.softmax_ops(16))
                    fillers.append((lambda: a.emit("s_nop 7"), 8))
                    fillers.extend(ep[:nsp])
                    self.ep_rest = ep[nsp:]
                    A_mfmas(17, per=40)
                    flush()
                    self.check_ops(16)
                    continue
                if g == 17:
                    fillers.extend(self.ep_rest)
                    fillers.extend(self.softmax_ops(g))
                    A_mfmas(g + 1, per=40)
                    while any(True for _ in ()):
                        pass
                    n_sm = len(self.softmax_ops(g))
                    while len(fillers) > n_sm:
                        op, c = fillers.pop(0)
                        op()
                    a.emit("s_nop 1")
                    C_mfmas(g - 1, per=24)
                    flush()
                    self.check_ops(g)
                    continue
                fillers.extend(self.softmax_ops(g))
                A_mfmas(g + 1)
                C_mfmas(g - 1)
                flush()
                self.check_ops(g)
        time_ops(step_start(24), 16)
        fillers.extend(self.softmax_ops(31))
        C_mfmas(30, per=30)
        flush()
        self.check_ops(31)
        a.emit("s_nop 1")
        C_mfmas(31)
        flush()
        self.stamp()
        a.emit("s_nop 15")
        for op, c in self.epilogue_ops(1, [64, 76, 88, 100]):
            op()

    def prologue(self):
        a = self.a
        e = a.emit
        self.cur_base = {'K': 0, 'VW': 0}
        e("s_cmp_ge_u32 s2, 256")
        e("s_cbranch_scc1 L_end")
        if self.stamps:
            e("s_memtime s[90:91]")
            e("s_memrealtime s[92:93]")
        e("s_and_b32 s%d, s2, 7" % S_T[0])
        e("s_lshr_b32 s%d, s2, 3" % S_T[1])
        e("s_and_b32 s%d, s%d, 1" % (S_T[2], S_T[0]))
        e("s_load_dwordx16 s[64:79], s[0:1], 0")
        e("s_load_dwordx8 s[80:87], s[0:1], 64")
        e("s_load_dwordx2 s[88:89], s[0:1], 96")
        e("s_lshr_b32 s%d, s%d, 1" % (S_T[3], S_T[0]))
        e("s_and_b32 s%d, s%d, 1" % (S_T[3], S_T[3]))
        e("s_lshl_b32 s%d, s%d, 2" % (S_T[3], S_T[3]))
        e("s_and_b32 s%d, s%d, 3" % (S_T[4], S_T[1]))
        e("s_add_u32 s%d, s%d, s%d" % (S_T[3], S_T[3], S_T[4]))
        e("s_lshr_b32 s%d, s%d, 2" % (S_T[4], S_T[0]))
        e("s_lshl_b32 s%d, s%d, 4" % (S_T[4], S_T[4]))
        e("s_lshr_b32 s%d, s%d, 2" % (S_T[5], S_T[1]))
        e("s_add_u32 s%d, s%d, s%d" % (S_T[4], S_T[4], S_T[5]))
        e("s_waitcnt lgkmcnt(0)")
        e("s_cmp_eq_u32 s%d, 0" % S_T[2])
        for (dst, pa, pb, sz) in ((S_X, 64, 74, 8 * 240 * 512 * 2), (S_K, 66, 76, 8 * 32 * 512 * 128 * 2),
                                  (S_V, 68, 78, 8 * 32 * 512 * 128 * 2), (S_W, 70, 80, 512 * 4096 * 2)):
            e("s_cselect_b32 s%d, s%d, s%d" % (dst, pa, pb))
            e("s_cselect_b32 s%d, s%d, s%d" % (dst + 1, pa + 1, pb + 1))
            e("s_mov_b32 s%d, %d" % (dst + 2, sz))
            e("s_mov_b32 s%d, 0x00020000" % (dst + 3))
        e("s_cselect_b32 s%d, s72, s82" % S_WO)
        e("s_cselect_b32 s%d, s73, s83" % (S_WO + 1))
        e("s_mov_b32 s%d, %d" % (S_WO + 2, 4096 * 512 * 2))
        e("s_mov_b32 s%d, 0x00020000" % (S_WO + 3))
        e("s_lshr_b32 s%d, s%d, 1" % (S_WOS, S_T[0]))
        e("s_lshl_b32 s%d, s%d, 5" % (S_WOS, S_WOS))
        e("s_add_u32 s%d, s%d, s%d" % (S_WOS, S_WOS, S_T[1]))
        if K2V == 'v3nowot':
            e("s_lshl_b32 s%d, s%d, 15" % (S_WOS, S_WOS))
        elif K2V == 'v1':
            e("s_lshl_b32 s%d, s%d, 22" % (S_WOD, S_T[2]))
            e("s_lshl_b32 s63, s%d, 15" % S_WOS)
            e("s_add_u32 s%d, s%d, s63" % (S_WOD, S_WOD))
            e("s_add_u32 s%d, s%d, %d" % (S_WOD, S_WOD, WOT))
            e("s_lshr_b32 s63, s%d, 4" % S_WOS)
            e("s_lshl_b32 s63, s63, 7")
            e("s_and_b32 s%d, s%d, 15" % (S_WOS, S_WOS))
            e("s_lshl_b32 s%d, s%d, 18" % (S_WOS, S_WOS))
            e("s_add_u32 s%d, s%d, s63" % (S_WOS, S_WOS))
        else:
            e("s_lshl_b32 s%d, s%d, 1" % (S_WOS, S_WOS))
            e("s_lshl_b32 s%d, s%d, 22" % (S_WOD, S_T[2]))
            e("s_lshl_b32 s63, s%d, 14" % S_WOS)
            e("s_add_u32 s%d, s%d, s63" % (S_WOD, S_WOD))
            e("s_add_u32 s%d, s%d, %d" % (S_WOD, S_WOD, WOT))
            e("s_lshr_b32 s63, s%d, 6" % S_WOS)
            e("s_lshl_b32 s63, s63, 8")
            e("s_and_b32 s%d, s%d, 63" % (S_WOS, S_WOS))
            e("s_lshl_b32 s%d, s%d, 16" % (S_WOS, S_WOS))
            e("s_add_u32 s%d, s%d, s63" % (S_WOS, S_WOS))
        e("s_mov_b32 s%d, s88" % S_WS)
        e("s_mov_b32 s%d, s89" % (S_WS + 1))
        e("s_mov_b32 s%d, %d" % (S_WS + 2, WOT + (8 << 20)))
        e("s_mov_b32 s%d, 0x00020000" % (S_WS + 3))
        e("s_lshl_b32 s%d, s%d, 5" % (S_T[5], S_T[3]))
        e("s_add_u32 s%d, s%d, s%d" % (S_T[5], S_T[5], S_T[4]))
        e("s_lshl_b32 s%d, s%d, 17" % (S_KVB[0], S_T[5]))
        e("s_lshl_b32 s%d, s%d, 8" % (S_WCB[0], S_T[4]))
        e("s_add_u32 s%d, s%d, %d" % (S_KVB[1], S_KVB[0], 8 * 131072))
        e("s_add_u32 s%d, s%d, %d" % (S_WCB[1], S_WCB[0], 8 * 256))
        e("s_mul_i32 s%d, s%d, %d" % (S_STB[0], S_T[2], 60 * 262144))
        e("s_lshl_b32 s%d, s%d, 13" % (S_T[5], S_T[4]))
        e("s_add_u32 s%d, s%d, s%d" % (S_STB[0], S_STB[0], S_T[5]))
        e("s_add_u32 s%d, s%d, 4096" % (S_STB[1], S_STB[0]))
        e("s_add_u32 s%d, s%d, %d" % (S_STB[2], S_STB[0], 65536))
        e("s_add_u32 s%d, s%d, %d" % (S_STB[3], S_STB[0], 65536 + 4096))
        c = math.log2(math.e) / math.sqrt(128.0)
        cb = struct.unpack("<I", struct.pack("<f", c))[0]
        e("s_mov_b32 s%d, 0x%08x" % (S_SCALE, cb))
        e("s_mov_b32 s%d, 0x%08x" % (S_SCALE + 1, cb))
        for i in range(4):
            e("s_mov_b32 s%d, %d" % (S_XSO[i], i * 8192))
        e("v_lshrrev_b32 v%d, 6, v0" % V_T1)
        e("s_nop 0")
        e("v_readfirstlane_b32 s%d, v%d" % (S_T[0], V_T1))
        e("s_lshl_b32 s%d, s%d, 10" % (S_WV1K, S_T[0]))
        e("s_lshl_b32 s62, s%d, 6" % S_T[0])
        e("s_lshr_b32 s%d, s%d, 2" % (S_CLS, S_T[0]))
        L = V_L[0]
        HH = V_L[1]
        e("v_and_b32 v%d, 63, v0" % L)
        e("v_lshrrev_b32 v%d, 5, v%d" % (HH, L))
        e("s_mul_i32 s%d, s%d, 240" % (S_T[1], S_T[3]))
        e("s_lshl_b32 s%d, s%d, 5" % (S_T[2], S_T[0]))
        e("s_add_u32 s%d, s%d, s%d" % (S_T[1], S_T[1], S_T[2]))
        RP, CH = V_ET[0], V_ET[1]
        e("v_lshrrev_b32 v%d, 4, v%d" % (V_ET[2], L))
        e("s_lshl_b32 s%d, s%d, 2" % (S_T[5], S_T[0]))
        e("v_add_u32 v%d, s%d, v%d" % (RP, S_T[5], V_ET[2]))
        e("v_and_b32 v%d, 15, v%d" % (CH, L))
        e("v_lshlrev_b32 v%d, 2, v%d" % (V_ET[3], V_ET[2]))
        e("v_xor_b32 v%d, v%d, v%d" % (V_ET[3], CH, V_ET[3]))
        e("v_lshlrev_b32 v%d, 4, v%d" % (V_ET[3], V_ET[3]))
        e("v_lshl_add_u32 v%d, v%d, 13, v%d" % (V_DW, RP, V_ET[3]))
        e("v_lshl_add_u32 v%d, v%d, 8, v%d" % (V_DV, RP, V_ET[3]))
        e("v_and_b32 v%d, 15, v%d" % (V_ET[3], RP))
        e("v_xor_b32 v%d, v%d, v%d" % (V_ET[3], CH, V_ET[3]))
        e("v_lshlrev_b32 v%d, 4, v%d" % (V_ET[3], V_ET[3]))
        e("v_lshl_add_u32 v%d, v%d, 8, v%d" % (V_DK, RP, V_ET[3]))
        e("v_lshrrev_b32 v%d, 3, v%d" % (V_ET[0], L))
        e("v_add_u32 v%d, s%d, v%d" % (V_ET[1], S_T[1], V_ET[0]))
        e("v_lshlrev_b32 v%d, 10, v%d" % (V_XOFF, V_ET[1]))
        e("v_and_b32 v%d, 7, v%d" % (V_ET[1], L))
        e("v_lshl_add_u32 v%d, v%d, 4, v%d" % (V_XOFF, V_ET[1], V_XOFF))
        first = self.issue_at[-1]
        if 'wqtouch' in EXP:
            e("v_lshlrev_b32 v%d, 6, v0" % V_T1)
            a.vmem("buffer_load_dword v%d, v%d, s[%d:%d], s%d offen" % (V_T1, V_T1, S_W, S_W + 3, S_WOS), ('wq', 0))
        for i in range(4):
            self.x_raw_load(0, i)
        for c in first[:2]:
            for op, cc in self.dma_ops(c):
                op()
        for i in range(4):
            self.x_raw_load(1, i)
        for c in first[2:4]:
            for op, cc in self.dma_ops(c):
                op()
        self.late_prologue = []
        for c in first[4:]:
            self.late_prologue.extend(self.dma_ops(c))
        e("v_lshrrev_b32 v%d, 4, v%d" % (V_ET[2], L))
        e("v_xor_b32 v%d, v%d, v%d" % (V_ET[2], V_ET[1], V_ET[2]))
        e("v_lshlrev_b32 v%d, 4, v%d" % (V_ET[2], V_ET[2]))
        e("v_lshl_add_u32 v%d, v%d, 7, v%d" % (V_ET[2], V_ET[0], V_ET[2]))
        e("s_lshl_b32 s%d, s%d, 2" % (S_T[5], S_WV1K))
        e("s_add_u32 s%d, s%d, %d" % (S_T[5], S_T[5], XSCR))
        e("v_add_u32 v%d, s%d, v%d" % (V_XW[0], S_T[5], V_ET[2]))
        e("v_xor_b32 v%d, 64, v%d" % (V_XW[1], V_XW[0]))
        e("v_and_b32 v%d, 31, v%d" % (V_ET[0], L))
        e("v_bfe_u32 v%d, v%d, 1, 3" % (V_ET[1], L))
        e("v_xor_b32 v%d, v%d, v%d" % (V_ET[1], V_ET[1], HH))
        for ks in range(4):
            e("v_xor_b32 v%d, %d, v%d" % (V_ET[2], 2 * ks, V_ET[1]))
            e("v_lshlrev_b32 v%d, 4, v%d" % (V_ET[2], V_ET[2]))
            e("v_lshl_add_u32 v%d, v%d, 7, v%d" % (V_ET[2], V_ET[0], V_ET[2]))
            e("v_add_u32 v%d, s%d, v%d" % (V_XR[ks], S_T[5], V_ET[2]))
        R = V_ET[0]
        e("v_and_b32 v%d, 31, v%d" % (V_ET[3], L))
        e("v_add_u32 v%d, s%d, v%d" % (R, S_T[1], V_ET[3]))
        e("v_lshrrev_b32 v%d, 5, v%d" % (V_ET[1], R))
        e("v_lshlrev_b32 v%d, 18, v%d" % (V_ET[1], V_ET[1]))
        e("v_and_b32 v%d, 31, v%d" % (V_ET[2], R))
        e("v_lshlrev_b32 v%d, 4, v%d" % (V_ET[2], V_ET[2]))
        e("v_lshl_add_u32 v%d, v%d, 9, v%d" % (V_ET[2], HH, V_ET[2]))
        e("v_add_u32 v%d, v%d, v%d" % (V_STOFF, V_ET[1], V_ET[2]))
        e("v_add_u32 v%d, s%d, v%d" % (V_ET[3], S_T[2], V_ET[3]))
        e("v_mov_b32 v%d, 0x7f000000" % V_ET[0])
        e("v_cmp_gt_u32 vcc, 240, v%d" % V_ET[3])
        e("s_nop 1")
        e("v_cndmask_b32 v%d, v%d, v%d, vcc" % (V_STOFF, V_ET[0], V_STOFF))
        r_, c4 = V_ET[0], V_ET[1]
        e("v_bfe_u32 v%d, v%d, 2, 2" % (r_, L))
        e("v_and_b32 v%d, 3, v%d" % (c4, L))
        e("v_lshl_add_u32 v%d, v%d, 3, v%d" % (V_ET[2], HH, r_))
        e("v_lshlrev_b32 v%d, 8, v%d" % (V_ET[2], V_ET[2]))
        e("v_bfe_u32 v%d, v%d, 4, 1" % (V_ET[3], L))
        e("v_lshl_add_u32 v%d, v%d, 5, v%d" % (V_ET[2], V_ET[3], V_ET[2]))
        e("v_and_b32 v%d, 1, v%d" % (V_ET[3], c4))
        e("v_lshl_add_u32 v%d, v%d, 4, v%d" % (V_ET[2], V_ET[3], V_ET[2]))
        e("v_lshrrev_b32 v%d, 1, v%d" % (V_ET[3], c4))
        e("v_lshl_add_u32 v%d, v%d, 3, v%d" % (V_ET[2], V_ET[3], V_ET[2]))
        for t in range(4):
            e("v_xor_b32 v%d, %d, v%d" % (V_ET[3], t, r_))
            e("v_lshl_add_u32 v%d, v%d, 6, v%d" % (V_VW[t], V_ET[3], V_ET[2]))
        key = V_ET[0]
        e("v_and_b32 v%d, 0x13, v%d" % (key, L))
        e("v_bfe_u32 v%d, v%d, 2, 1" % (V_ET[1], L))
        e("v_lshl_add_u32 v%d, v%d, 3, v%d" % (key, V_ET[1], key))
        e("v_bfe_u32 v%d, v%d, 3, 1" % (V_ET[1], L))
        e("v_lshl_add_u32 v%d, v%d, 2, v%d" % (key, V_ET[1], key))
        e("v_and_b32 v%d, 15, v%d" % (V_ET[1], key))
        e("v_xor_b32 v%d, v%d, v%d" % (V_ET[1], V_ET[1], HH))
        for s in range(8):
            e("v_xor_b32 v%d, %d, v%d" % (V_ET[2], 2 * s, V_ET[1]))
            e("v_lshlrev_b32 v%d, 4, v%d" % (V_ET[2], V_ET[2]))
            e("v_lshl_add_u32 v%d, v%d, 8, v%d" % (V_KA[s], key, V_ET[2]))
        e("v_and_b32 v%d, 0xff, v0" % V_L[0])
        e("v_lshlrev_b32 v%d, 7, v%d" % (V_L[0], V_L[0]))
        e("s_cmp_eq_u32 s%d, 0" % S_CLS)
        e("s_cselect_b32 s%d, s%d, s%d" % (S_TCH, S_K, S_V))
        e("s_cselect_b32 s%d, s%d, s%d" % (S_TCH + 1, S_K + 1, S_V + 1))
        e("s_mov_b32 s%d, s%d" % (S_TCH + 2, S_K + 2))
        e("s_mov_b32 s%d, 0x00020000" % (S_TCH + 3))
        need = []
        for c in self.steps[0]:
            need += self.dma_tags(c)
        a.wait(vm=need)
        a.emit("s_barrier")
        self.stamp()

    def gen(self):
        a = self.a
        self.frags = self.build_frags()
        for cls in (0, 1):
            a.new_trace(cls)
            self.prologue()
            self.body()
        a.trace = False
        a.reset_sites(0)
        self.prologue()
        self.body()
        if self.stamps:
            self.stamp()
            a.emit("v_subrev_u32 v%d, s90, v%d" % (V_STMP2, V_STMP2))
            a.emit("s_memrealtime s[60:61]")
            a.emit("s_waitcnt lgkmcnt(0)")
            a.emit("s_sub_u32 s60, s60, s92")
            a.emit("v_mov_b32 v%d, s60" % V_T1)
            a.emit("v_cmp_eq_u32 vcc, s62, v0")
            a.emit("s_nop 1")
            a.emit("v_cndmask_b32 v%d, v%d, v%d, vcc" % (V_STMP2, V_STMP2, V_T1))
            a.emit("s_add_u32 s62, s62, 1")
            a.emit("v_mov_b32 v%d, s92" % V_T1)
            a.emit("v_cmp_eq_u32 vcc, s62, v0")
            a.emit("s_nop 1")
            a.emit("v_cndmask_b32 v%d, v%d, v%d, vcc" % (V_STMP2, V_STMP2, V_T1))
            a.emit("v_lshlrev_b32 v%d, 2, v0" % V_T1)
            a.emit("s_lshl_b32 s60, s2, 11")
            a.emit("s_add_u32 s60, s60, %d" % (64 << 20))
            a.emit("s_mov_b32 s%d, 0x10000000" % (S_WS + 2))
            a.emit("buffer_store_dword v%d, v%d, s[%d:%d], s60 offen" % (V_STMP2, V_T1, S_WS, S_WS + 3))
        a.label("L_end")
        a.emit("s_endpgm")
        for g in range(32):
            if g % 16 != 0:
                self.slow_path(g)

V_STMP2 = 11
```

```python
from asmlib import Asm
import math, struct, os
EXP = os.environ.get('EXP', '')

SLOT = 16384
NSLOT = 10
XSCR = 8 * SLOT
LA = int(os.environ.get('LA', '5'))
NFR = 7
THR = float(os.environ.get('THR', '256.0'))

V_T1 = 1
V_XOFF = 2
V_XW = [3, 4]
V_STOFF = 5
V_DW, V_DV, V_DK = 6, 7, 8
V_L = [9, 12]
V_RC = 10
V_NM = 13
V_TS = [14, 15]
V_ET = [16, 17, 18, 19]
V_VW = [20, 21, 22, 23]
V_KA = [24 + i for i in range(8)]
V_FR = 32
V_XR = [60, 61, 62, 63]
V_THR = 60
V_STMP = 61
V_EP = 62
V_QACC = 64
V_S = [64, 80]
V_P = [96, 104]
V_NEGM = 112
V_Q = 128
A_O = 0
A_XF = 64

S_X, S_W, S_K, S_V, S_WS = 4, 8, 12, 16, 20
S_KVB = [26, 28]
S_WCB = [27, 29]
S_T = [34, 35, 36, 37, 38, 39]
S_SCALE = 40
S_WV1K = 42
S_STB = [43, 44, 45, 46]
S_XSO = [52, 53, 54, 55]
S_CLS = 47
XDMA = os.environ.get('XDMA', '1') == '1'
S_XM = 48
PERA = int(os.environ.get('PERA', '12'))
PERC = int(os.environ.get('PERC', '16'))
K2V = os.environ.get('K2V', 'v3nowot')
S_TCH = 84
V_TCH = 62
TPOS = int(os.environ.get('TPOS', '12'))
S_WO = 56
S_WOS = 60 - 10
S_WOD = 51
WOT = 32 << 20
V_WOV = 152
STFLAG = os.environ.get('STFLAG', '')
SHIFT = int(os.environ.get('SHIFT', '8'))

def vr(b, n):
    return "v[%d:%d]" % (b, b + n - 1)
def ar(b, n):
    return "a[%d:%d]" % (b, b + n - 1)

class K1:
    def __init__(self, a, stamps=False):
        self.a = a
        self.stamps = stamps
        self.plan()

    def plan(self):
        steps = []
        for j in range(8):
            steps.append([('W', 0, j), ('W', 1, j)])
        for T in range(17):
            st = []
            if T < 16:
                st.append(('K', T // 8, T % 8))
            if T >= 1:
                st.append(('V', (T - 1) // 8, (T - 1) % 8))
            steps.append(st)
        self.steps = steps
        seq = [c for st in steps for c in st]
        self.seq = seq
        cons_step = {}
        for si, st in enumerate(steps):
            for c in st:
                cons_step[c] = si
        self.cons_step = cons_step
        free_at = {s: -1 for s in range(8)}
        free_at[8] = 8
        free_at[9] = 8
        self.slot = {}
        self.issue_step = {}
        for c in seq:
            s = min(free_at, key=lambda k: (free_at[k], k))
            self.slot[c] = s
            self.issue_step[c] = free_at[s]
            free_at[s] = cons_step[c] + 1
            assert self.issue_step[c] <= cons_step[c] - 2 or self.issue_step[c] == -1, (c, self.issue_step[c], cons_step[c])
        self.issue_at = {}
        for c in seq:
            self.issue_at.setdefault(self.issue_step[c], []).append(c)

    def stamp(self):
        if not self.stamps:
            return
        a = self.a
        a.emit("s_memtime s[60:61]")
        a.emit("s_waitcnt lgkmcnt(0)")
        a.emit("v_mov_b32 v%d, s60" % V_T1)
        a.emit("v_cmp_eq_u32 vcc, s62, v0")
        a.emit("s_nop 1")
        a.emit("v_cndmask_b32 v%d, v%d, v%d, vcc" % (V_STMP2, V_STMP2, V_T1))
        a.emit("s_add_u32 s62, s62, 1")

    def dma_ops(self, c):
        a = self.a
        kind, u, j = c
        ops = []
        for i in range(2):
            def op(i=i):
                if kind == 'W':
                    srd, base, goff, vo = S_W, S_WCB[u], j * 524288 + i * 262144, V_DW
                elif kind == 'K':
                    srd, base, goff, vo = S_K, S_KVB[u], j * 16384 + i * 8192, V_DK
                else:
                    srd, base, goff, vo = S_V, S_KVB[u], j * 16384 + i * 8192, V_DV
                a.emit("s_add_u32 m0, s%d, %d" % (S_WV1K, self.slot[c] * SLOT + i * 8192))
                a.emit("s_add_u32 s%d, s%d, %d" % (S_T[0], base, goff))
                fl = " nt" if (kind != 'W' or 'ntw' in EXP) else ""
                a.vmem("buffer_load_dwordx4 v%d, s[%d:%d], s%d offen%s lds" % (vo, srd, srd + 3, S_T[0], fl), ('dma', c, i))
            ops.append((op, 4))
        return ops

    def dma_tags(self, c):
        return [('dma', c, i) for i in range(2)]

    def addr_update(self, c):
        a = self.a
        kind = c[0]
        key = 'K' if kind == 'K' else 'VW'
        new = self.slot[c] * SLOT
        d = new - self.cur_base[key]
        self.cur_base[key] = new
        if d == 0:
            return
        for r in (V_KA if kind == 'K' else V_VW):
            a.emit("v_add_u32 v%d, 0x%x, v%d" % (r, d & 0xffffffff, r))

    def xraw_reg(self, j, i):
        return vr(V_Q + (j % 2) * 16 + i * 4, 4)

    def x_raw_load(self, j, i):
        a = self.a
        a.vmem("buffer_load_dwordx4 %s, v%d, s[%d:%d], s%d offen offset:%d" %
               (self.xraw_reg(j, i), V_XOFF, S_X, S_X + 3, S_XSO[i], j * 128) + (" nt" if 'ntx' in EXP else ""), ('xr', j, i))

    def x_dma(self, j, i):
        a = self.a
        if i == 0 and j >= 1:
            a.wait(lg=[('xf', j - 1, 3)])
        a.emit("s_add_u32 m0, s%d, %d" % (S_XM, i * 1024))
        a.emit("s_add_u32 s%d, s%d, %d" % (S_T[0], S_XSO[i], j * 128))
        a.vmem("buffer_load_dwordx4 v%d, s[%d:%d], s%d offen lds" % (V_XW[i % 2], S_X, S_X + 3, S_T[0]), ('xd', j, i))

    def x_write(self, j, i):
        a = self.a
        if 'noxvm' not in EXP:
            a.wait(vm=[('xr', j, i)])
        if 'noxw' in EXP:
            return
        a.ds("ds_write_b128 v%d, %s offset:%d" % (V_XW[i % 2], self.xraw_reg(j, i), i * 1024), ('xw', j, i))

    def x_read(self, j, ks):
        a = self.a
        if 'noxr' in EXP and j > 0:
            a.lgi[('xf', j, ks)] = a.lgi.get(('xf', 0, 0), 0)
            return
        if XDMA and ks == 0:
            a.wait(vm=[('xd', j, i) for i in range(4)])
        a.ds("ds_read_b128 %s, v%d" % (ar(A_XF + (j % 2) * 16 + ks * 4, 4), V_XR[ks]), ('xf', j, ks))

    def build_frags(self):
        fr = []
        for j in range(8):
            for ks in range(4):
                for u in range(2):
                    for t in range(4):
                        fr.append(('W', u, j, ks, t))
        def ktile(g):
            for s in range(8):
                fr.append(('K', g, s))
        def vtile(g):
            for dt in range(4):
                for ks in range(2):
                    fr.append(('V', g, dt, ks))
        self.order = []
        ktile(0)
        ktile(1)
        for g in range(1, 31):
            if g == 16:
                vtile(15)
                ktile(17)
            else:
                ktile(g + 1)
                vtile(g - 1)
        vtile(30)
        vtile(31)
        return fr

    def frag_reg(self, f):
        return V_FR + (f % NFR) * 4

    def frag_chunk(self, f):
        d = self.frags[f]
        if d[0] == 'W':
            return ('W', d[1], d[2])
        g = d[1]
        return (d[0], g // 16, (g % 16) // 2)

    def issue_frag(self, f):
        a = self.a
        d = self.frags[f]
        r = self.frag_reg(f)
        c = self.frag_chunk(f)
        if d[0] == 'W':
            _, u, j, ks, t = d
            base = self.slot[c] * SLOT - self.cur_base['VW']
            off = base + (16 * ks) * 256
            if off < 0 or off + 1024 + 8 > 65535:
                self.addr_update(c)
                off = (16 * ks) * 256
            for e2 in range(2):
                a.ds("ds_read_b64_tr_b16 %s, v%d offset:%d" % (vr(r + 2 * e2, 2), V_VW[t], off + 1024 * e2), ('fr', f, e2))
        elif d[0] == 'V':
            _, g, dt, ks = d
            base = self.slot[c] * SLOT - self.cur_base['VW']
            off = base + (32 * (g & 1) + 16 * ks) * 256
            if off < 0 or off + 1024 + 8 > 65535:
                self.addr_update(c)
                off = (32 * (g & 1) + 16 * ks) * 256
            for e2 in range(2):
                a.ds("ds_read_b64_tr_b16 %s, v%d offset:%d" % (vr(r + 2 * e2, 2), V_VW[dt], off + 1024 * e2), ('fr', f, e2))
        else:
            _, g, s = d
            base = self.slot[c] * SLOT - self.cur_base['K']
            off = base + (g & 1) * 8192
            if off < 0 or off + 16 > 65535:
                self.addr_update(c)
                off = (g & 1) * 8192
            a.ds("ds_read_b128 %s, v%d offset:%d" % (vr(r, 4), V_KA[s], off), ('fr', f, 1))

    def softmax_ops(self, g):
        a = self.a
        cb = g & 1
        ops = []
        def E(p):
            ta, tb = V_ET[2 * (p & 1)], V_ET[2 * (p & 1) + 1]
            s0 = V_S[cb] + 2 * p
            ops.append((lambda: a.emit("v_exp_f32 v%d, v%d" % (ta, s0)), 8))
            ops.append((lambda: a.emit("v_exp_f32 v%d, v%d" % (tb, s0 + 1)), 8))
        def R(p):
            ta, tb = V_ET[2 * (p & 1)], V_ET[2 * (p & 1) + 1]
            if p == 0:
                ops.append((lambda: a.emit("v_mov_b32 v%d, v%d" % (V_TS[0], ta)), 4))
                ops.append((lambda: a.emit("v_mov_b32 v%d, v%d" % (V_TS[1], tb)), 4))
            else:
                ops.append((lambda: a.emit("v_add_f32 v%d, v%d, v%d" % (V_TS[0], V_TS[0], ta)), 4))
                ops.append((lambda: a.emit("v_add_f32 v%d, v%d, v%d" % (V_TS[1], V_TS[1], tb)), 4))
            pr = V_P[cb] + p
            ops.append((lambda: a.emit("v_cvt_pk_bf16_f32 v%d, v%d, v%d" % (pr, ta, tb)), 4))
        E(0)
        for p in range(1, 8):
            E(p)
            R(p - 1)
        ops.append((lambda: a.emit("s_nop 0"), 4))
        R(7)
        ops.append((lambda: a.emit("v_add_f32 v%d, v%d, v%d" % (V_TS[0], V_TS[0], V_TS[1])), 4))
        return ops

    def check_ops(self, g):
        a = self.a
        u = g // 16
        if g % 16 == 0:
            a.emit("v_mov_b32 v%d, v%d" % (V_L[u], V_TS[0]))
            return
        a.emit("v_cmp_nle_f32 vcc, v%d, v%d" % (V_TS[0], V_THR))
        a.emit("s_cbranch_vccnz L_slow%d" % g)
        a.label("L_back%d" % g)
        a.emit("v_add_f32 v%d, v%d, v%d" % (V_L[u], V_L[u], V_TS[0]))

    def rowmax_ops(self, s, T0, T1):
        a = self.a
        ops = []
        ops.append((lambda: a.emit("v_max3_f32 v%d, v%d, v%d, v%d" % (T0, s, s + 1, s + 2)), 4))
        for i in range(3, 15, 2):
            ops.append((lambda i=i: a.emit("v_max3_f32 v%d, v%d, v%d, v%d" % (T0, T0, s + i, s + i + 1)), 4))
        ops.append((lambda: a.emit("v_max_f32 v%d, v%d, v%d" % (T0, T0, s + 15)), 4))
        def sw():
            a.emit("v_mov_b32 v%d, v%d" % (T1, T0))
            a.emit("s_nop 1")
            a.emit("v_permlane32_swap_b32 v%d, v%d" % (T0, T1))
            a.emit("s_nop 1")
        ops.append((sw, 16))
        return ops

    def init_ops(self, g):
        a = self.a
        s = V_S[g & 1]
        T0, T1 = V_ET[0], V_ET[1]
        ops = self.rowmax_ops(s, T0, T1)
        ops.append((lambda: a.emit("v_max_f32 v%d, v%d, v%d" % (T0, T0, T1)), 4))
        ops.append((lambda: a.emit("v_sub_f32 v%d, 0, v%d" % (V_NM, T0)), 4))
        for i in range(16):
            ops.append((lambda i=i: a.emit("v_mov_b32 v%d, v%d" % (V_NEGM + i, V_NM)), 4))
        for i in range(16):
            ops.append((lambda i=i: a.emit("v_add_f32 v%d, v%d, v%d" % (s + i, s + i, V_NM)), 4))
        return ops

    def slow_path(self, g):
        a = self.a
        u = g // 16
        cb = g & 1
        nb = cb ^ 1
        a.label("L_slow%d" % g)
        a.emit("s_nop 15")
        a.emit("s_nop 15")
        T0, T1 = V_ET[0], V_ET[1]
        s = V_S[cb]
        for op, c in self.rowmax_ops(s, T0, T1):
            op()
        a.emit("v_max3_f32 v%d, v%d, v%d, 0" % (T0, T0, T1))
        a.emit("v_exp_f32 v%d, -v%d" % (T1, T0))
        a.emit("s_nop 1")
        if g % 16 != 15:
            a.emit("v_sub_f32 v%d, v%d, v%d" % (V_NM, V_NM, T0))
            for i in range(16):
                a.emit("v_mov_b32 v%d, v%d" % (V_NEGM + i, V_NM))
            for i in range(16):
                r = V_S[nb] + i
                a.emit("v_sub_f32 v%d, v%d, v%d" % (r, r, T0))
        a.emit("v_mul_f32 v%d, v%d, v%d" % (V_L[u], V_L[u], T1))
        for i in range(64):
            r = A_O + i
            a.emit("v_accvgpr_read_b32 v%d, a%d" % (V_ET[2], r))
            a.emit("v_mul_f32 v%d, v%d, v%d" % (V_ET[3], V_ET[2], T1))
            a.emit("v_accvgpr_write_b32 a%d, v%d" % (r, V_ET[3]))
        a.emit("v_mov_b32 v%d, 0" % V_TS[0])
        for p in range(8):
            a.emit("v_sub_f32 v%d, v%d, v%d" % (V_ET[2], s + 2 * p, T0))
            a.emit("v_sub_f32 v%d, v%d, v%d" % (V_ET[3], s + 2 * p + 1, T0))
            a.emit("v_exp_f32 v%d, v%d" % (V_ET[2], V_ET[2]))
            a.emit("v_exp_f32 v%d, v%d" % (V_ET[3], V_ET[3]))
            a.emit("s_nop 0")
            a.emit("v_add_f32 v%d, v%d, v%d" % (V_TS[0], V_TS[0], V_ET[2]))
            a.emit("v_add_f32 v%d, v%d, v%d" % (V_TS[0], V_TS[0], V_ET[3]))
            a.emit("v_cvt_pk_bf16_f32 v%d, v%d, v%d" % (V_P[cb] + p, V_ET[2], V_ET[3]))
        a.emit("s_nop 3")
        a.emit("s_branch L_back%d" % g)

    def touch(self, e):
        if 'touch' not in EXP:
            return
        a = self.a
        a.emit("s_add_u32 s%d, s%d, %d" % (S_T[0], S_KVB[e // 4], (e % 4) * 32768))
        a.vmem("buffer_load_dword v%d, v%d, s[%d:%d], s%d offen nt" % (V_T1, V_L[0] if e < 4 else V_TCH, S_TCH, S_TCH + 3, S_T[0]), None)

    def wo_ld(self, k):
        a = self.a
        if K2V == 'v3nowot':
            return
        if k == 0 and K2V == 'v3':
            a.emit("v_and_b32 v%d, 0xff, v%d" % (V_TS[0], V_DV))
            a.emit("v_lshrrev_b32 v%d, 8, v%d" % (V_TS[1], V_DV))
            a.emit("v_lshl_add_u32 v%d, v%d, 10, v%d" % (V_TS[0], V_TS[1], V_TS[0]))
            a.emit("v_lshlrev_b32 v%d, 4, v0" % V_TS[1])
        if k == 0 and K2V == 'v1':
            a.emit("v_lshrrev_b32 v%d, 3, v0" % V_TS[0])
            a.emit("v_lshlrev_b32 v%d, 10, v%d" % (V_TS[0], V_TS[0]))
            a.emit("v_bfe_u32 v%d, v0, 4, 1" % V_TS[1])
            a.emit("v_lshlrev_b32 v%d, 2, v%d" % (V_TS[1], V_TS[1]))
            a.emit("v_xor_b32 v%d, v0, v%d" % (V_TS[1], V_TS[1]))
            a.emit("v_and_b32 v%d, 7, v%d" % (V_TS[1], V_TS[1]))
            a.emit("v_lshl_add_u32 v%d, v%d, 4, v%d" % (V_TS[0], V_TS[1], V_TS[0]))
            a.emit("v_lshlrev_b32 v%d, 4, v0" % V_TS[1])
        a.emit("s_add_u32 s%d, s%d, %d" % (S_T[0], S_WOS, k * (65536 if K2V == 'v1' else 32768)))
        a.vmem("buffer_load_dwordx4 %s, v%d, s[%d:%d], s%d offen" % (vr(V_ET[0], 4), V_TS[0], S_WO, S_WO + 3, S_T[0]) + (" nt" if 'ntwo' in EXP else ""), ('wo', k))

    def wo_st(self, k):
        a = self.a
        if K2V == 'v3nowot':
            return
        a.wait(vm=[('wo', k)])
        a.emit("s_add_u32 s%d, s%d, %d" % (S_T[0], S_WOD, k * 8192))
        a.vmem("buffer_store_dwordx4 %s, v%d, s[%d:%d], s%d offen" % (vr(V_ET[0], 4), V_TS[1], S_WS, S_WS + 3, S_T[0]) + STFLAG, None)

    def epilogue_ops(self, u, tmp):
        a = self.a
        ops = []
        T0, T1 = V_RC, 63
        def pre():
            a.emit("v_mov_b32 v%d, v%d" % (T0, V_L[u]))
            a.emit("v_mov_b32 v%d, v%d" % (T1, V_L[u]))
            a.emit("s_nop 1")
            a.emit("v_permlane32_swap_b32 v%d, v%d" % (T0, T1))
            a.emit("s_nop 1")
            a.emit("v_add_f32 v%d, v%d, v%d" % (T0, T0, T1))
            a.emit("v_rcp_f32 v%d, v%d" % (T0, T0))
            a.emit("s_nop 0")
        ops.append((pre, 30))
        if tmp is None:
            t0, t1 = 61, 62
            self.deferred_stores = []
            for dt in range(4):
                for G in range(2):
                    kq = 2 * dt + G
                    o = A_O + dt * 16 + 8 * G
                    for i in range(0, 8, 2):
                        def pk(o=o, i=i, kq=kq):
                            a.emit("v_accvgpr_read_b32 v%d, a%d" % (t0, o + i))
                            a.emit("v_accvgpr_read_b32 v%d, a%d" % (t1, o + i + 1))
                            a.emit("v_mul_f32 v%d, v%d, v%d" % (t0, t0, T0))
                            a.emit("v_mul_f32 v%d, v%d, v%d" % (t1, t1, T0))
                            a.emit("v_cvt_pk_bf16_f32 v%d, v%d, v%d" % (V_Q + 4 * kq + i // 2, t0, t1))
                        ops.append((pk, 20))
                    so = S_STB[u * 2 + (kq // 4)]
                    self.deferred_stores.append(lambda so=so, kq=kq: a.vmem(
                        "buffer_store_dwordx4 %s, v%d, s[%d:%d], s%d offen offset:%d%s" %
                        (vr(V_Q + 4 * kq, 4), V_STOFF, S_WS, S_WS + 3, so, (kq % 4) * 1024, STFLAG), None))
            return ops
        k = 0
        for dt in range(4):
            for G in range(2):
                base = tmp[k % len(tmp)]
                k += 1
                o = A_O + dt * 16 + 8 * G
                for i in range(8):
                    ops.append((lambda base=base, i=i, o=o: a.emit("v_accvgpr_read_b32 v%d, a%d" % (base + i, o + i)), 4))
                for i in range(8):
                    ops.append((lambda base=base, i=i: a.emit("v_mul_f32 v%d, v%d, v%d" % (base + i, base + i, T0)), 4))
                for i in range(0, 8, 2):
                    ops.append((lambda base=base, i=i: a.emit("v_cvt_pk_bf16_f32 v%d, v%d, v%d" % (base + 8 + i // 2, base + i, base + i + 1)), 4))
                kq = 2 * dt + G
                so = S_STB[u * 2 + (kq // 4)]
                ops.append((lambda base=base, so=so, kq=kq: a.vmem(
                    "buffer_store_dwordx4 %s, v%d, s[%d:%d], s%d offen offset:%d%s" %
                    (vr(base + 8, 4), V_STOFF, S_WS, S_WS + 3, so, (kq % 4) * 1024, STFLAG), None), 4))
        return ops

    def body(self):
        a = self.a
        frags = self.frags
        self.fpos = 0
        self.fiss = 0
        fillers = []
        timed = {}

        def time_ops(ops, span):
            n = len(ops)
            for cls in range(2):
                for k, (op, c) in enumerate(ops):
                    pos = self.fpos + cls * (span // 2) + 1 + (k * (span // 2 - 1)) // n
                    timed.setdefault(pos, []).append((cls, op))

        def pump(budget):
            while fillers and budget > 0:
                op, c = fillers.pop(0)
                op()
                budget -= c

        def flush():
            while fillers:
                op, c = fillers.pop(0)
                op()

        def issue_upto(n):
            while self.fiss < min(n, len(frags)):
                self.issue_frag(self.fiss)
                self.fiss += 1

        def step_start(si, front=False):
            need = []
            if si + 1 < len(self.steps):
                for c in self.steps[si + 1]:
                    need += self.dma_tags(c)
            if si == 0:
                self.need0 = need
            else:
                if need:
                    a.wait(vm=need)
                a.emit("s_barrier")
            if si in (0, 8, 9, 16, 17, 24) or 'allst' in EXP:
                self.stamp()
            ops = []
            for c in self.issue_at.get(si, []):
                ops.extend(self.dma_ops(c))
            return ops

        def consume(mf, extra_lg=(), per=14):
            f = self.fpos
            a.wait(lg=[('fr', f, 1)] + list(extra_lg))
            mf(self.frag_reg(f))
            issue_upto(f + 1 + LA)
            for cls, fn in timed.pop(f, []):
                if cls is None:
                    fn()
                else:
                    a.cond(cls, fn, S_CLS)
            pump(per)
            self.fpos += 1

        if not XDMA:
            for i in range(4):
                self.x_write(0, i)
        for ks in range(4):
            self.x_read(0, ks)
        if XDMA:
            for i in range(4):
                self.x_dma(1, i)
        for j in range(8):
            dma = step_start(j)
            if j == 0:
                issue_upto(LA)
                dma = self.late_prologue + dma
            mi = 0
            sched = {}
            for cls in range(2):
                sh = cls * SHIFT
                if XDMA:
                    for k, (op, c) in enumerate(dma):
                        sched.setdefault(min(3 + 3 * k + sh, 31), []).append((cls, op))
                    if j + 1 < 8:
                        for k in range(4):
                            sched.setdefault(22 + k, []).append((cls, lambda k=k: self.x_read(j + 1, k)))
                    if j + 2 < 8:
                        for i in range(4):
                            sched.setdefault(28 + i, []).append((cls, lambda i=i: self.x_dma(j + 2, i)))
                    continue
                if j + 2 < 8:
                    for i in range(4):
                        sched.setdefault(1 + 2 * i + sh, []).append((cls, lambda i=i: self.x_raw_load(j + 2, i)))
                for k, (op, c) in enumerate(dma):
                    sched.setdefault(min(9 + 2 * k + sh, 31), []).append((cls, op))
                if j + 1 < 8:
                    for i in range(4):
                        sched.setdefault(2 + 4 * i + sh, []).append((cls, lambda i=i: self.x_write(j + 1, i)))
                    for k in range(4):
                        sched.setdefault(17 + k + sh, []).append((cls, lambda k=k: self.x_read(j + 1, k)))
            for ks in range(4):
                for u in range(2):
                    for t in range(4):
                        def m(fr):
                            if u == 0:
                                acc = vr(V_QACC + t * 16, 16)
                            else:
                                acc = ar(A_O + t * 16, 16)
                            c = "0" if (j == 0 and ks == 0) else acc
                            a.emit("v_mfma_f32_32x32x16_bf16 %s, %s, %s, %s" %
                                   (acc, vr(fr, 4), ar(A_XF + (j % 2) * 16 + ks * 4, 4), c))
                        consume(m, [('xf', j, ks)] if (t == 0 and u == 0) else [])
                        for cls, fn in sched.get(mi, []):
                            a.cond(cls, fn, S_CLS)
                        if j == 0 and mi == 22:
                            a.wait(vm=self.need0)
                            a.emit("s_barrier")
                        if mi == TPOS and j % 2 == 1:
                            self.touch(j // 2)
                        if mi == 28 and j % 2 == 0 and j >= 2:
                            self.wo_st((j - 2) // 2)
                        if mi == 30 and j % 2 == 0:
                            self.wo_ld(j // 2)
                        mi += 1
            flush()

        self.wo_st(3)
        a.emit("s_nop 7")
        a.emit("s_nop 7")
        tb = struct.unpack("<I", struct.pack("<f", THR))[0]
        a.emit("v_mov_b32 v%d, 0x%08x" % (V_THR, tb))
        for t in range(4):
            acc = V_QACC + t * 16
            for i in range(0, 16, 2):
                a.emit("v_pk_mul_f32 %s, %s, s[%d:%d]" % (vr(acc + i, 2), vr(acc + i, 2), S_SCALE, S_SCALE + 1))
            for i in range(0, 16, 2):
                q = V_Q + (2 * t + i // 8) * 4 + (i % 8) // 2
                a.emit("v_cvt_pk_bf16_f32 v%d, v%d, v%d" % (q, acc + i, acc + i + 1))
        conv1 = []
        CT = [V_P[1], V_P[1] + 2, V_P[1] + 4, V_P[1] + 6]
        k = 0
        for t in range(4):
            for i in range(0, 16, 2):
                tt = CT[k % 4]
                k += 1
                o = A_O + t * 16 + i
                q = A_XF + (2 * t + i // 8) * 4 + (i % 8) // 2
                def cv(tt=tt, o=o, q=q):
                    a.emit("v_accvgpr_read_b32 v%d, a%d" % (tt, o))
                    a.emit("v_accvgpr_read_b32 v%d, a%d" % (tt + 1, o + 1))
                    a.emit("v_mul_f32 v%d, s%d, v%d" % (tt, S_SCALE, tt))
                    a.emit("v_mul_f32 v%d, s%d, v%d" % (tt + 1, S_SCALE, tt + 1))
                    a.emit("v_cvt_pk_bf16_f32 v%d, v%d, v%d" % (tt, tt, tt + 1))
                    a.emit("v_accvgpr_write_b32 a%d, v%d" % (q, tt))
                conv1.append((cv, 24))

        def A_mfmas(g, per=PERA):
            nb = g & 1
            u = g // 16
            for s in range(8):
                def m(fr):
                    sreg = V_S[nb]
                    if s == 0:
                        c = "0" if g % 16 == 0 else vr(V_NEGM, 16)
                    else:
                        c = vr(sreg, 16)
                    q = vr(V_Q + s * 4, 4) if u == 0 else ar(A_XF + s * 4, 4)
                    a.emit("v_mfma_f32_32x32x16_bf16 %s, %s, %s, %s" % (vr(sreg, 16), vr(fr, 4), q, c))
                consume(m, per=per)

        def C_mfmas(g, per=PERC):
            pb = g & 1
            for dt in range(4):
                for ks in range(2):
                    def m(fr):
                        o = A_O + dt * 16
                        c = "0" if (g % 16 == 0 and ks == 0) else ar(o, 16)
                        a.emit("v_mfma_f32_32x32x16_bf16 %s, %s, %s, %s" %
                               (ar(o, 16), vr(fr, 4), vr(V_P[pb] + ks * 4, 4), c))
                    consume(m, per=per)

        time_ops(step_start(8), 16)
        fillers.extend(conv1[:16])
        a.emit("s_nop 1")
        A_mfmas(0, per=24)
        flush()
        a.emit("s_nop 7")
        for op, c in self.init_ops(0):
            op()
        fillers.extend(self.softmax_ops(0))
        fillers.extend(conv1[16:])
        A_mfmas(1, per=40)
        flush()
        self.check_ops(0)
        a.emit("s_nop 7")
        for T in range(1, 16):
            time_ops(step_start(8 + T), 32)
            if T == 13:
                assert max(self.issue_at) <= 20
                def warm():
                    a.emit("v_lshlrev_b32 v%d, 6, v0" % V_T1)
                    a.vmem("buffer_load_dword v%d, v%d, s[%d:%d], s%d offen" % (V_T1, V_T1, S_WO, S_WO + 3, S_WOS), None)
                if K2V == 'v3nowot':
                    timed.setdefault(self.fpos + 1, []).append((None, warm))
                if 'nodefer' not in EXP:
                    for k, st in enumerate(self.deferred_stores):
                        timed.setdefault(self.fpos + 4 + 3 * k, []).append((None, st))
            if T in (1, 3, 5, 7):
                timed.setdefault(self.fpos + 20, []).append((None, lambda T=T: self.touch(4 + (T - 1) // 2)))
            for g in (2 * T - 1, 2 * T):
                if g == 16:
                    a.emit("s_nop 1")
                    fillers.extend([(lambda: a.emit("s_nop 7"), 8)] + self.init_ops(16))
                    C_mfmas(15, per=30)
                    flush()
                    a.emit("s_nop 1")
                    if 'nodefer' in EXP:
                        ep = self.epilogue_ops(0, [V_Q, V_Q + 12])
                        nsp = 90
                    else:
                        ep = self.epilogue_ops(0, None)
                        nsp = 17
                    fillers.extend(self.softmax_ops(16))
                    fillers.append((lambda: a.emit("s_nop 7"), 8))
                    fillers.extend(ep[:nsp])
                    self.ep_rest = ep[nsp:]
                    A_mfmas(17, per=40)
                    flush()
                    self.check_ops(16)
                    continue
                if g == 17:
                    fillers.extend(self.ep_rest)
                    fillers.extend(self.softmax_ops(g))
                    A_mfmas(g + 1, per=40)
                    while any(True for _ in ()):
                        pass
                    n_sm = len(self.softmax_ops(g))
                    while len(fillers) > n_sm:
                        op, c = fillers.pop(0)
                        op()
                    a.emit("s_nop 1")
                    C_mfmas(g - 1, per=24)
                    flush()
                    self.check_ops(g)
                    continue
                fillers.extend(self.softmax_ops(g))
                A_mfmas(g + 1)
                C_mfmas(g - 1)
                flush()
                self.check_ops(g)
        time_ops(step_start(24), 16)
        fillers.extend(self.softmax_ops(31))
        C_mfmas(30, per=30)
        flush()
        self.check_ops(31)
        a.emit("s_nop 1")
        C_mfmas(31)
        flush()
        self.stamp()
        a.emit("s_nop 15")
        for op, c in self.epilogue_ops(1, [64, 76, 88, 100]):
            op()

    def prologue(self):
        a = self.a
        e = a.emit
        self.cur_base = {'K': 0, 'VW': 0}
        e("s_cmp_ge_u32 s2, 256")
        e("s_cbranch_scc1 L_end")
        if self.stamps:
            e("s_memtime s[90:91]")
            e("s_memrealtime s[92:93]")
        e("s_and_b32 s%d, s2, 7" % S_T[0])
        e("s_lshr_b32 s%d, s2, 3" % S_T[1])
        e("s_and_b32 s%d, s%d, 1" % (S_T[2], S_T[0]))
        e("s_load_dwordx16 s[64:79], s[0:1], 0")
        e("s_load_dwordx8 s[80:87], s[0:1], 64")
        e("s_load_dwordx2 s[88:89], s[0:1], 96")
        e("s_lshr_b32 s%d, s%d, 1" % (S_T[3], S_T[0]))
        e("s_and_b32 s%d, s%d, 1" % (S_T[3], S_T[3]))
        e("s_lshl_b32 s%d, s%d, 2" % (S_T[3], S_T[3]))
        e("s_and_b32 s%d, s%d, 3" % (S_T[4], S_T[1]))
        e("s_add_u32 s%d, s%d, s%d" % (S_T[3], S_T[3], S_T[4]))
        e("s_lshr_b32 s%d, s%d, 2" % (S_T[4], S_T[0]))
        e("s_lshl_b32 s%d, s%d, 4" % (S_T[4], S_T[4]))
        e("s_lshr_b32 s%d, s%d, 2" % (S_T[5], S_T[1]))
        e("s_add_u32 s%d, s%d, s%d" % (S_T[4], S_T[4], S_T[5]))
        e("s_waitcnt lgkmcnt(0)")
        e("s_cmp_eq_u32 s%d, 0" % S_T[2])
        for (dst, pa, pb, sz) in ((S_X, 64, 74, 8 * 240 * 512 * 2), (S_K, 66, 76, 8 * 32 * 512 * 128 * 2),
                                  (S_V, 68, 78, 8 * 32 * 512 * 128 * 2), (S_W, 70, 80, 512 * 4096 * 2)):
            e("s_cselect_b32 s%d, s%d, s%d" % (dst, pa, pb))
            e("s_cselect_b32 s%d, s%d, s%d" % (dst + 1, pa + 1, pb + 1))
            e("s_mov_b32 s%d, %d" % (dst + 2, sz))
            e("s_mov_b32 s%d, 0x00020000" % (dst + 3))
        e("s_cselect_b32 s%d, s72, s82" % S_WO)
        e("s_cselect_b32 s%d, s73, s83" % (S_WO + 1))
        e("s_mov_b32 s%d, %d" % (S_WO + 2, 4096 * 512 * 2))
        e("s_mov_b32 s%d, 0x00020000" % (S_WO + 3))
        e("s_lshr_b32 s%d, s%d, 1" % (S_WOS, S_T[0]))
        e("s_lshl_b32 s%d, s%d, 5" % (S_WOS, S_WOS))
        e("s_add_u32 s%d, s%d, s%d" % (S_WOS, S_WOS, S_T[1]))
        if K2V == 'v3nowot':
            e("s_lshl_b32 s%d, s%d, 15" % (S_WOS, S_WOS))
        elif K2V == 'v1':
            e("s_lshl_b32 s%d, s%d, 22" % (S_WOD, S_T[2]))
            e("s_lshl_b32 s63, s%d, 15" % S_WOS)
            e("s_add_u32 s%d, s%d, s63" % (S_WOD, S_WOD))
            e("s_add_u32 s%d, s%d, %d" % (S_WOD, S_WOD, WOT))
            e("s_lshr_b32 s63, s%d, 4" % S_WOS)
            e("s_lshl_b32 s63, s63, 7")
            e("s_and_b32 s%d, s%d, 15" % (S_WOS, S_WOS))
            e("s_lshl_b32 s%d, s%d, 18" % (S_WOS, S_WOS))
            e("s_add_u32 s%d, s%d, s63" % (S_WOS, S_WOS))
        else:
            e("s_lshl_b32 s%d, s%d, 1" % (S_WOS, S_WOS))
            e("s_lshl_b32 s%d, s%d, 22" % (S_WOD, S_T[2]))
            e("s_lshl_b32 s63, s%d, 14" % S_WOS)
            e("s_add_u32 s%d, s%d, s63" % (S_WOD, S_WOD))
            e("s_add_u32 s%d, s%d, %d" % (S_WOD, S_WOD, WOT))
            e("s_lshr_b32 s63, s%d, 6" % S_WOS)
            e("s_lshl_b32 s63, s63, 8")
            e("s_and_b32 s%d, s%d, 63" % (S_WOS, S_WOS))
            e("s_lshl_b32 s%d, s%d, 16" % (S_WOS, S_WOS))
            e("s_add_u32 s%d, s%d, s63" % (S_WOS, S_WOS))
        e("s_mov_b32 s%d, s88" % S_WS)
        e("s_mov_b32 s%d, s89" % (S_WS + 1))
        e("s_mov_b32 s%d, %d" % (S_WS + 2, WOT + (8 << 20)))
        e("s_mov_b32 s%d, 0x00020000" % (S_WS + 3))
        e("s_lshl_b32 s%d, s%d, 5" % (S_T[5], S_T[3]))
        e("s_add_u32 s%d, s%d, s%d" % (S_T[5], S_T[5], S_T[4]))
        e("s_lshl_b32 s%d, s%d, 17" % (S_KVB[0], S_T[5]))
        e("s_lshl_b32 s%d, s%d, 8" % (S_WCB[0], S_T[4]))
        e("s_add_u32 s%d, s%d, %d" % (S_KVB[1], S_KVB[0], 8 * 131072))
        e("s_add_u32 s%d, s%d, %d" % (S_WCB[1], S_WCB[0], 8 * 256))
        e("s_mul_i32 s%d, s%d, %d" % (S_STB[0], S_T[2], 60 * 262144))
        e("s_lshl_b32 s%d, s%d, 13" % (S_T[5], S_T[4]))
        e("s_add_u32 s%d, s%d, s%d" % (S_STB[0], S_STB[0], S_T[5]))
        e("s_add_u32 s%d, s%d, 4096" % (S_STB[1], S_STB[0]))
        e("s_add_u32 s%d, s%d, %d" % (S_STB[2], S_STB[0], 65536))
        e("s_add_u32 s%d, s%d, %d" % (S_STB[3], S_STB[0], 65536 + 4096))
        c = math.log2(math.e) / math.sqrt(128.0)
        cb = struct.unpack("<I", struct.pack("<f", c))[0]
        e("s_mov_b32 s%d, 0x%08x" % (S_SCALE, cb))
        e("s_mov_b32 s%d, 0x%08x" % (S_SCALE + 1, cb))
        for i in range(4):
            e("s_mov_b32 s%d, %d" % (S_XSO[i], i * 8192))
        e("v_lshrrev_b32 v%d, 6, v0" % V_T1)
        e("s_nop 0")
        e("v_readfirstlane_b32 s%d, v%d" % (S_T[0], V_T1))
        e("s_lshl_b32 s%d, s%d, 10" % (S_WV1K, S_T[0]))
        e("s_lshl_b32 s62, s%d, 6" % S_T[0])
        e("s_lshr_b32 s%d, s%d, 2" % (S_CLS, S_T[0]))
        if 'prio' in EXP:
            e("s_cmp_eq_u32 s%d, %d" % (S_CLS, 1 if 'prio1' in EXP else 0))
            e("s_cbranch_scc0 L_noprio")
            e("s_setprio 1")
            a.label("L_noprio")
        L = V_L[0]
        HH = V_L[1]
        e("v_and_b32 v%d, 63, v0" % L)
        e("v_lshrrev_b32 v%d, 5, v%d" % (HH, L))
        e("s_mul_i32 s%d, s%d, 240" % (S_T[1], S_T[3]))
        e("s_lshl_b32 s%d, s%d, 5" % (S_T[2], S_T[0]))
        e("s_add_u32 s%d, s%d, s%d" % (S_T[1], S_T[1], S_T[2]))
        RP, CH = V_ET[0], V_ET[1]
        e("v_lshrrev_b32 v%d, 4, v%d" % (V_ET[2], L))
        e("s_lshl_b32 s%d, s%d, 2" % (S_T[5], S_T[0]))
        e("v_add_u32 v%d, s%d, v%d" % (RP, S_T[5], V_ET[2]))
        e("v_and_b32 v%d, 15, v%d" % (CH, L))
        e("v_lshlrev_b32 v%d, 2, v%d" % (V_ET[3], V_ET[2]))
        e("v_xor_b32 v%d, v%d, v%d" % (V_ET[3], CH, V_ET[3]))
        e("v_lshlrev_b32 v%d, 4, v%d" % (V_ET[3], V_ET[3]))
        e("v_lshl_add_u32 v%d, v%d, 13, v%d" % (V_DW, RP, V_ET[3]))
        e("v_lshl_add_u32 v%d, v%d, 8, v%d" % (V_DV, RP, V_ET[3]))
        e("v_and_b32 v%d, 15, v%d" % (V_ET[3], RP))
        e("v_xor_b32 v%d, v%d, v%d" % (V_ET[3], CH, V_ET[3]))
        e("v_lshlrev_b32 v%d, 4, v%d" % (V_ET[3], V_ET[3]))
        e("v_lshl_add_u32 v%d, v%d, 8, v%d" % (V_DK, RP, V_ET[3]))
        e("v_lshrrev_b32 v%d, 3, v%d" % (V_ET[0], L))
        e("v_add_u32 v%d, s%d, v%d" % (V_ET[1], S_T[1], V_ET[0]))
        e("v_lshlrev_b32 v%d, 10, v%d" % (V_XOFF, V_ET[1]))
        e("v_and_b32 v%d, 7, v%d" % (V_ET[1], L))
        e("v_lshl_add_u32 v%d, v%d, 4, v%d" % (V_XOFF, V_ET[1], V_XOFF))
        first = self.issue_at[-1]
        if 'wqtouch' in EXP:
            e("v_lshlrev_b32 v%d, 6, v0" % V_T1)
            a.vmem("buffer_load_dword v%d, v%d, s[%d:%d], s%d offen" % (V_T1, V_T1, S_W, S_W + 3, S_WOS), ('wq', 0))
        if XDMA:
            e("v_lshrrev_b32 v%d, 4, v%d" % (V_ET[2], L))
            e("v_lshlrev_b32 v%d, 4, v%d" % (V_ET[2], V_ET[2]))
            e("v_xor_b32 v%d, v%d, v%d" % (V_XW[0], V_XOFF, V_ET[2]))
            e("v_xor_b32 v%d, 64, v%d" % (V_XW[1], V_XW[0]))
            e("s_lshl_b32 s%d, s%d, 2" % (S_XM, S_WV1K))
            e("s_add_u32 s%d, s%d, %d" % (S_XM, S_XM, XSCR))
            for i in range(4):
                self.x_dma(0, i)
        else:
            for i in range(4):
                self.x_raw_load(0, i)
        for c in first[:2]:
            for op, cc in self.dma_ops(c):
                op()
        if not XDMA:
            for i in range(4):
                self.x_raw_load(1, i)
        for c in first[2:4]:
            for op, cc in self.dma_ops(c):
                op()
        self.late_prologue = []
        for c in first[4:]:
            self.late_prologue.extend(self.dma_ops(c))
        e("v_lshrrev_b32 v%d, 4, v%d" % (V_ET[2], L))
        e("v_xor_b32 v%d, v%d, v%d" % (V_ET[2], V_ET[1], V_ET[2]))
        e("v_lshlrev_b32 v%d, 4, v%d" % (V_ET[2], V_ET[2]))
        e("v_lshl_add_u32 v%d, v%d, 7, v%d" % (V_ET[2], V_ET[0], V_ET[2]))
        e("s_lshl_b32 s%d, s%d, 2" % (S_T[5], S_WV1K))
        e("s_add_u32 s%d, s%d, %d" % (S_T[5], S_T[5], XSCR))
        if not XDMA:
            e("v_add_u32 v%d, s%d, v%d" % (V_XW[0], S_T[5], V_ET[2]))
            e("v_xor_b32 v%d, 64, v%d" % (V_XW[1], V_XW[0]))
        e("v_and_b32 v%d, 31, v%d" % (V_ET[0], L))
        e("v_bfe_u32 v%d, v%d, 1, 3" % (V_ET[1], L))
        e("v_xor_b32 v%d, v%d, v%d" % (V_ET[1], V_ET[1], HH))
        for ks in range(4):
            e("v_xor_b32 v%d, %d, v%d" % (V_ET[2], 2 * ks, V_ET[1]))
            e("v_lshlrev_b32 v%d, 4, v%d" % (V_ET[2], V_ET[2]))
            e("v_lshl_add_u32 v%d, v%d, 7, v%d" % (V_ET[2], V_ET[0], V_ET[2]))
            e("v_add_u32 v%d, s%d, v%d" % (V_XR[ks], S_T[5], V_ET[2]))
        R = V_ET[0]
        e("v_and_b32 v%d, 31, v%d" % (V_ET[3], L))
        e("v_add_u32 v%d, s%d, v%d" % (R, S_T[1], V_ET[3]))
        e("v_lshrrev_b32 v%d, 5, v%d" % (V_ET[1], R))
        e("v_lshlrev_b32 v%d, 18, v%d" % (V_ET[1], V_ET[1]))
        e("v_and_b32 v%d, 31, v%d" % (V_ET[2], R))
        e("v_lshlrev_b32 v%d, 4, v%d" % (V_ET[2], V_ET[2]))
        e("v_lshl_add_u32 v%d, v%d, 9, v%d" % (V_ET[2], HH, V_ET[2]))
        e("v_add_u32 v%d, v%d, v%d" % (V_STOFF, V_ET[1], V_ET[2]))
        e("v_add_u32 v%d, s%d, v%d" % (V_ET[3], S_T[2], V_ET[3]))
        e("v_mov_b32 v%d, 0x7f000000" % V_ET[0])
        e("v_cmp_gt_u32 vcc, 240, v%d" % V_ET[3])
        e("s_nop 1")
        e("v_cndmask_b32 v%d, v%d, v%d, vcc" % (V_STOFF, V_ET[0], V_STOFF))
        r_, c4 = V_ET[0], V_ET[1]
        e("v_bfe_u32 v%d, v%d, 2, 2" % (r_, L))
        e("v_and_b32 v%d, 3, v%d" % (c4, L))
        e("v_lshl_add_u32 v%d, v%d, 3, v%d" % (V_ET[2], HH, r_))
        e("v_lshlrev_b32 v%d, 8, v%d" % (V_ET[2], V_ET[2]))
        e("v_bfe_u32 v%d, v%d, 4, 1" % (V_ET[3], L))
        e("v_lshl_add_u32 v%d, v%d, 5, v%d" % (V_ET[2], V_ET[3], V_ET[2]))
        e("v_and_b32 v%d, 1, v%d" % (V_ET[3], c4))
        e("v_lshl_add_u32 v%d, v%d, 4, v%d" % (V_ET[2], V_ET[3], V_ET[2]))
        e("v_lshrrev_b32 v%d, 1, v%d" % (V_ET[3], c4))
        e("v_lshl_add_u32 v%d, v%d, 3, v%d" % (V_ET[2], V_ET[3], V_ET[2]))
        for t in range(4):
            e("v_xor_b32 v%d, %d, v%d" % (V_ET[3], t, r_))
            e("v_lshl_add_u32 v%d, v%d, 6, v%d" % (V_VW[t], V_ET[3], V_ET[2]))
        key = V_ET[0]
        e("v_and_b32 v%d, 0x13, v%d" % (key, L))
        e("v_bfe_u32 v%d, v%d, 2, 1" % (V_ET[1], L))
        e("v_lshl_add_u32 v%d, v%d, 3, v%d" % (key, V_ET[1], key))
        e("v_bfe_u32 v%d, v%d, 3, 1" % (V_ET[1], L))
        e("v_lshl_add_u32 v%d, v%d, 2, v%d" % (key, V_ET[1], key))
        e("v_and_b32 v%d, 15, v%d" % (V_ET[1], key))
        e("v_xor_b32 v%d, v%d, v%d" % (V_ET[1], V_ET[1], HH))
        for s in range(8):
            e("v_xor_b32 v%d, %d, v%d" % (V_ET[2], 2 * s, V_ET[1]))
            e("v_lshlrev_b32 v%d, 4, v%d" % (V_ET[2], V_ET[2]))
            e("v_lshl_add_u32 v%d, v%d, 8, v%d" % (V_KA[s], key, V_ET[2]))
        e("v_and_b32 v%d, 0xff, v0" % V_L[0])
        e("v_lshlrev_b32 v%d, 7, v%d" % (V_L[0], V_L[0]))
        e("s_cmp_eq_u32 s%d, 0" % S_CLS)
        e("s_cselect_b32 s%d, s%d, s%d" % (S_TCH, S_K, S_V))
        e("s_cselect_b32 s%d, s%d, s%d" % (S_TCH + 1, S_K + 1, S_V + 1))
        e("s_mov_b32 s%d, s%d" % (S_TCH + 2, S_K + 2))
        e("s_mov_b32 s%d, 0x00020000" % (S_TCH + 3))
        need = []
        for c in self.steps[0]:
            need += self.dma_tags(c)
        a.wait(vm=need)
        a.emit("s_barrier")
        self.stamp()

    def gen(self):
        a = self.a
        self.frags = self.build_frags()
        for cls in (0, 1):
            a.new_trace(cls)
            self.prologue()
            self.body()
        a.trace = False
        a.reset_sites(0)
        self.prologue()
        self.body()
        if self.stamps:
            self.stamp()
            a.emit("v_subrev_u32 v%d, s90, v%d" % (V_STMP2, V_STMP2))
            a.emit("s_memrealtime s[60:61]")
            a.emit("s_waitcnt lgkmcnt(0)")
            a.emit("s_sub_u32 s60, s60, s92")
            a.emit("v_mov_b32 v%d, s60" % V_T1)
            a.emit("v_cmp_eq_u32 vcc, s62, v0")
            a.emit("s_nop 1")
            a.emit("v_cndmask_b32 v%d, v%d, v%d, vcc" % (V_STMP2, V_STMP2, V_T1))
            a.emit("s_add_u32 s62, s62, 1")
            a.emit("v_mov_b32 v%d, s92" % V_T1)
            a.emit("v_cmp_eq_u32 vcc, s62, v0")
            a.emit("s_nop 1")
            a.emit("v_cndmask_b32 v%d, v%d, v%d, vcc" % (V_STMP2, V_STMP2, V_T1))
            a.emit("v_lshlrev_b32 v%d, 2, v0" % V_T1)
            a.emit("s_lshl_b32 s60, s2, 11")
            a.emit("s_add_u32 s60, s60, %d" % (64 << 20))
            a.emit("s_mov_b32 s%d, 0x10000000" % (S_WS + 2))
            a.emit("buffer_store_dword v%d, v%d, s[%d:%d], s60 offen" % (V_STMP2, V_T1, S_WS, S_WS + 3))
        a.label("L_end")
        a.emit("s_endpgm")
        for g in range(32):
            if g % 16 != 0:
                self.slow_path(g)

V_STMP2 = 11
```

```python
from asmlib import Asm
import os
EXP = os.environ.get('EXP', '')

NSH = 5
SLOT2 = 16384
RINGH = NSH * SLOT2
LA2 = 5
NFR2 = 8
NB = int(os.environ.get('NB', '16'))
PART = 96 << 20
WOT = 32 << 20
NOWOT = os.environ.get('K2V', 'v3nowot') == 'v3nowot'

V_T1 = 1
V_BOFF = 2
V_DMA = 3
V_AA = [4, 5, 6, 7]
V_ST = 8
V_RED = 9
V_TMP = [10, 11, 240, 241, 242]
V_FR = 12
V_ACC = 44
V_B = 108
V_OUT = 236 - 64

S_WO, S_WS, S_OUT, S_WSB, S_DBG = 4, 8, 12, 32, 36
S_T = [16, 17, 18, 19, 20, 21]
S_PSL, S_PSW, S_WVL = 22, 23, 24
S_GOFF = 25
S_BOFF = 26
S_CNT = 27
S_CSL = 28
S_DELTA = 29
S_HB = 30
S_HALF = 31
S_TILE = 40
S_KH = 41
S_PB = 42

def vr(b, n):
    return "v[%d:%d]" % (b, b + n - 1)

class K2:
    def __init__(self, a):
        self.a = a

    def dma_ops(self, ci):
        a = self.a
        ops = []
        for i in range(4):
            def op(i=i):
                a.emit("s_add_u32 m0, s%d, %d" % (S_PSW, i * 4096))
                a.emit("s_add_u32 s%d, s%d, %d" % (S_T[0], S_GOFF, i * (16384 if NOWOT else 4096)))
                if 'nodma' in EXP:
                    a.vmem("s_nop 0", ('dma', ci, i))
                else:
                  a.vmem("buffer_load_dwordx4 v%d, s[%d:%d], s%d offen%s lds" % (V_DMA, S_WO, S_WO + 3, S_T[0], " nt" if 'ntd' in EXP else ""), ('dma', ci, i))
                if i == 3:
                    a.emit("s_add_u32 s%d, s%d, %d" % (S_GOFF, S_GOFF, 65536 if NOWOT else 16384))
                    a.emit("s_add_u32 s%d, s%d, %d" % (S_PSL, S_PSL, SLOT2))
                    a.emit("s_cmp_eq_u32 s%d, %d" % (S_PSL, RINGH))
                    a.emit("s_cselect_b32 s%d, 0, s%d" % (S_PSL, S_PSL))
                    a.emit("s_add_u32 s%d, s%d, s%d" % (S_PSW, S_PSL, S_WVL))
            ops.append(op)
        return ops

    def dma_tags(self, ci):
        return [('dma', ci, i) for i in range(4)]

    def b_load(self, s_abs, pre=False):
        a = self.a
        loc = s_abs % NB
        grp = loc // 4
        a.emit("s_add_u32 s%d, s%d, %d" % (S_T[1], S_BOFF, (grp * 4096 - (NB * 1024 if pre else 0)) & 0xffffffff))
        if 'nob' in EXP:
            a.vmem("s_nop 0", ('b', s_abs))
            return
        a.vmem("buffer_load_dwordx4 %s, v%d, s[%d:%d], s%d offen offset:%d" %
               (vr(V_B + loc * 4, 4), V_BOFF, S_WSB, S_WSB + 3, S_T[1], (loc % 4) * 1024) + (" nt" if 'ntb' in EXP else ""), ('b', s_abs))

    def issue_frag(self, f):
        a = self.a
        s = f // 4
        t = f % 4
        ks = s % 4
        r = V_FR + (f % NFR2) * 4
        for e2 in range(2):
            a.ds("ds_read_b64_tr_b16 %s, v%d offset:%d" % (vr(r + 2 * e2, 2), V_AA[t], (16 * ks + 4 * e2) * 256), ('fr', f, e2))

    def slot_adv(self):
        a = self.a
        a.emit("s_mov_b32 s%d, s%d" % (S_DELTA, S_CSL))
        a.emit("s_add_u32 s%d, s%d, %d" % (S_CSL, S_CSL, SLOT2))
        a.emit("s_cmp_eq_u32 s%d, %d" % (S_CSL, RINGH))
        a.emit("s_cselect_b32 s%d, 0, s%d" % (S_CSL, S_CSL))
        a.emit("s_sub_u32 s%d, s%d, s%d" % (S_DELTA, S_CSL, S_DELTA))
        for t in range(4):
            a.emit("v_add_u32 v%d, s%d, v%d" % (V_AA[t], S_DELTA, V_AA[t]))

    def body_all(self):
        a = self.a
        extra = []
        for s2 in range(8, NB):
            extra.append(lambda s2=s2: self.b_load2(s2))
            if s2 == 11:
                extra.extend(self.dma_ops(2))
            if s2 == 15:
                extra.extend(self.dma_ops(3))
        pend = []
        for ci in range(16):
            if ci + 1 < 16:
                a.wait(vm=self.dma_tags(ci + 1))
            a.emit("s_barrier")
            if ci + NSH - 1 < 16 and ci >= 0:
                pend.extend(self.dma_ops(ci + NSH - 1))
            for ks in range(4):
                s = ci * 4 + ks
                for t in range(4):
                    f = 4 * s + t
                    a.wait(vm=[('b', s)] if t == 0 else [], lg=[('fr', f, 1)])
                    acc = V_ACC + t * 16
                    a.emit("v_mfma_f32_32x32x16_bf16 %s, %s, %s, %s" %
                           (vr(acc, 16), vr(V_FR + (f % NFR2) * 4, 4), vr(V_B + (s % NB) * 4, 4), vr(acc, 16)))
                    nf = f + LA2
                    if nf < 256:
                        if nf % 16 == 0:
                            self.slot_adv()
                        self.issue_frag(nf)
                    if extra:
                        extra.pop(0)()
                    elif pend and t in (1, 3):
                        pend.pop(0)()
                if s + NB < 64:
                    self.b_load2(s + NB)

    def b_load2(self, s_abs):
        a = self.a
        loc = s_abs % NB
        if 'nob' in EXP:
            a.vmem("s_nop 0", ('b', s_abs))
            return
        a.emit("s_add_u32 s%d, s%d, %d" % (S_T[1], S_BOFF, (s_abs // 4) * 4096))
        a.vmem("buffer_load_dwordx4 %s, v%d, s[%d:%d], s%d offen offset:%d" %
               (vr(V_B + loc * 4, 4), V_BOFF, S_WSB, S_WSB + 3, S_T[1], (s_abs % 4) * 1024), ('b', s_abs))

    def prologue(self):
        a = self.a
        e = a.emit
        e("s_cmp_ge_u32 s2, 256")
        e("s_cbranch_scc1 L2_end")
        if 'st2' in EXP:
            e("s_memtime s[80:81]")
        e("s_load_dwordx2 s[64:65], s[0:1], 32")
        e("s_load_dwordx2 s[66:67], s[0:1], 72")
        e("s_load_dwordx4 s[68:71], s[0:1], 80")
        e("s_load_dwordx2 s[72:73], s[0:1], 96")
        e("s_and_b32 s%d, s2, 7" % S_T[0])
        e("s_lshr_b32 s%d, s2, 3" % S_T[1])
        e("s_lshr_b32 s%d, s%d, 2" % (S_T[2], S_T[0]))
        if 'oldmap' in EXP:
            e("s_and_b32 s%d, s%d, 3" % (S_T[3], S_T[0]))
            e("s_lshl_b32 s%d, s%d, 2" % (S_T[3], S_T[3]))
            e("s_lshr_b32 s%d, s%d, 3" % (S_T[4], S_T[1]))
            e("s_add_u32 s%d, s%d, s%d" % (S_T[3], S_T[3], S_T[4]))
            e("s_bfe_u32 s%d, s%d, 0x20001" % (S_T[4], S_T[1]))
            e("s_and_b32 s%d, s%d, 1" % (S_KH, S_T[1]))
        else:
            if 'align' in EXP:
                e("s_and_b32 s%d, s%d, 1" % (S_T[2], S_T[0]))
                e("s_bfe_u32 s%d, s%d, 0x10001" % (S_T[3], S_T[0]))
            else:
                e("s_and_b32 s%d, s%d, 1" % (S_T[3], S_T[0]))
            e("s_lshl_b32 s%d, s%d, 3" % (S_T[3], S_T[3]))
            e("s_lshr_b32 s%d, s%d, 2" % (S_T[4], S_T[1]))
            e("s_add_u32 s%d, s%d, s%d" % (S_T[3], S_T[3], S_T[4]))
            e("s_and_b32 s%d, s%d, 3" % (S_T[4], S_T[1]))
            if 'align' in EXP:
                e("s_lshr_b32 s%d, s%d, 2" % (S_KH, S_T[0]))
            else:
                e("s_bfe_u32 s%d, s%d, 0x10001" % (S_KH, S_T[0]))
        e("s_cmp_ge_u32 s%d, 15" % S_T[3])
        e("s_cbranch_scc1 L2_end")
        e("s_waitcnt lgkmcnt(0)")
        e("s_cmp_eq_u32 s%d, 0" % S_T[2])
        if NOWOT:
            e("s_cselect_b32 s%d, s64, s66" % S_WO)
            e("s_cselect_b32 s%d, s65, s67" % (S_WO + 1))
            e("s_mov_b32 s%d, %d" % (S_WO + 2, 4096 * 512 * 2))
        else:
            e("s_mov_b32 s%d, s72" % S_WO)
            e("s_mov_b32 s%d, s73" % (S_WO + 1))
            e("s_mov_b32 s%d, %d" % (S_WO + 2, WOT + (8 << 20)))
        e("s_mov_b32 s%d, 0x00020000" % (S_WO + 3))
        for r in (S_WS, S_WSB):
            e("s_mov_b32 s%d, s72" % r)
            e("s_mov_b32 s%d, s73" % (r + 1))
            e("s_mov_b32 s%d, %d" % (r + 2, (2 * 60 * 262144) if r == S_WSB else (PART + 120 * 131072)))
            e("s_mov_b32 s%d, 0x00020000" % (r + 3))
        e("s_mov_b32 s%d, s68" % S_OUT)
        e("s_mov_b32 s%d, s69" % (S_OUT + 1))
        e("s_mov_b32 s%d, %d" % (S_OUT + 2, 1920 * 1024 * 2))
        e("s_mov_b32 s%d, 0x00020000" % (S_OUT + 3))
        e("s_mov_b32 s%d, s70" % S_DBG)
        e("s_mov_b32 s%d, s71" % (S_DBG + 1))
        e("s_mov_b32 s%d, 256" % (S_DBG + 2))
        e("s_mov_b32 s%d, 0x00020000" % (S_DBG + 3))
        e("s_mul_i32 s%d, s%d, 15" % (S_TILE, S_T[2]))
        e("s_add_u32 s%d, s%d, s%d" % (S_TILE, S_TILE, S_T[3]))
        e("s_lshl_b32 s%d, s%d, 2" % (S_TILE, S_TILE))
        e("s_add_u32 s%d, s%d, s%d" % (S_TILE, S_TILE, S_T[4]))
        e("v_lshrrev_b32 v%d, 6, v0" % V_T1)
        e("s_nop 0")
        e("v_readfirstlane_b32 s%d, v%d" % (S_T[5], V_T1))
        e("s_lshr_b32 s%d, s%d, 2" % (S_HALF, S_T[5]))
        e("s_and_b32 s%d, s%d, 3" % (S_T[5], S_T[5]))
        e("s_mul_i32 s%d, s%d, %d" % (S_HB, S_HALF, RINGH))
        e("s_lshl_b32 s%d, s%d, 10" % (S_WVL, S_T[5]))
        e("s_add_u32 s%d, s%d, s%d" % (S_WVL, S_WVL, S_HB))
        e("s_mov_b32 s%d, s%d" % (S_PSW, S_WVL))
        e("s_mov_b32 s%d, 0" % S_PSL)
        e("s_mov_b32 s%d, 0" % S_CSL)
        L = V_TMP[0]
        HH = V_TMP[1]
        e("v_and_b32 v%d, 63, v0" % L)
        e("v_lshrrev_b32 v%d, 5, v%d" % (HH, L))
        e("s_lshl_b32 s%d, s%d, 1" % (S_CNT, S_KH))
        e("s_add_u32 s%d, s%d, s%d" % (S_CNT, S_CNT, S_HALF))
        if NOWOT:
            e("s_lshl_b32 s%d, s%d, 20" % (S_GOFF, S_CNT))
            e("s_lshl_b32 s%d, s%d, 8" % (S_T[0], S_T[4]))
            e("s_add_u32 s%d, s%d, s%d" % (S_GOFF, S_GOFF, S_T[0]))
        else:
            e("s_lshl_b32 s%d, s%d, 18" % (S_GOFF, S_CNT))
            e("s_lshl_b32 s%d, s%d, 20" % (S_T[0], S_T[4]))
            e("s_add_u32 s%d, s%d, s%d" % (S_GOFF, S_GOFF, S_T[0]))
            e("s_lshl_b32 s%d, s%d, 22" % (S_T[0], S_T[2]))
            e("s_add_u32 s%d, s%d, s%d" % (S_GOFF, S_GOFF, S_T[0]))
            e("s_add_u32 s%d, s%d, %d" % (S_GOFF, S_GOFF, WOT))
        e("s_lshl_b32 s%d, s%d, 16" % (S_BOFF, S_CNT))
        e("s_mul_i32 s%d, s%d, 60" % (S_CNT, S_T[2]))
        e("s_lshl_b32 s%d, s%d, 2" % (S_T[0], S_T[3]))
        e("s_add_u32 s%d, s%d, s%d" % (S_T[0], S_T[0], S_T[5]))
        e("s_add_u32 s%d, s%d, s%d" % (S_CNT, S_CNT, S_T[0]))
        e("s_lshl_b32 s%d, s%d, 18" % (S_CNT, S_CNT))
        e("s_add_u32 s%d, s%d, s%d" % (S_BOFF, S_BOFF, S_CNT))
        e("v_lshlrev_b32 v%d, 4, v%d" % (V_BOFF, L))
        e("s_lshl_b32 s%d, s%d, 5" % (S_T[0], S_T[0]))
        e("v_and_b32 v%d, 31, v%d" % (V_T1, L))
        e("v_add_u32 v%d, s%d, v%d" % (V_T1, S_T[0], V_T1))
        e("v_lshlrev_b32 v%d, 11, v%d" % (V_ST, V_T1))
        e("v_lshl_add_u32 v%d, v%d, 4, v%d" % (V_ST, HH, V_ST))
        e("s_lshl_b32 s%d, s%d, 10" % (S_T[0], S_T[2]))
        e("s_lshl_b32 s%d, s%d, 8" % (S_T[1], S_T[4]))
        e("s_add_u32 s%d, s%d, s%d" % (S_T[0], S_T[0], S_T[1]))
        e("v_add_u32 v%d, s%d, v%d" % (V_ST, S_T[0], V_ST))
        e("v_lshrrev_b32 v%d, 4, v%d" % (V_TMP[2], L))
        e("v_lshlrev_b32 v%d, 2, v%d" % (V_TMP[3], V_TMP[2]))
        e("v_and_b32 v%d, 15, v%d" % (V_TMP[4], L))
        e("v_xor_b32 v%d, v%d, v%d" % (V_TMP[3], V_TMP[3], V_TMP[4]))
        e("v_lshlrev_b32 v%d, 4, v%d" % (V_TMP[3], V_TMP[3]))
        e("s_lshl_b32 s%d, s%d, 2" % (S_T[0], S_T[5]))
        e("v_add_u32 v%d, s%d, v%d" % (V_TMP[2], S_T[0], V_TMP[2]))
        if NOWOT:
            e("v_lshl_add_u32 v%d, v%d, 10, v%d" % (V_DMA, V_TMP[2], V_TMP[3]))
        else:
            e("v_lshlrev_b32 v%d, 4, v%d" % (V_DMA, L))
            e("s_lshl_b32 s%d, s%d, 10" % (S_T[0], S_T[5]))
            e("v_add_u32 v%d, s%d, v%d" % (V_DMA, S_T[0], V_DMA))
        e("s_lshl_b32 s%d, s%d, 17" % (S_PB, S_TILE))
        e("s_add_u32 s%d, s%d, %d" % (S_PB, S_PB, PART))
        e("s_lshl_b32 s%d, s%d, 14" % (S_T[0], S_T[5]))
        e("v_lshlrev_b32 v%d, 4, v%d" % (V_RED, L))
        e("v_add_u32 v%d, s%d, v%d" % (V_RED, S_T[0], V_RED))
        for op in self.dma_ops(0):
            op()
        for s in range(4):
            self.b_load2(s)
        for op in self.dma_ops(1):
            op()
        r_, t2, t3 = V_TMP[2], V_TMP[3], V_TMP[4]
        e("v_bfe_u32 v%d, v%d, 2, 2" % (r_, L))
        e("v_lshl_add_u32 v%d, v%d, 3, v%d" % (t2, HH, r_))
        e("v_lshlrev_b32 v%d, 8, v%d" % (t2, t2))
        e("v_bfe_u32 v%d, v%d, 4, 1" % (t3, L))
        e("v_lshl_add_u32 v%d, v%d, 5, v%d" % (t2, t3, t2))
        e("v_and_b32 v%d, 1, v%d" % (t3, L))
        e("v_lshl_add_u32 v%d, v%d, 4, v%d" % (t2, t3, t2))
        e("v_bfe_u32 v%d, v%d, 1, 1" % (t3, L))
        e("v_lshl_add_u32 v%d, v%d, 3, v%d" % (t2, t3, t2))
        e("v_add_u32 v%d, s%d, v%d" % (t2, S_HB, t2))
        for t in range(4):
            e("v_xor_b32 v%d, %d, v%d" % (t3, t, r_))
            e("v_lshl_add_u32 v%d, v%d, 6, v%d" % (V_AA[t], t3, t2))
        for i in range(64):
            e("v_mov_b32 v%d, 0" % (V_ACC + i))
        for s in range(4, 8):
            self.b_load2(s)
        a.wait(vm=self.dma_tags(0))
        e("s_barrier")
        if 'st2' in EXP:
            e("s_memtime s[82:83]")
            e("s_waitcnt lgkmcnt(0)")
        for f in range(LA2):
            self.issue_frag(f)
        e("s_mov_b32 s%d, 0" % S_CNT)

    def epilogue(self):
        a = self.a
        e = a.emit
        e("s_nop 15")
        e("s_nop 3")
        e("s_waitcnt vmcnt(0) lgkmcnt(0)")
        e("s_barrier")
        if 'st2' in EXP:
            e("s_memtime s[84:85]")
            e("s_waitcnt lgkmcnt(0)")
        e("s_cmp_eq_u32 s%d, 0" % S_HALF)
        e("s_cbranch_scc1 L2_h0")
        for i in range(8):
            e("ds_write_b128 v%d, %s offset:%d" % (V_RED, vr(V_ACC + 4 * i, 4), 8192 + i * 1024))
        e("s_waitcnt lgkmcnt(0)")
        e("s_barrier")
        for i in range(8):
            e("ds_read_b128 %s, v%d offset:%d" % (vr(V_B + 4 * i, 4), V_RED, i * 1024))
        e("s_waitcnt lgkmcnt(0)")
        for i in range(32):
            e("v_add_f32 v%d, v%d, v%d" % (V_ACC + i, V_ACC + 32 + i, V_B + i))
        e("s_branch L2_j")
        a.label("L2_h0")
        for i in range(8):
            e("ds_write_b128 v%d, %s offset:%d" % (V_RED, vr(V_ACC + 32 + 4 * i, 4), i * 1024))
        e("s_waitcnt lgkmcnt(0)")
        e("s_barrier")
        for i in range(8):
            e("ds_read_b128 %s, v%d offset:%d" % (vr(V_B + 4 * i, 4), V_RED, 8192 + i * 1024))
        e("s_waitcnt lgkmcnt(0)")
        for i in range(32):
            e("v_add_f32 v%d, v%d, v%d" % (V_ACC + i, V_ACC + i, V_B + i))
        a.label("L2_j")
        e("s_lshl_b32 s%d, s%d, 13" % (S_T[2], S_HALF))
        e("s_add_u32 s%d, s%d, s%d" % (S_PB, S_PB, S_T[2]))
        e("s_lshl_b32 s%d, s%d, 16" % (S_T[0], S_KH))
        e("s_add_u32 s%d, s%d, s%d" % (S_T[0], S_T[0], S_PB))
        for g in range(2):
            e("s_add_u32 s%d, s%d, %d" % (S_T[1], S_T[0], g * 4096))
            for i in range(4):
                e("buffer_store_dwordx4 %s, v%d, s[%d:%d], s%d offen offset:%d sc1" %
                  (vr(V_ACC + 16 * g + 4 * i, 4), V_RED, S_WS, S_WS + 3, S_T[1], i * 1024))
        e("s_waitcnt vmcnt(0)")
        e("s_barrier")
        e("s_cmp_eq_u32 s%d, 0" % S_WVL)
        e("s_cbranch_scc0 L2_noat")
        e("s_lshr_b32 s%d, s%d, 1" % (S_T[0], S_TILE))
        e("s_lshl_b32 s%d, s%d, 2" % (S_T[0], S_T[0]))
        e("s_and_b32 s%d, s%d, 1" % (S_T[1], S_TILE))
        e("s_lshl_b32 s%d, s%d, 4" % (S_T[1], S_T[1]))
        e("s_lshl_b32 s%d, 1, s%d" % (S_T[2], S_T[1]))
        e("v_mov_b32 v%d, s%d" % (V_TMP[2], S_T[2]))
        e("v_mov_b32 v%d, s%d" % (V_TMP[3], S_T[0]))
        e("s_mov_b64 s[44:45], exec")
        e("s_mov_b64 exec, 1")
        e("buffer_atomic_add v%d, v%d, s[%d:%d], 0 offen sc0 sc1" % (V_TMP[2], V_TMP[3], S_DBG, S_DBG + 3))
        e("s_waitcnt vmcnt(0)")
        e("v_lshrrev_b32 v%d, s%d, v%d" % (V_TMP[2], S_T[1], V_TMP[2]))
        e("v_and_b32 v%d, 0xffff, v%d" % (V_TMP[2], V_TMP[2]))
        e("v_mov_b32 v%d, 65536" % V_TMP[3])
        e("ds_write_b32 v%d, v%d" % (V_TMP[3], V_TMP[2]))
        e("s_waitcnt lgkmcnt(0)")
        e("s_mov_b64 exec, s[44:45]")
        a.label("L2_noat")
        e("s_barrier")
        e("v_mov_b32 v%d, 65536" % V_TMP[3])
        e("ds_read_b32 v%d, v%d" % (V_TMP[2], V_TMP[3]))
        e("s_waitcnt lgkmcnt(0)")
        e("v_readfirstlane_b32 s%d, v%d" % (S_T[0], V_TMP[2]))
        e("s_and_b32 s%d, s%d, 1" % (S_T[0], S_T[0]))
        e("s_cmp_eq_u32 s%d, 0" % S_T[0])
        e("s_cbranch_scc1 L2_end")
        e("s_xor_b32 s%d, s%d, 1" % (S_T[0], S_KH))
        e("s_lshl_b32 s%d, s%d, 16" % (S_T[0], S_T[0]))
        e("s_add_u32 s%d, s%d, s%d" % (S_T[0], S_T[0], S_PB))
        for g in range(2):
            e("s_add_u32 s%d, s%d, %d" % (S_T[1], S_T[0], g * 4096))
            for i in range(4):
                e("buffer_load_dwordx4 %s, v%d, s[%d:%d], s%d offen offset:%d sc1" %
                  (vr(V_B + 16 * g + 4 * i, 4), V_RED, S_WS, S_WS + 3, S_T[1], i * 1024))
        e("s_lshl_b32 s%d, s%d, 7" % (S_T[2], S_HALF))
        for t in range(2):
            e("s_waitcnt vmcnt(%d)" % (4 - 4 * t + 2 * t))
            for i in range(16):
                e("v_add_f32 v%d, v%d, v%d" % (V_ACC + 16 * t + i, V_ACC + 16 * t + i, V_B + 16 * t + i))
            for i in range(0, 16, 2):
                e("v_cvt_pk_bf16_f32 v%d, v%d, v%d" % (V_OUT + t * 8 + i // 2, V_ACC + t * 16 + i, V_ACC + t * 16 + i + 1))
            for G in range(2):
                e("buffer_store_dwordx4 %s, v%d, s[%d:%d], s%d offen offset:%d" %
                  (vr(V_OUT + t * 8 + 4 * G, 4), V_ST, S_OUT, S_OUT + 3, S_T[2], t * 64 + G * 32) + (" nt" if 'nto' in EXP else ""))

    def gen(self):
        a = self.a
        a.new_trace(0)
        self.prologue()
        self.body_all()
        a.trace = False
        a.reset_sites(0)
        self.prologue()
        self.body_all()
        self.epilogue()
        a.label("L2_end")
        if 'st2' in EXP:
            e = a.emit
            e("s_cmp_ge_u32 s2, 256")
            e("s_cbranch_scc1 L2_end2")
            e("s_waitcnt vmcnt(0)")
            e("s_memtime s[86:87]")
            e("s_waitcnt lgkmcnt(0)")
            e("s_sub_u32 s82, s82, s80")
            e("s_sub_u32 s84, s84, s80")
            e("s_sub_u32 s86, s86, s80")
            e("v_mov_b32 v20, s82")
            e("v_mov_b32 v21, s84")
            e("v_mov_b32 v22, s86")
            e("v_mov_b32 v23, 0")
            e("v_lshrrev_b32 v24, 6, v0")
            e("v_lshlrev_b32 v24, 4, v24")
            e("s_lshl_b32 s80, s2, 7")
            e("s_add_u32 s80, s80, %d" % (64 << 20))
            e("s_load_dwordx2 s[8:9], s[0:1], 96")
            e("s_mov_b32 s10, 0x10000000")
            e("s_mov_b32 s11, 0x00020000")
            e("s_waitcnt lgkmcnt(0)")
            e("buffer_store_dwordx4 v[20:23], v24, s[8:11], s80 offen")
            a.label("L2_end2")
        a.emit("s_endpgm")
```
